```python
import torch

def _softmax(x, axis=-1):
    return torch.softmax(x, dim=axis)
def _gelu(x):
    return torch.nn.functional.gelu(x, approximate="tanh")
def _silu(x):
    return torch.nn.functional.silu(x)
def _sigmoid(x):
    return torch.sigmoid(x)
def _layernorm(x, axis=-1, eps=1e-5):
    m = x.mean(dim=axis, keepdim=True)
    v = x.var(dim=axis, keepdim=True, unbiased=False)
    return (x - m) / torch.sqrt(v + eps)
def _scatter_add(tgt, idx, src, axis=0):
    return tgt.clone().index_add_(axis, idx, src)
def _segment_sum(src, seg, n):
    out = torch.zeros((n,) + src.shape[1:], dtype=src.dtype)
    return out.index_add_(0, seg, src)
def _pad(x, pw):
    flat = tuple(v for pair in reversed(pw) for v in pair)
    return torch.nn.functional.pad(x, flat)

kernel_name = 'recurrent_scan__gqa_block_cached__swiglu_ffn__decode'

def setup_inputs():

    _w = (lambda a: (lambda t: t.to(torch.bfloat16) if t.is_floating_point() else t)(torch.as_tensor(a)))
    def _A_setup():
        B, Sq, D = 1, 1, 1024
        Hq, Hkv, Sk, Dh = 32, 4, 65536, 128
        assert Hq % Hkv == 0, (Hq, Hkv)
        return {
            "x": _w((lambda *s: torch.randn(*s, dtype=torch.bfloat16) * 0.05)(B, Sq, D)),
            "k_cache": _w((lambda *s: torch.randn(*s, dtype=torch.bfloat16) * 1.6)(B, Hkv, Sk, Dh)),
            "v_cache": _w((lambda *s: torch.randn(*s, dtype=torch.bfloat16) * 0.2)(B, Hkv, Sk, Dh)),
            "wq": _w((lambda *s: torch.randn(*s, dtype=torch.bfloat16) * 1.6)(D, Hq * Dh) * (D ** -0.5)),
            "wo": _w((lambda *s: torch.randn(*s, dtype=torch.bfloat16) * 0.2)(Hq * Dh, D) * ((Hq * Dh) ** -0.5)),
        }
    _A_in = _A_setup()

    def _B_setup():
        B, S, D, F = 1, 1, 1024, 3584
        return {
            "x": _w((lambda *s: torch.randn(*s, dtype=torch.bfloat16) * 0.05)(B, S, D)),
            "w_gate": _w((lambda *s: torch.randn(*s, dtype=torch.bfloat16) * 0.1)(D, F)),
            "w_up": _w((lambda *s: torch.randn(*s, dtype=torch.bfloat16) * 0.1)(D, F)),
            "w_down": _w((lambda *s: torch.randn(*s, dtype=torch.bfloat16) * 0.1)(F, D)),
        }
    _B_in = _B_setup()

    return {
        "A_x": _A_in["x"],
        "A_k_cache": _A_in["k_cache"],
        "A_v_cache": _A_in["v_cache"],
        "A_wq": _A_in["wq"],
        "A_wo": _A_in["wo"],
        "B_x": _B_in["x"],
        "B_w_gate": _B_in["w_gate"],
        "B_w_up": _B_in["w_up"],
        "B_w_down": _B_in["w_down"],
    }

def reference(A_x, A_k_cache, A_v_cache, A_wq, A_wo, B_x, B_w_gate, B_w_up, B_w_down):
    def _A_ref(x, k_cache, v_cache, wq, wo):
        B, Sq, D = x.shape
        Hq, Dh = 32, 128
        Hkv = k_cache.shape[1]
        rep = Hq // Hkv
        q = (lambda x, *d: x.permute(*d))((x @ wq).reshape(B, Sq, Hq, Dh), 0, 2, 1, 3)
        k = (lambda x, n, axis: torch.repeat_interleave(x, n, dim=axis))(k_cache, rep, axis=1)
        v = (lambda x, n, axis: torch.repeat_interleave(x, n, dim=axis))(v_cache, rep, axis=1)
        scores = torch.einsum("bhqd,bhkd->bhqk", q, k) * (Dh ** -0.5)
        p = _softmax(scores, axis=-1)
        o = torch.einsum("bhqk,bhkd->bhqd", p, v)
        return (lambda x, *d: x.permute(*d))(o, 0, 2, 1, 3).reshape(B, Sq, Hq * Dh) @ wo

    def _B_ref(x, w_gate, w_up, w_down):
        g = _silu(x @ w_gate)
        u = x @ w_up
        return (g * u) @ w_down

    x = A_x
    xn = _layernorm(x, axis=-1)
    s = _A_ref(xn, A_k_cache, A_v_cache, A_wq, A_wo)
    g = _silu(_B_ref(xn, B_w_gate, B_w_up, B_w_down))
    return x + s * g
```

```python
import re

TRANS = ("v_exp_f32", "v_log_f32", "v_rcp_f32", "v_rsq_f32", "v_sqrt_f32", "v_sin_f32", "v_cos_f32")
NO_DST_S = ("s_cmp", "s_cbranch", "s_waitcnt", "s_nop", "s_barrier", "s_sleep", "s_setprio", "s_endpgm",
            "s_branch", "s_bitcmp")
REG = re.compile(r"(?<![\w.])(-?|abs\()?([vsa])(\d+|\[(\d+):(\d+)\])(?![\w])|\b(vcc|exec_lo|exec_hi|exec|m0|vcc_lo|vcc_hi)\b")


def regs_of(tok):
    out = []
    for m in REG.finditer(tok):
        if m.group(6):
            n = m.group(6)
            if n.startswith("vcc"):
                out.append(("s", "vcc"))
            elif n.startswith("exec"):
                out.append(("s", "exec"))
            else:
                out.append(("s", n))
        else:
            cls = m.group(2)
            if m.group(4) is not None:
                out += [(cls, i) for i in range(int(m.group(4)), int(m.group(5)) + 1)]
            else:
                out.append((cls, int(m.group(3))))
    return out


class I:
    def __init__(self, text):
        self.text = text
        self.label = None
        t = text.split(";")[0].strip()
        self.ws = 1
        self.kind = "other"
        self.w = set(); self.r = set(); self.rA = set(); self.rC = set(); self.data = set()
        self.mn = ""
        self.target = None
        if not t:
            self.kind = "none"; self.ws = 0; return
        if t.endswith(":"):
            self.kind = "label"; self.label = t[:-1]; self.ws = 0; return
        if t.startswith("."):
            self.kind = "dir"; self.ws = 0; return
        p = t.split(None, 1)
        mn = p[0]; self.mn = mn
        rest = p[1] if len(p) > 1 else ""
        rest_nomod = re.sub(r"\b(quad_perm|op_sel|op_sel_hi|neg_lo|neg_hi):\[[^\]]*\]", "", rest)
        ops = [o.strip() for o in rest_nomod.split(",")] if rest_nomod else []
        R = lambda lst: set(x for o in lst for x in regs_of(o))
        self.dpp = bool(re.search(r"\b(quad_perm|row_shr|row_shl|row_ror|row_mirror|row_half_mirror|row_bcast|wave_shr|wave_ror)", rest))
        if mn == "s_nop":
            self.kind = "nop"; self.ws = int(ops[0], 0) + 1
        elif mn.startswith("v_mfma"):
            self.kind = "mfma"
            self.w = R(ops[:1]); self.rA = R(ops[1:3]); self.rC = R(ops[3:4]); self.r = self.rA | self.rC
            assert "16x16x32" in mn or "16x16x16" in mn, "pass count table only for 4-pass MFMA"
        elif mn.startswith("v_"):
            self.kind = "valu"
            self.trans = mn.replace("_e32", "").replace("_e64", "") in TRANS
            if mn.startswith("v_permlane"):
                self.w = R(ops[:2]); self.r = R(ops[:2])
            elif re.match(r"v_(add|sub|subrev)_co_|v_(addc|subb)_co_|v_div_scale|v_mad_u64", mn):
                self.w = R(ops[:2]); self.r = R(ops[2:])
            elif re.match(r"v_(fmac|mac|dot2c|writelane|pk_fmac)", mn):
                self.w = R(ops[:1]); self.r = R(ops)
            elif mn == "v_nop":
                pass
            else:
                self.w = R(ops[:1]); self.r = R(ops[1:])
            assert not mn.startswith("v_cmpx") and not mn.startswith("v_dot")
        elif mn.startswith("ds_"):
            self.kind = "ds"
            if mn.startswith("ds_read") or "_rtn" in mn or "permute" in mn or "swizzle" in mn:
                self.w = R(ops[:1]); self.r = R(ops[1:])
            else:
                self.r = R(ops)
        elif mn.startswith("buffer_") or mn.startswith("global_"):
            self.kind = "vmem"
            self.lds = bool(re.search(r"\blds\b", rest)) or "_lds_" in mn
            if mn.startswith("buffer_load") and not self.lds:
                self.w = R(ops[:1]); self.r = R(ops[1:])
            elif mn.startswith("buffer_atomic") and re.search(r"\bsc0\b", rest):
                self.w = R(ops[:1]); self.r = R(ops)
            elif mn.startswith("buffer_"):
                self.r = R(ops)
                if re.search(r"store_dwordx[34]", mn):
                    self.data = R(ops[:1])
            else:
                raise ValueError("unsupported " + mn)
            if self.lds:
                self.r.add(("s", "m0"))
        elif mn.startswith("s_"):
            self.kind = "salu"
            if mn.startswith("s_load") or mn.startswith("s_memrealtime") or mn.startswith("s_memtime"):
                self.kind = "smem"
                self.w = R(ops[:1]); self.r = R(ops[1:])
            elif any(mn.startswith(x) for x in NO_DST_S):
                self.r = R(ops)
                if mn.startswith("s_cbranch") or mn == "s_branch":
                    self.target = ops[0]
            else:
                self.w = R(ops[:1]); self.r = R(ops[1:])
        else:
            raise ValueError("cannot parse: " + text)


def need(p, c):
    n = 0
    vw = set(x for x in p.w if x[0] != "s")
    sw = set(x for x in p.w if x[0] == "s")
    if p.kind == "valu":
        if vw & c.r:
            if c.kind == "valu" and c.mn.startswith(("v_readlane", "v_readfirstlane")): n = max(n, 1)
            if c.kind == "valu" and (c.dpp or c.mn.startswith("v_permlane")): n = max(n, 2)
            if c.kind == "mfma": n = max(n, 2)
            if p.trans and c.kind == "valu" and not c.trans: n = max(n, 1)
            if p.trans and c.kind in ("ds", "vmem"): n = max(n, 1)
        if sw & c.r:
            if c.kind == "valu":
                n = max(n, 4 if c.mn.startswith(("v_readlane", "v_writelane")) else 2)
            if c.kind == "vmem": n = max(n, 5)
            if c.kind == "salu": n = max(n, 1)
    if p.kind == "mfma":
        if c.kind == "mfma":
            if p.w & c.rA: n = max(n, 8)
            if p.w & c.rC and p.w != c.rC: n = max(n, 6)
            if p.w & c.w and not (p.w & c.rC): n = max(n, 8)
        elif c.kind in ("valu", "ds", "vmem"):
            if p.w & (c.r | c.w): n = max(n, 8)
        if c.kind == "valu" and p.rC & c.w: n = max(n, 3)
    if p.kind == "salu" and ("s", "m0") in p.w and c.kind == "vmem" and c.lds: n = max(n, 1)
    if p.kind == "vmem" and p.data and (p.data & c.w):
        n = max(n, 2 if c.kind in ("valu", "mfma") else 1)
    return n


class Asm:
    def __init__(self):
        self.ins = []
        self.uid = 0
        self.pads = 0

    def lab(self, base):
        self.uid += 1
        return f"L{base}_{self.uid}"

    def __call__(self, text):
        for line in text.split("\n"):
            line = line.strip()
            if not line:
                continue
            c = I(line)
            if c.kind not in ("label", "dir", "none", "nop"):
                d = 0; pad = 0
                for p in reversed(self.ins):
                    if d >= 10: break
                    if p.mn in ("s_branch", "s_endpgm"): break
                    if p.kind not in ("label", "dir", "none"):
                        pad = max(pad, need(p, c) - d)
                    d += p.ws
                if pad > 0:
                    self.ins.append(I(f"s_nop {pad-1}"))
                    self.pads += 1
            self.ins.append(c)

    def verify_edges(self):
        pos = {i.label: k for k, i in enumerate(self.ins) if i.kind == "label"}
        bad = []
        for k, b in enumerate(self.ins):
            if b.target is None: continue
            t = pos[b.target]
            df = 0
            for c in self.ins[t:]:
                if df >= 10: break
                if c.kind not in ("label", "dir", "none", "nop"):
                    d = df
                    for p in reversed(self.ins[:k + 1]):
                        if d >= 10: break
                        if p is not b and p.mn in ("s_branch", "s_endpgm"): break
                        if p.kind not in ("label", "dir", "none") and p is not b and need(p, c) > d:
                            bad.append((p.text, c.text, need(p, c), d))
                        d += p.ws
                df += c.ws
                if c.mn in ("s_branch", "s_endpgm"): break
        return bad

    def text(self):
        out = []
        for i in self.ins:
            out.append(i.text if i.kind in ("label", "dir") else "    " + i.text)
        return "\n".join(out) + "\n"
```

```python
import sys
sys.path.insert(0, "work")
from asmlib import Asm

KN = "recurrent_scan__gqa_block_cached__swiglu_ffn__decode_kernel"
HEAD = open("recurrent_scan__gqa_block_cached__swiglu_ffn__decode.s.ref").read().split("; Override launch")[0] \
    if __import__("os").path.exists("recurrent_scan__gqa_block_cached__swiglu_ffn__decode.s.ref") else ""

QP, HP, HF, ML, OP, FI, SI = 0x0, 0x10000, 0xF0000, 0xF1000, 0x100000, 0x200000, 0x280000
STAMP_OFF = 128 << 20
MISC = 131072
F_LAND, F_CONS = 0, 1024
C_A, C_ST1, C_QGO, C_B, C_Q, C_ML, C_O, C_OB, C_HR, C_PF, C_PS = [2048 + 4 * i for i in range(11)]
QRED, QBUF, MLX, HBUF, OBUF = 3072, 4096, 6144, 6400, 6464
LDS_BYTES = MISC + 8192
LOG2E = 0x3FB8AA3B
SCALE = 0x3DB504F3
EPS = 0x3727C5AC


def gen(D=5, Dend=8, stamps=False, sleep_poll=2, budget=1 << 20, ild='sc1', ist='sc1'):
    A = Asm()
    BUD = "s60"

    def stamp(k, vreg):
        if stamps:
            A(f"s_memrealtime s[62:63]\ns_waitcnt lgkmcnt(0)\nv_writelane_b32 v{vreg}, s62, {k}")

    def stamp_flush(vreg, srd):
        if stamps:
            A(f"""s_mov_b64 exec, -1
            s_mul_i32 s62, s2, 9
            s_add_u32 s62, s62, s3
            s_lshl_b32 s62, s62, 8
            s_add_u32 s62, s62, {STAMP_OFF}
            v_lshlrev_b32 v0, 2, v0
            buffer_store_dword v{vreg}, v0, s[{srd}:{srd+3}], s62 offen""")

    def spin(vaddr, off, needv, vt, st="s61", pre=False):
        l0, l1, l2 = A.lab("sp"), A.lab("sp"), A.lab("sp")
        if pre:
            A(f"s_branch {l2}") if False else None
        A(f"{l0}:")
        A(f"ds_read_b32 v{vt}, v{vaddr} offset:{off}")
        A(f"s_waitcnt lgkmcnt(0)")
        A(f"v_readfirstlane_b32 {st}, v{vt}")
        A(f"s_cmp_ge_i32 {st}, {needv}")
        A(f"s_cbranch_scc1 {l1}")
        A(f"s_sub_u32 {BUD}, {BUD}, 1")
        A(f"s_cbranch_scc0 {l0}")
        A(f"s_mov_b32 {BUD}, 0")
        A(f"{l1}:")

    def srd(base, ptr, size):
        A(f"s_mov_b32 s{base}, s{ptr}\ns_mov_b32 s{base+1}, s{ptr+1}\ns_mov_b32 s{base+2}, {size}\ns_mov_b32 s{base+3}, 0x20000")

    def execmask(lo, hi):
        if lo == 0xFFFFFFFF and hi == 0xFFFFFFFF:
            A("s_mov_b64 exec, -1")
        elif hi == 0 and lo <= 64:
            A(f"s_mov_b64 exec, {lo}")
        else:
            A(f"s_mov_b32 exec_lo, {lo:#x}\ns_mov_b32 exec_hi, {hi:#x}")
    FULL = (0xFFFFFFFF, 0xFFFFFFFF)
    N0 = (0x00010001, 0x00010001)
    NLT8 = (0x00FF00FF, 0x00FF00FF)

    def poll(loads, regs, vt):
        l0, l1 = A.lab("pl"), A.lab("pl")
        A(f"{l0}:")
        for t in loads: A(t)
        A("s_waitcnt vmcnt(0)")
        rs = list(regs)
        if len(rs) == 2:
            A(f"v_max_u32 v{vt}, v{rs[0]}, v{rs[1]}")
        else:
            A(f"v_max3_u32 v{vt}, v{rs[0]}, v{rs[1]}, v{rs[2]}")
            k = 3
            while k < len(rs):
                if k + 1 < len(rs):
                    A(f"v_max3_u32 v{vt}, v{vt}, v{rs[k]}, v{rs[k+1]}"); k += 2
                else:
                    A(f"v_max_u32 v{vt}, v{vt}, v{rs[k]}"); k += 1
        A(f"v_cmp_eq_u32 vcc, -1, v{vt}")
        A("s_and_b64 vcc, vcc, exec")
        A(f"s_cbranch_scc0 {l1}")
        A("s_mov_b64 exec, vcc")
        if sleep_poll: A(f"s_sleep {sleep_poll}")
        A(f"s_sub_u32 {BUD}, {BUD}, 16")
        A(f"s_cbranch_scc0 {l0}")
        A(f"s_mov_b32 {BUD}, 0")
        A(f"{l1}:")
        A("s_mov_b64 exec, -1")

    def allred(op, v, t):
        for m in ("quad_perm:[1,0,3,2]", "quad_perm:[2,3,0,1]", "row_half_mirror", "row_mirror"):
            A(f"{op}_dpp v{v}, v{v}, v{v} {m} row_mask:0xf bank_mask:0xf")
        xrow(op, v, t)

    def xrow(op, v, t):
        A(f"v_mov_b32 v{t}, v{v}\nv_permlane16_swap_b32 v{v}, v{t}\n{op} v{v}, v{v}, v{t}")
        A(f"v_mov_b32 v{t}, v{v}\nv_permlane32_swap_b32 v{v}, v{t}\n{op} v{v}, v{v}, v{t}")

    def rnd(v, t=None):
        A(f"v_cvt_pk_bf16_f32 v{v}, v{v}, v{v}\nv_and_b32 v{v}, 0xffff0000, v{v}")

    def silu(v, t0, t1):
        A(f"""v_mul_f32 v{t0}, 0xbfb8aa3b, v{v}
        v_exp_f32 v{t0}, v{t0}
        v_add_f32 v{t0}, 1.0, v{t0}
        v_rcp_f32 v{t1}, v{t0}
        v_mul_f32 v{v}, v{v}, v{t1}""")

    A(f"{KN}:")
    A("s_cmp_ge_u32 s2, 256\ns_cbranch_scc1 L_end")
    A("s_load_dwordx16 s[4:19], s[0:1], 0\ns_load_dwordx8 s[20:27], s[0:1], 64")
    A("v_lshrrev_b32 v1, 6, v0\nv_and_b32 v0, 63, v0\nv_readfirstlane_b32 s3, v1")
    A(f"s_mov_b32 {BUD}, {budget}")
    A("""s_lshr_b32 s64, s2, 6
    s_and_b32 s65, s2, 63
    s_lshr_b32 s68, s65, 3
    s_and_b32 s72, s2, 1
    s_lshl_b32 s73, s72, 3
    s_or_b32 s68, s68, s73
    s_bfe_u32 s69, s2, 0x20001
    s_cmp_ge_u32 s3, 4
    s_cbranch_scc1 L_notL""")

    def more_idx():
        A("""s_lshr_b32 s66, s2, 4
        s_lshl_b32 s66, s66, 3
        s_and_b32 s73, s2, 7
        s_or_b32 s66, s66, s73
        s_bfe_u32 s67, s2, 0x10003
        s_bfe_u32 s70, s2, 0x30003
        s_lshl_b32 s71, s64, 2
        s_or_b32 s71, s71, s69""")

    SWQ, SGU, SK, SV, SDN, SWO = 28, 32, 36, 40, 44, 48
    A("s_setprio 3")
    stamp(0, 20)
    A("""v_lshrrev_b32 v2, 3, v0
    v_lshlrev_b32 v2, 13, v2
    v_and_b32 v3, 7, v0
    v_lshl_or_b32 v2, v3, 4, v2
    s_lshl_b32 s52, s69, 2
    s_add_u32 s52, s52, s3
    s_lshl_b32 s52, s52, 19
    s_lshl_b32 s73, s64, 11
    s_add_u32 s52, s52, s73
    s_lshl_b32 s73, s68, 7
    s_add_u32 s52, s52, s73
    s_lshl_b32 s57, s3, 15
    s_waitcnt lgkmcnt(0)""")
    srd(SWQ, 10, 1 << 23)
    st = dict(issued=0, notified=0)
    ends = []

    def notify(val):
        A(f"v_mov_b32 v9, {val}\nds_write_b32 v8, v9 offset:{F_LAND}")

    def pace(Dt, first_ok=0):
        P = st["issued"]
        if P >= Dt:
            A(f"s_waitcnt vmcnt({Dt-1})")
            while st["notified"] < len(ends) and ends[st["notified"]][0] <= P - Dt:
                notify(ends[st["notified"]][1]); st["notified"] += 1

    def l_setup_rest():
        more_idx()
        A("""s_cmp_eq_u32 s72, 0
        s_cselect_b32 s32, s16, s18
        s_cselect_b32 s33, s17, s19
        s_mov_b32 s34, 7340032
        s_mov_b32 s35, 0x20000""")
        srd(SK, 6, 1 << 26); srd(SV, 8, 1 << 26); srd(SDN, 20, 7340032); srd(SWO, 12, 1 << 23)
        A(f"""s_lshl_b32 s53, s71, 1
        s_lshr_b32 s73, s3, 1
        s_add_u32 s53, s53, s73
        s_mul_i32 s53, s53, {32*7168}
        s_mul_i32 s73, s70, 896
        s_add_u32 s53, s53, s73
        s_and_b32 s73, s3, 1
        s_mul_i32 s73, s73, 448
        s_add_u32 s53, s53, s73
        s_lshl_b32 s54, s65, 2
        s_add_u32 s54, s54, s3
        s_lshl_b32 s54, s54, 13
        s_lshl_b32 s73, s64, 24
        s_add_u32 s54, s54, s73
        s_lshl_b32 s73, s67, 2
        s_add_u32 s73, s73, s3
        s_lshl_b32 s73, s73, 8
        s_mul_i32 s55, s66, {28*2048}
        s_add_u32 s55, s55, s73
        s_lshl_b32 s56, s66, 16
        s_add_u32 s56, s56, s73
        v_lshlrev_b32 v3, 4, v0
        v_add_u32 v4, 6720, v3
        v_cmp_gt_u32 vcc, 28, v0
        v_cndmask_b32 v3, v4, v3, vcc
        v_lshrrev_b32 v10, 4, v0
        v_and_b32 v11, 15, v0
        v_lshlrev_b32 v12, 1, v10
        v_xor_b32 v12, v11, v12
        v_xor_b32 v13, 8, v12
        v_lshlrev_b32 v12, 4, v12
        v_lshlrev_b32 v13, 4, v13
        v_lshl_or_b32 v4, v10, 8, v12
        v_lshl_or_b32 v5, v10, 8, v13
        v_lshl_or_b32 v6, v10, 11, v12
        v_lshl_or_b32 v7, v10, 11, v13
        s_lshl_b32 s73, s3, 8
        s_add_u32 s73, s73, {MISC}
        v_lshl_add_u32 v8, v0, 2, s73""")

    for i in range(8):
        pace(D)
        A(f"s_add_u32 m0, s57, {i*1024}")
        A(f"buffer_load_dwordx4 v2, s[{SWQ}:{SWQ+3}], s52 offen nt lds")
        A(f"s_add_u32 s52, s52, 65536")
        st["issued"] += 1
        if i == D - 1:
            l_setup_rest()
            A("s_barrier")
            stamp(1, 20)
    ends.append((7, 1))
    A("s_lshr_b64 exec, -1, 8")
    for t in (1, 2):
        for i in range(8):
            pace(D)
            A(f"s_add_u32 m0, s57, {t*8192 + i*896}")
            A(f"buffer_load_dwordx4 v3, s[{SGU}:{SGU+3}], s53 offen nt lds")
            A(f"s_add_u32 s53, s53, 14336")
            st["issued"] += 1
        ends.append((st["issued"] - 1, t + 1))
    A("s_mov_b64 exec, -1")
    assert st["notified"] == 2 and D <= 7
    stamp(2, 20)
    A(f"s_mov_b32 s58, 3\ns_add_u32 s59, s57, {3*8192}\nds_read_b32 v10, v8 offset:{F_CONS}")

    def slot_check():
        ok = A.lab("ok")
        A(f"s_waitcnt vmcnt({D-1}) lgkmcnt(0)")
        A("v_readfirstlane_b32 s61, v10\ns_sub_u32 s75, s58, 3\ns_cmp_ge_i32 s61, s75")
        A(f"s_cbranch_scc1 {ok}")
        spin(8, F_CONS, "s75", 10)
        A(f"{ok}:")

    def next_tile():
        A(f"ds_read_b32 v10, v8 offset:{F_CONS}")
        A("s_add_u32 s58, s58, 1\ns_and_b32 s59, s58, 3\ns_lshl_b32 s59, s59, 13\ns_add_u32 s59, s59, s57")

    A("L_lloop:")
    for sr in (SK, SV):
        slot_check()
        for i in range(8):
            if i: A(f"s_waitcnt vmcnt({D-1})")
            if i == D - 1: notify("s58")
            if i == 0: A("s_mov_b32 m0, s59")
            if i == 4: A("s_add_u32 m0, s59, 4096\ns_add_u32 s74, s54, 4096")
            A(f"buffer_load_dwordx4 v{4+(i&1)}, s[{sr}:{sr+3}], {'s54' if i < 4 else 's74'} offen offset:{(i&3)*1024} nt lds")
        next_tile()
    A(f"s_add_u32 s54, s54, {2<<20}\ns_cmp_lt_u32 s58, 19\ns_cbranch_scc1 L_lloop")
    stamp(3, 20)
    st["issued"] = 1000; st["notified"] = 0
    ends[:] = [(999, 19)]
    for t, n, sr, so in ((19, 7, SDN, 55), (20, 8, SWO, 56)):
        ok = A.lab("ok")
        A("s_waitcnt lgkmcnt(0)")
        A(f"v_readfirstlane_b32 s61, v10\ns_cmp_ge_i32 s61, {t-3}\ns_cbranch_scc1 {ok}")
        spin(8, F_CONS, t - 3, 10)
        A(f"{ok}:")
        for i in range(n):
            pace(Dend if (st["issued"] - 1000) >= 0 else D)
            A(f"s_add_u32 m0, s57, {(t&3)*8192 + i*1024}")
            A(f"buffer_load_dwordx4 v{6+(i&1)}, s[{sr}:{sr+3}], s{so} offen nt lds")
            A(f"s_add_u32 s{so}, s{so}, 8192")
            st["issued"] += 1
        ends.append((st["issued"] - 1, t + 1))
        if t == 19: A(f"ds_read_b32 v10, v8 offset:{F_CONS}")
    while st["notified"] < len(ends):
        e, val = ends[st["notified"]]
        A(f"s_waitcnt vmcnt({st['issued'] - 1 - e})")
        notify(val); st["notified"] += 1
        stamp(4 + val - 19, 20)
    if stamps:
        srd(28, 26, 1 << 28)
        stamp_flush(20, 28)
    A("s_endpgm")

    A("L_notL:")
    more_idx()
    A("s_cmp_ge_u32 s3, 8\ns_cbranch_scc1 L_P")
    WS, XS, DB = 28, 32, 36
    stamp(0, 140)
    A(f"""s_sub_u32 s76, s3, 4
    v_lshrrev_b32 v104, 4, v0
    v_lshlrev_b32 v105, 5, v0
    s_lshl_b32 s40, s69, 2
    s_add_u32 s40, s40, s76
    s_lshl_b32 s40, s40, 7
    s_lshl_b32 s41, s71, 1
    s_lshr_b32 s73, s76, 1
    s_add_u32 s41, s41, s73
    s_lshl_b32 s41, s41, 6
    v_lshlrev_b32 v106, 4, v104
    v_lshlrev_b32 v107, 4, v0
    v_mov_b32 v108, -1
    v_mov_b32 v109, -1
    v_mov_b32 v110, -1
    v_mov_b32 v111, -1
    s_waitcnt lgkmcnt(0)""")
    srd(XS, 4, 2048)
    A(f"""buffer_load_dwordx4 v[64:67], v105, s[{XS}:{XS+3}], 0 offen
    buffer_load_dwordx4 v[68:71], v105, s[{XS}:{XS+3}], 0 offen offset:16
    buffer_load_dwordx4 v[128:131], v106, s[{XS}:{XS+3}], s40 offen
    buffer_load_dwordx4 v[132:135], v106, s[{XS}:{XS+3}], s40 offen offset:64
    buffer_load_dwordx4 v[136:139], v106, s[{XS}:{XS+3}], s41 offen""")
    srd(WS, 26, 1 << 28); srd(DB, 24, 256)
    A(f"""s_lshl_b32 s42, s66, 1
    s_add_u32 s42, s42, s67
    s_lshl_b32 s42, s42, 2
    s_add_u32 s42, s42, s76
    s_lshl_b32 s42, s42, 10
    s_add_u32 s42, s42, {OP}
    s_lshr_b32 s43, s76, 1
    s_lshl_b32 s43, s43, 19
    s_lshl_b32 s73, s2, 1
    s_and_b32 s74, s76, 1
    s_add_u32 s73, s73, s74
    s_lshl_b32 s73, s73, 10
    s_add_u32 s43, s43, s73
    s_add_u32 s43, s43, {FI}
    buffer_store_dwordx4 v[108:111], v107, s[{WS}:{WS+3}], s42 offen sc1
    buffer_store_dwordx4 v[108:111], v107, s[{WS}:{WS+3}], s43 offen sc1
    s_lshl_b32 s44, s2, 6
    s_add_u32 s44, s44, {ML}
    s_lshl_b32 s73, s76, 4
    s_add_u32 s44, s44, s73
    s_lshl_b32 s45, s70, 4
    s_add_u32 s45, s45, s71
    s_lshl_b32 s45, s45, 1
    s_add_u32 s45, s45, s72
    s_lshl_b32 s45, s45, 2
    s_add_u32 s45, s45, {HF}
    v_mov_b32 v112, 0
    s_mov_b64 exec, 1
    buffer_store_dwordx4 v[108:111], v112, s[{WS}:{WS+3}], s44 offen sc1
    buffer_store_dword v112, v112, s[{WS}:{WS+3}], s45 offen sc1
    s_mov_b64 exec, -1
    s_barrier""")
    A(f"""s_lshl_b32 s46, s76, 15
    s_lshl_b32 s73, s76, 8
    s_add_u32 s73, s73, {MISC}
    v_lshl_add_u32 v1, v0, 2, s73
    v_mov_b32 v2, {MISC}
    v_and_b32 v113, 15, v0
    v_and_b32 v114, 7, v0
    v_lshlrev_b32 v114, 1, v114
    v_lshlrev_b32 v115, 8, v113
    s_add_u32 s73, s46, {3*8192}
    v_add_u32 v115, s73, v115""")
    for jj in range(4):
        A(f"v_add_u32 v116, {4*jj}, v104\nv_xor_b32 v116, v116, v114\nv_lshl_add_u32 v{4+jj}, v116, 4, v115")
    A(f"""v_lshrrev_b32 v116, 2, v0
    v_and_b32 v117, 7, v116
    v_and_b32 v118, 3, v0
    v_lshlrev_b32 v118, 3, v118
    v_lshl_add_u32 v116, v116, 8, v118
    v_add_u32 v116, s46, v116""")
    for b in range(8):
        A(f"v_xor_b32 v119, {b}, v117\nv_lshl_add_u32 v{8+b}, v119, 5, v116")
    A(f"""v_bfe_u32 v119, v0, 2, 2
    v_lshl_add_u32 v122, v104, 3, v119
    v_lshl_add_u32 v122, v122, 7, v118
    v_add_u32 v122, s46, v122
    v_and_b32 v123, 1, v104
    v_lshl_add_u32 v123, v123, 3, v119
    v_mul_u32_u24 v123, 448, v123
    v_lshrrev_b32 v119, 5, v0
    v_lshl_add_u32 v123, v119, 13, v123
    s_add_u32 s73, s46, 8192
    v_add3_u32 v123, v123, v118, s73""")
    A("s_waitcnt vmcnt(7)")
    for i in range(8):
        A(f"v_lshlrev_b32 v{72+2*i}, 16, v{64+i}\nv_and_b32 v{73+2*i}, 0xffff0000, v{64+i}")
    A("v_add_f32 v64, v72, v73\nv_add_f32 v65, v74, v75")
    for i in range(2, 8):
        A(f"v_add_f32 v{64+(i&1)}, v{64+(i&1)}, v{72+2*i}\nv_add_f32 v{64+(i&1)}, v{64+(i&1)}, v{73+2*i}") if False else None
    for i in range(4, 16):
        A(f"v_add_f32 v{64+(i&1)}, v{64+(i&1)}, v{72+i}")
    A("v_add_f32 v64, v64, v65")
    allred("v_add_f32", 64, 65)
    A("v_mul_f32 v64, 0x3a800000, v64")
    for i in range(16):
        A(f"v_sub_f32 v{72+i}, v{72+i}, v64")
    A("v_mul_f32 v66, v72, v72\nv_mul_f32 v67, v73, v73")
    for i in range(2, 16):
        A(f"v_fmac_f32 v{66+(i&1)}, v{72+i}, v{72+i}")
    A("v_add_f32 v66, v66, v67")
    allred("v_add_f32", 66, 67)
    A("v_mul_f32 v66, 0x3a800000, v66")
    rnd(64); rnd(66)
    A(f"v_add_f32 v66, {EPS:#x}, v66")
    rnd(66)
    A("v_sqrt_f32 v66, v66")
    rnd(66)
    A("v_rcp_f32 v67, v66\ns_waitcnt vmcnt(4)")
    for i in range(12):
        x = 128 + i
        A(f"""v_lshlrev_b32 v72, 16, v{x}
        v_and_b32 v73, 0xffff0000, v{x}
        v_sub_f32 v72, v72, v64
        v_sub_f32 v73, v73, v64
        v_cvt_pk_bf16_f32 v73, v72, v73
        v_lshlrev_b32 v72, 16, v73
        v_and_b32 v73, 0xffff0000, v73
        v_mul_f32 v74, v72, v67
        v_mul_f32 v75, v73, v67
        v_fma_f32 v72, -v74, v66, v72
        v_fma_f32 v73, -v75, v66, v73
        v_fmac_f32 v74, v72, v67
        v_fmac_f32 v75, v73, v67
        v_cvt_pk_bf16_f32 v{x}, v74, v75""")
    stamp(1, 140)

    def release(val):
        A(f"v_mov_b32 v3, {val}\nds_write_b32 v1, v3 offset:{F_CONS}")

    def cnt_add(off):
        A(f"s_mov_b64 exec, 1\nds_add_u32 v2, v124 offset:{off}\ns_mov_b64 exec, -1")

    def cnt_last(off, skip):
        A(f"s_mov_b64 exec, 1\nds_add_rtn_u32 v3, v2, v124 offset:{off}\ns_waitcnt lgkmcnt(0)")
        A(f"v_readfirstlane_b32 s61, v3\ns_cmp_eq_u32 s61, 3\ns_cbranch_scc0 {skip}")

    def tr_mfma(addr, nblk, blkstep, second, dreg, breg, frag0=64, acc=False, addr_per_blk=False, extra_off=0, rel=None):
        def rd(b):
            a = addr + b if addr_per_blk else addr
            o = extra_off + (0 if addr_per_blk else b * blkstep)
            f = frag0 + 4 * (b % 8)
            A(f"ds_read_b64_tr_b16 v[{f}:{f+1}], v{a} offset:{o}")
            A(f"ds_read_b64_tr_b16 v[{f+2}:{f+3}], v{a} offset:{o+second}")
        issued = min(7, nblk)
        for b in range(issued): rd(b)
        for b in range(nblk):
            A(f"s_waitcnt lgkmcnt({2*(issued-b-1)})")
            if rel is not None and b == nblk - 1: release(rel)
            f = frag0 + 4 * (b % 8)
            d = dreg(b)
            A(f"v_mfma_f32_16x16x32_bf16 v[{d}:{d+3}], v[{f}:{f+3}], v[{breg}:{breg+3}], {'v[%d:%d]' % (d, d+3) if acc else '0'}")
            if issued < nblk:
                rd(issued); issued += 1

    A("v_mov_b32 v124, 1")
    spin(1, F_LAND, 1, 3)
    stamp(2, 140)
    tr_mfma(122, 4, 32, 512, lambda b: 32 + 4*b, 128, frag0=64)
    tr_mfma(122, 4, 32, 512, lambda b: 32 + 4*b, 132, frag0=80, acc=True, extra_off=4096, rel=1)
    A(f"""s_lshl_b32 s73, s76, 8
    s_add_u32 s73, s73, {MISC + QRED}
    v_add_u32 v112, s73, v106""")
    execmask(*N0)
    for b in range(4):
        A(f"ds_write_b128 v112, v[{32+4*b}:{35+4*b}] offset:{b*64}")
    A("s_waitcnt vmcnt(0)")
    cnt_last(C_A, "L_c_notlastA")
    A(f"""s_mov_b32 exec_lo, 0xffff
    v_add_u32 v112, {MISC + QRED}, v107""")
    for k in range(4):
        A(f"ds_read_b128 v[{32+4*k}:{35+4*k}], v112 offset:{k*256}")
    A(f"""s_lshl_b32 s47, s64, 2
    s_add_u32 s47, s47, s69
    s_lshl_b32 s47, s47, 4
    s_add_u32 s47, s47, s68
    s_lshl_b32 s47, s47, 8
    s_lshl_b32 s48, s64, 6
    s_waitcnt lgkmcnt(0)""")
    for r in range(4):
        A(f"v_add_f32 v{32+r}, v{32+r}, v{36+r}\nv_add_f32 v{40+r}, v{40+r}, v{44+r}")
    for r in range(4):
        A(f"v_add_f32 v{32+r}, v{32+r}, v{40+r}")
    A(f"""buffer_store_dwordx4 v[32:35], v107, s[{WS}:{WS+3}], s47 offen offset:{QP} sc1
    v_mov_b32 v112, 0
    s_mov_b64 exec, 1
    s_waitcnt vmcnt(0)
    buffer_atomic_add v124, v112, s[{DB}:{DB+3}], s48 offen sc1
    ds_write_b32 v2, v124 offset:{C_ST1}
    L_c_notlastA:
    s_mov_b64 exec, -1""")
    stamp(3, 140)
    spin(1, F_LAND, 3, 3)
    stamp(4, 140)
    gu_d = lambda b: 32 + 4*b if b < 8 else 96 + 4*(b - 8)
    tr_mfma(123, 14, 32, 1792, gu_d, 136, rel=3)
    A(f"""s_lshl_b32 s47, s72, 4
    s_add_u32 s47, s47, s71
    s_lshl_b32 s47, s47, 1
    s_lshr_b32 s73, s76, 1
    s_add_u32 s47, s47, s73
    s_mul_i32 s47, s47, 14336
    s_lshl_b32 s73, s70, 1
    s_and_b32 s74, s76, 1
    s_add_u32 s73, s73, s74
    s_mul_i32 s73, s73, 896
    s_add_u32 s47, s47, s73
    s_add_u32 s47, s47, {HP}
    v_lshrrev_b32 v125, 4, v0
    v_lshlrev_b32 v125, 4, v125""")
    execmask(*N0)
    for b in range(14):
        d = gu_d(b)
        A(f"buffer_store_dwordx4 v[{d}:{d+3}], v125, s[{WS}:{WS+3}], s47 offen offset:{b*64} sc1")
    execmask(*FULL)
    stamp(5, 140)
    A(f"""s_lshl_b32 s47, s64, 4
    s_add_u32 s47, s47, s76
    s_lshl_b32 s47, s47, 10
    s_add_u32 s48, s47, 8192
    v_lshlrev_b32 v126, 4, v0
    v_add_u32 v127, 4096, v126""")
    spin(2, C_QGO, 1, 3)
    stamp(6, 140)
    A(f"""buffer_load_dwordx4 v[64:67], v126, s[{WS}:{WS+3}], s47 offen offset:{QP} sc1
    buffer_load_dwordx4 v[68:71], v127, s[{WS}:{WS+3}], s47 offen offset:{QP} sc1
    buffer_load_dwordx4 v[72:75], v126, s[{WS}:{WS+3}], s48 offen offset:{QP} sc1
    buffer_load_dwordx4 v[76:79], v127, s[{WS}:{WS+3}], s48 offen offset:{QP} sc1
    s_lshl_b32 s73, s76, 9
    s_add_u32 s73, s73, {MISC + QBUF}
    v_lshl_add_u32 v112, v0, 3, s73
    v_and_b32 v113, 7, v0
    v_lshl_add_u32 v113, v113, 8, v125
    v_add_u32 v113, {MISC + QBUF}, v113""")
    for r in range(32):
        A(f"v_mov_b32 v{32+r}, 0")
    A("v_mov_b32 v120, 0xff800000\nv_mov_b32 v121, 0\ns_waitcnt vmcnt(0)")
    for r in range(4):
        A(f"v_add_f32 v{64+r}, v{64+r}, v{68+r}\nv_add_f32 v{72+r}, v{72+r}, v{76+r}")
    for r in range(4):
        A(f"v_add_f32 v{64+r}, v{64+r}, v{72+r}")
    A("v_cvt_pk_bf16_f32 v64, v64, v65\nv_cvt_pk_bf16_f32 v65, v66, v67\nds_write_b64 v112, v[64:65]")
    cnt_add(C_Q)
    cnt_last(C_B, "L_c_notlastB")
    A(f"""v_mov_b32 v112, 0
    buffer_store_dword v124, v112, s[{WS}:{WS+3}], s45 offen sc1
    L_c_notlastB:
    s_mov_b64 exec, -1""")
    spin(2, C_Q, 4, 3)
    for jj in range(4):
        A(f"ds_read_b128 v[{16+4*jj}:{19+4*jj}], v113 offset:{jj*64}")
    A(f"s_mov_b32 s49, 4\ns_mov_b32 s50, {LOG2E:#x}\ns_mov_b32 s51, {SCALE:#x}")
    stamp(7, 140)
    A("L_cloop:")
    spin(1, F_LAND, "s49", 3)
    for jj in range(4):
        for sub in range(2):
            f = 64 + 4*(2*jj + sub)
            A(f"ds_read_b128 v[{f}:{f+3}], v{4+jj} offset:{sub*4096}")
    for jj in range(4):
        for sub in range(2):
            k = 2*jj + sub
            f = 64 + 4*k; d = 96 + 4*sub
            A(f"s_waitcnt lgkmcnt({7-k})")
            if k == 7: release("s49")
            A(f"v_mfma_f32_16x16x32_bf16 v[{d}:{d+3}], v[{f}:{f+3}], v[{16+4*jj}:{19+4*jj}], {'0' if jj == 0 else 'v[%d:%d]' % (d, d+3)}")
    for jj in range(4):
        A(f"v_xor_b32 v{4+jj}, 0x4000, v{4+jj}")
    A("s_add_u32 s49, s49, 1")
    for rep in range(2):
        for i in range(4):
            A(f"v_cvt_pk_bf16_f32 v{104+i}, v{96+2*i}, v{97+2*i}")
        for i in range(4):
            A(f"v_lshlrev_b32 v{96+2*i}, 16, v{104+i}\nv_and_b32 v{97+2*i}, 0xffff0000, v{104+i}")
        if rep == 0:
            for i in range(8):
                A(f"v_mul_f32 v{96+i}, s51, v{96+i}")
    A("""v_max3_f32 v108, v96, v97, v98
    v_max3_f32 v109, v99, v100, v101
    v_max3_f32 v108, v108, v102, v103
    v_max3_f32 v108, v108, v109, v120""")
    xrow("v_max_f32", 108, 109)
    A("""v_sub_f32 v110, v120, v108
    v_mul_f32 v109, s50, v108
    v_mul_f32 v110, s50, v110
    v_cmp_neq_f32 vcc, v120, v108
    v_exp_f32 v110, v110
    v_mov_b32 v120, v108""")
    for i in range(8):
        A(f"v_fma_f32 v{96+i}, v{96+i}, s50, -v109")
    for i in range(8):
        A(f"v_exp_f32 v{96+i}, v{96+i}")
    A("v_mul_f32 v121, v121, v110")
    for i in range(4):
        A(f"v_cvt_pk_bf16_f32 v{104+i}, v{96+2*i}, v{97+2*i}")
    A("""v_add_f32 v96, v96, v97
    v_add_f32 v98, v98, v99
    v_add_f32 v100, v100, v101
    v_add_f32 v102, v102, v103
    v_add_f32 v96, v96, v98
    v_add_f32 v100, v100, v102
    v_add_f32 v96, v96, v100
    v_add_f32 v121, v121, v96
    s_cbranch_vccz L_c_noresc""")
    for r in range(32):
        A(f"v_mul_f32 v{32+r}, v{32+r}, v110")
    A("L_c_noresc:")
    A("s_cmp_eq_u32 s49, 19\ns_cbranch_scc1 L_c_last")
    spin(1, F_LAND, "s49", 3)
    tr_mfma(8, 8, 0, 4096, lambda b: 32 + 4*b, 104, acc=True, addr_per_blk=True, rel="s49")
    for b in range(8):
        A(f"v_xor_b32 v{8+b}, 0x4000, v{8+b}")
    A("s_add_u32 s49, s49, 1\ns_branch L_cloop")
    A("L_c_last:")
    stamp(8, 140)
    xrow("v_add_f32", 121, 109)
    A(f"""s_lshl_b32 s73, s76, 6
    s_add_u32 s73, s73, {MISC + MLX}
    v_lshl_add_u32 v112, v0, 3, s73
    s_mov_b32 exec_lo, 0xff
    s_mov_b32 exec_hi, 0
    ds_write_b64 v112, v[120:121]""")
    cnt_add(C_ML)
    A(f"""v_lshrrev_b32 v113, 5, v0
    s_lshl_b32 s73, s76, 1
    v_add_u32 v113, s73, v113
    v_lshlrev_b32 v112, 3, v113
    v_add_u32 v112, {MISC + MLX}, v112""")
    spin(2, C_ML, 4, 3)
    for k in range(4):
        A(f"ds_read_b64 v[{128+2*k}:{129+2*k}], v112 offset:{k*64}")
    A(f"""s_lshl_b32 s47, s64, 9
    s_add_u32 s47, s47, s65
    s_lshl_b32 s47, s47, 3
    s_add_u32 s47, s47, {ML}
    v_lshlrev_b32 v114, 9, v113
    s_waitcnt lgkmcnt(0)
    v_max3_f32 v136, v128, v130, v132
    v_max_f32 v136, v136, v134""")
    for k in range(4):
        A(f"v_sub_f32 v{128+2*k}, v{128+2*k}, v136\nv_mul_f32 v{128+2*k}, s50, v{128+2*k}")
    for k in range(4):
        A(f"v_exp_f32 v{128+2*k}, v{128+2*k}")
    A("""v_mul_f32 v137, v128, v129
    v_fmac_f32 v137, v130, v131
    v_fmac_f32 v137, v132, v133
    v_fmac_f32 v137, v134, v135
    v_min_u32 v136, -2, v136
    v_min_u32 v137, -2, v137
    s_mov_b32 exec_lo, 1
    s_mov_b32 exec_hi, 1""")
    A(f"buffer_store_dwordx2 v[136:137], v114, s[{WS}:{WS+3}], s47 offen sc1")
    execmask(*FULL)
    A(f"""v_and_b32 v115, 7, v0
    v_mul_u32_u24 v115, 528, v115
    s_add_u32 s73, s46, 8192
    v_add3_u32 v115, v115, v125, s73
    v_and_b32 v117, 31, v0
    v_mul_u32_u24 v116, 528, v113
    v_lshl_add_u32 v116, v117, 4, v116
    v_add_u32 v116, 8192, v116
    v_add_u32 v118, 0x10000, v116
    v_lshrrev_b32 v119, 3, v117
    v_lshl_add_u32 v119, v113, 2, v119
    v_and_b32 v117, 7, v0
    v_lshlrev_b32 v117, 4, v117
    v_lshl_add_u32 v117, v119, 13, v117
    s_lshl_b32 s47, s64, 11
    s_add_u32 s47, s47, s65
    s_lshl_b32 s47, s47, 7
    s_add_u32 s47, s47, {OP}""")
    spin(1, F_LAND, 19, 3)
    stamp(9, 140)
    tr_mfma(8, 8, 0, 4096, lambda b: 32 + 4*b, 104, acc=True, addr_per_blk=True)
    execmask(*NLT8)
    for b in range(8):
        A(f"ds_write_b128 v115, v[{32+4*b}:{35+4*b}] offset:{b*64}")
    cnt_add(C_O)
    spin(2, C_O, 4, 3)
    A("""ds_read_b128 v[64:67], v116
    ds_read_b128 v[68:71], v116 offset:32768
    ds_read_b128 v[72:75], v118
    ds_read_b128 v[76:79], v118 offset:32768
    s_waitcnt lgkmcnt(3)""")
    for r in range(4): A(f"v_mul_f32 v{64+r}, v{64+r}, v128")
    for k in range(1, 4):
        A(f"s_waitcnt lgkmcnt({3-k})")
        for r in range(4): A(f"v_fmac_f32 v{64+r}, v{64+4*k+r}, v{128+2*k}")
    for r in range(4): A(f"v_min_u32 v{64+r}, -2, v{64+r}")
    A(f"buffer_store_dwordx4 v[64:67], v117, s[{WS}:{WS+3}], s47 offen sc1")
    stamp(10, 140)

    def out_stores(base):
        A(f"""s_lshl_b32 s47, s67, 2
        s_add_u32 s47, s47, s76
        s_lshl_b32 s47, s47, 12
        s_add_u32 s47, s47, s66
        s_lshl_b32 s47, s47, 4
        s_add_u32 s47, s47, {base}""")
    def out_stores2():
        execmask(*N0)
        for b in range(8):
            d = 32 + 4*b
            for r in range(4): A(f"v_min_u32 v{d+r}, -2, v{d+r}")
            A(f"buffer_store_dwordx4 v[{d}:{d+3}], v119, s[{WS}:{WS+3}], s47 offen {ist}")
            if b < 7: A("s_add_u32 s47, s47, 8192")
        execmask(*FULL)

    A(f"""v_lshlrev_b32 v119, 7, v125
    v_add_u32 v112, {MISC + HBUF}, v125""")
    out_stores(FI)
    spin(2, C_HR, 1, 3)
    A("ds_read_b128 v[104:107], v112")
    spin(1, F_LAND, 20, 3)
    stamp(11, 140)
    tr_mfma(8, 8, 0, 4096, lambda b: 32 + 4*b, 104, addr_per_blk=True, extra_off=8192)
    out_stores2()
    cnt_add(C_PF)
    stamp(12, 140)
    A(f"""s_lshr_b32 s47, s66, 2
    s_lshl_b32 s47, s47, 9
    s_add_u32 s47, s47, {ML}
    v_lshlrev_b32 v112, 3, v0""")
    poll([f"buffer_load_dwordx2 v[128:129], v112, s[{WS}:{WS+3}], s47 offen sc1"], [128, 129], 130)
    A("v_mov_b32 v130, v128")
    allred("v_max_f32", 130, 131)
    A("v_sub_f32 v128, v128, v130\nv_mul_f32 v128, s50, v128\nv_exp_f32 v128, v128\nv_mul_f32 v129, v129, v128")
    allred("v_add_f32", 129, 131)
    A("""v_rcp_f32 v130, v129
    v_fma_f32 v131, -v129, v130, 1.0
    v_fmac_f32 v130, v131, v130
    v_mul_f32 v128, v128, v130""")
    stamp(13, 140)
    for b in range(8):
        A(f"v_xor_b32 v{8+b}, 0x4000, v{8+b}")
    A(f"""s_lshl_b32 s48, s66, 13
    s_lshl_b32 s73, s76, 5
    s_add_u32 s48, s48, s73
    s_add_u32 s48, s48, {OP}
    v_lshlrev_b32 v112, 7, v0
    v_lshrrev_b32 v113, 5, v0
    v_bfe_u32 v114, v0, 4, 1
    v_lshl_add_u32 v113, v114, 1, v113
    s_and_b32 s73, s76, 1
    s_lshl_b32 s73, s73, 5
    s_lshr_b32 s74, s76, 1
    s_lshl_b32 s74, s74, 3
    s_add_u32 s73, s73, s74
    s_add_u32 s73, s73, {MISC + OBUF}
    v_lshl_add_u32 v113, v113, 1, s73
    v_add_u32 v114, {MISC + OBUF}, v125""")
    out_stores(SI)
    poll([f"buffer_load_dwordx4 v[96:99], v112, s[{WS}:{WS+3}], s48 offen sc1",
          f"buffer_load_dwordx4 v[100:103], v112, s[{WS}:{WS+3}], s48 offen offset:16 sc1"], range(96, 104), 130)
    stamp(14, 140)
    for r in range(8): A(f"v_mul_f32 v{96+r}, v{96+r}, v128")
    for i in range(4): A(f"v_permlane32_swap_b32 v{96+2*i}, v{97+2*i}")
    for i in range(4): A(f"v_add_f32 v{96+2*i}, v{96+2*i}, v{97+2*i}")
    A("v_permlane16_swap_b32 v96, v98\nv_permlane16_swap_b32 v100, v102\nv_add_f32 v96, v96, v98\nv_add_f32 v100, v100, v102")
    for m in ("row_ror:8", "row_ror:4", "row_ror:2", "row_ror:1"):
        A(f"v_add_f32_dpp v96, v96, v96 {m} row_mask:0xf bank_mask:0xf\nv_add_f32_dpp v100, v100, v100 {m} row_mask:0xf bank_mask:0xf")
    A("v_cvt_pk_bf16_f32 v96, v96, v100")
    execmask(*N0)
    A("ds_write_b16 v113, v96\nds_write_b16_d16_hi v113, v96 offset:16")
    cnt_add(C_OB)
    spin(1, F_LAND, 21, 3)
    stamp(15, 140)
    for b in range(7):
        A(f"ds_read_b64_tr_b16 v[{64+4*b}:{65+4*b}], v{8+b}\nds_read_b64_tr_b16 v[{66+4*b}:{67+4*b}], v{8+b} offset:4096")
    A("s_waitcnt lgkmcnt(4)")
    A(f"ds_read_b64_tr_b16 v[92:93], v15\nds_read_b64_tr_b16 v[94:95], v15 offset:4096")
    spin(2, C_OB, 4, 3)
    A("ds_read_b128 v[104:107], v114\ns_waitcnt lgkmcnt(0)")
    for b in range(8):
        A(f"v_mfma_f32_16x16x32_bf16 v[{32+4*b}:{35+4*b}], v[{64+4*b}:{67+4*b}], v[104:107], 0")
    out_stores2()
    cnt_add(C_PS)
    stamp(16, 140)
    stamp_flush(140, WS)
    A("s_endpgm")

    A("L_P:")
    OUT = 40
    stamp(0, 60)
    A(f"""v_lshlrev_b32 v1, 4, v0
    v_add_u32 v3, {MISC}, v1
    v_mov_b32 v2, {MISC}
    v_mov_b32 v4, 0
    v_mov_b32 v5, 0
    v_mov_b32 v6, 0
    v_mov_b32 v7, 0
    ds_write_b128 v3, v[4:7]
    ds_write_b128 v3, v[4:7] offset:1024
    ds_write_b128 v3, v[4:7] offset:2048
    s_waitcnt lgkmcnt(0)
    s_barrier""")
    srd(WS, 26, 1 << 28); srd(XS, 4, 2048); srd(DB, 24, 256); srd(OUT, 22, 2048)
    A(f"""v_lshrrev_b32 v8, 5, v0
    v_bfe_u32 v9, v0, 4, 1
    v_lshl_add_u32 v8, v9, 1, v8
    v_lshlrev_b32 v8, 1, v8
    s_lshl_b32 s44, s2, 3
    buffer_load_ushort v9, v8, s[{XS}:{XS+3}], s44 offen
    v_mov_b32 v10, 1
    v_lshlrev_b32 v11, 6, v0""")
    spin(2, C_ST1, 1, 3)
    stamp(1, 60)
    A(f"""s_mov_b64 exec, 15
    L_p_st1:
    buffer_load_dword v12, v11, s[{DB}:{DB+3}], 0 offen sc1
    s_waitcnt vmcnt(0)
    v_cmp_le_u32 vcc, 64, v12
    s_bitcmp1_b32 vcc_lo, s64
    s_cbranch_scc0 L_p_st1b
    ds_write_b32 v2, v10 offset:{C_QGO}
    L_p_st1b:
    s_cmp_eq_u32 vcc_lo, 15
    s_cbranch_scc1 L_p_st1c""")
    if sleep_poll: A(f"s_sleep {sleep_poll}")
    A(f"""s_sub_u32 {BUD}, {BUD}, 16
    s_cbranch_scc0 L_p_st1
    s_mov_b32 {BUD}, 0
    ds_write_b32 v2, v10 offset:{C_QGO}
    L_p_st1c:""")
    stamp(2, 60)
    A(f"""s_lshr_b32 s45, s66, 4
    s_lshl_b32 s45, s45, 7
    s_add_u32 s45, s45, {HF}
    s_mov_b32 exec_lo, -1
    s_mov_b32 exec_hi, 0
    v_lshlrev_b32 v11, 2, v0
    L_p_hf:
    buffer_load_dword v12, v11, s[{WS}:{WS+3}], s45 offen sc1
    s_waitcnt vmcnt(0)
    v_cmp_eq_u32 vcc, 1, v12
    s_cmp_eq_u32 vcc_lo, -1
    s_cbranch_scc1 L_p_hf2
    s_sleep 8
    s_sub_u32 {BUD}, {BUD}, 16
    s_cbranch_scc0 L_p_hf
    s_mov_b32 {BUD}, 0
    L_p_hf2:
    s_mov_b64 exec, -1""")
    stamp(3, 60)
    A(f"""v_lshrrev_b32 v11, 3, v0
    v_mul_u32_u24 v11, {8*14336}, v11
    v_and_b32 v12, 7, v0
    v_lshl_add_u32 v11, v12, 4, v11
    s_mul_i32 s45, s66, 112
    s_add_u32 s45, s45, {HP}""")
    for i in range(8):
        A(f"buffer_load_dwordx4 v[{16+4*i}:{19+4*i}], v11, s[{WS}:{WS+3}], s45 offen sc1")
        if i < 7: A("s_add_u32 s45, s45, 14336")
    for i in range(1, 8):
        A(f"s_waitcnt vmcnt({7-i})")
        for r in range(4): A(f"v_add_f32 v{16+r}, v{16+r}, v{16+4*i+r}")
    for r in range(4): A(f"v_add_f32_dpp v{16+r}, v{16+r}, v{16+r} row_ror:8 row_mask:0xf bank_mask:0xf")
    for r in range(4): A(f"v_mov_b32 v{20+r}, v{16+r}")
    for r in range(4): A(f"v_permlane16_swap_b32 v{16+r}, v{20+r}")
    for r in range(4): A(f"v_add_f32 v{16+r}, v{16+r}, v{20+r}")
    for r in range(4): rnd(16 + r)
    for r in range(4): A(f"v_mov_b32 v{20+r}, v{16+r}")
    for r in range(4): A(f"v_permlane32_swap_b32 v{16+r}, v{20+r}")
    for r in range(4):
        silu(16 + r, 24, 25); rnd(16 + r)
        A(f"v_mul_f32 v{16+r}, v{16+r}, v{20+r}")
    A(f"""v_cvt_pk_bf16_f32 v16, v16, v17
    v_cvt_pk_bf16_f32 v17, v18, v19
    v_cmp_eq_u32 vcc, 7, v12
    v_cndmask_b32 v16, v16, v4, vcc
    v_cndmask_b32 v17, v17, v4, vcc
    v_and_b32 v13, 3, v0
    v_lshlrev_b32 v13, 4, v13
    v_lshrrev_b32 v12, 2, v12
    v_lshl_add_u32 v13, v12, 3, v13
    v_add_u32 v13, {MISC + HBUF}, v13
    s_mov_b32 exec_lo, 0xff
    s_mov_b32 exec_hi, 0
    ds_write_b64 v13, v[16:17]
    ds_write_b32 v2, v10 offset:{C_HR}
    s_mov_b64 exec, -1
    s_lshl_b32 s45, s2, 11
    s_add_u32 s46, s45, {SI}
    s_add_u32 s45, s45, {FI}""")
    stamp(4, 60)

    def inbox(so):
        poll([f"buffer_load_dwordx4 v[16:19], v1, s[{WS}:{WS+3}], {so} offen {ild}",
              f"buffer_load_dwordx4 v[20:23], v1, s[{WS}:{WS+3}], {so} offen offset:1024 {ild}"], range(16, 24), 24)
        for r in range(4): A(f"v_add_f32 v{16+r}, v{16+r}, v{20+r}")
        A("""v_permlane32_swap_b32 v16, v17
        v_permlane32_swap_b32 v18, v19
        v_add_f32 v16, v16, v17
        v_add_f32 v18, v18, v19
        v_permlane16_swap_b32 v16, v18
        v_add_f32 v16, v16, v18""")
        for m in ("row_ror:8", "row_ror:4", "row_ror:2", "row_ror:1"):
            A(f"v_add_f32_dpp v16, v16, v16 {m} row_mask:0xf bank_mask:0xf")
        rnd(16)

    spin(2, C_PF, 4, 3)
    stamp(5, 60)
    inbox("s45")
    silu(16, 24, 25); rnd(16)
    A("v_mov_b32 v14, v16\nv_lshlrev_b32 v9, 16, v9")
    stamp(6, 60)
    spin(2, C_PS, 4, 3)
    stamp(7, 60)
    inbox("s46")
    A("v_mul_f32 v16, v16, v14")
    rnd(16)
    A("v_add_f32 v16, v16, v9\nv_cvt_pk_bf16_f32 v16, v16, v16")
    execmask(*N0)
    A(f"buffer_store_short v16, v8, s[{OUT}:{OUT+3}], s44 offen sc1")
    stamp(8, 60)
    stamp_flush(60, WS)
    A("L_end:\ns_endpgm")

    bad = A.verify_edges()
    assert not bad, bad
    nv = 144
    txt = HEAD + f"; @launch grid=(256,1,1) block=(576,1,1) lds={LDS_BYTES}\n"
    txt += f'.amdgcn_target "amdgcn-amd-amdhsa--gfx950"\n.text\n.globl {KN}\n.p2align 8\n.type {KN},@function\n'
    txt += A.text()
    txt += f""".section .rodata,"a"
.p2align 6
.amdhsa_kernel {KN}
  .amdhsa_next_free_vgpr {nv}
  .amdhsa_next_free_sgpr 96
  .amdhsa_accum_offset {nv}
  .amdhsa_group_segment_fixed_size 0
  .amdhsa_kernarg_size 96
  .amdhsa_user_sgpr_count 2
  .amdhsa_user_sgpr_kernarg_segment_ptr 1
  .amdhsa_system_sgpr_workgroup_id_x 1
  .amdhsa_float_denorm_mode_32 3
.end_amdhsa_kernel
"""
    return txt


if __name__ == "__main__":
    kw = eval("dict(%s)" % (sys.argv[2] if len(sys.argv) > 2 else ""))
    open(sys.argv[1], "w").write(gen(**kw))
```

```python
import sys
sys.path.insert(0, "work")
from asmlib import Asm

KN = "recurrent_scan__gqa_block_cached__swiglu_ffn__decode_kernel"
HEAD = open("recurrent_scan__gqa_block_cached__swiglu_ffn__decode.s.ref").read().split("; Override launch")[0] \
    if __import__("os").path.exists("recurrent_scan__gqa_block_cached__swiglu_ffn__decode.s.ref") else ""

QP, HP, ML, GO, OP, FI, SI = 0x0, 0x10000, 0xF0000, 0xF8000, 0x100000, 0x200000, 0x280000
HF = GO
STAMP_OFF = 128 << 20
MISC = 131072
F_LAND, F_CONS = 0, 1024
C_A, C_ST1, C_QGO, C_B, C_Q, C_ML, C_O, C_OB, C_HR, C_PF, C_PS = [2048 + 4 * i for i in range(11)]
QRED, QBUF, MLX, HBUF, OBUF = 3072, 4096, 6144, 6400, 6464
LDS_BYTES = MISC + 8192
LOG2E = 0x3FB8AA3B
SCALE = 0x3DB504F3
EPS = 0x3727C5AC


def gen(D=5, Dend=8, stamps=False, sleep_poll=2, budget=1 << 20, ild='sc1', ist='sc1', asc='sc0', noclear=False, gld='sc1', gst='sc1', sleep_go=2):
    A = Asm()
    BUD = "s60"

    def stamp(k, vreg):
        if stamps:
            A(f"s_memrealtime s[62:63]\ns_waitcnt lgkmcnt(0)\nv_writelane_b32 v{vreg}, s62, {k}")

    def stamp_flush(vreg, srd):
        if stamps:
            A(f"""s_mov_b64 exec, -1
            s_mul_i32 s62, s2, 9
            s_add_u32 s62, s62, s3
            s_lshl_b32 s62, s62, 8
            s_add_u32 s62, s62, {STAMP_OFF}
            v_lshlrev_b32 v0, 2, v0
            buffer_store_dword v{vreg}, v0, s[{srd}:{srd+3}], s62 offen""")

    def spin(vaddr, off, needv, vt, st="s61", pre=False):
        l0, l1, l2 = A.lab("sp"), A.lab("sp"), A.lab("sp")
        if pre:
            A(f"s_branch {l2}") if False else None
        A(f"{l0}:")
        A(f"ds_read_b32 v{vt}, v{vaddr} offset:{off}")
        A(f"s_waitcnt lgkmcnt(0)")
        A(f"v_readfirstlane_b32 {st}, v{vt}")
        A(f"s_cmp_ge_i32 {st}, {needv}")
        A(f"s_cbranch_scc1 {l1}")
        A(f"s_sub_u32 {BUD}, {BUD}, 1")
        A(f"s_cbranch_scc0 {l0}")
        A(f"s_mov_b32 {BUD}, 0")
        A(f"{l1}:")

    def srd(base, ptr, size):
        A(f"s_mov_b32 s{base}, s{ptr}\ns_mov_b32 s{base+1}, s{ptr+1}\ns_mov_b32 s{base+2}, {size}\ns_mov_b32 s{base+3}, 0x20000")

    def execmask(lo, hi):
        if lo == 0xFFFFFFFF and hi == 0xFFFFFFFF:
            A("s_mov_b64 exec, -1")
        elif hi == 0 and lo <= 64:
            A(f"s_mov_b64 exec, {lo}")
        else:
            A(f"s_mov_b32 exec_lo, {lo:#x}\ns_mov_b32 exec_hi, {hi:#x}")
    FULL = (0xFFFFFFFF, 0xFFFFFFFF)
    N0 = (0x00010001, 0x00010001)
    NLT8 = (0x00FF00FF, 0x00FF00FF)

    def poll(loads, regs, vt):
        l0, l1 = A.lab("pl"), A.lab("pl")
        A(f"{l0}:")
        for t in loads: A(t)
        A("s_waitcnt vmcnt(0)")
        rs = list(regs)
        if len(rs) == 2:
            A(f"v_max_u32 v{vt}, v{rs[0]}, v{rs[1]}")
        else:
            A(f"v_max3_u32 v{vt}, v{rs[0]}, v{rs[1]}, v{rs[2]}")
            k = 3
            while k < len(rs):
                if k + 1 < len(rs):
                    A(f"v_max3_u32 v{vt}, v{vt}, v{rs[k]}, v{rs[k+1]}"); k += 2
                else:
                    A(f"v_max_u32 v{vt}, v{vt}, v{rs[k]}"); k += 1
        A(f"v_cmp_eq_u32 vcc, -1, v{vt}")
        A("s_and_b64 vcc, vcc, exec")
        A(f"s_cbranch_scc0 {l1}")
        A("s_mov_b64 exec, vcc")
        if sleep_poll: A(f"s_sleep {sleep_poll}")
        A(f"s_sub_u32 {BUD}, {BUD}, 16")
        A(f"s_cbranch_scc0 {l0}")
        A(f"s_mov_b32 {BUD}, 0")
        A(f"{l1}:")
        A("s_mov_b64 exec, -1")

    def allred(op, v, t):
        for m in ("quad_perm:[1,0,3,2]", "quad_perm:[2,3,0,1]", "row_half_mirror", "row_mirror"):
            A(f"{op}_dpp v{v}, v{v}, v{v} {m} row_mask:0xf bank_mask:0xf")
        xrow(op, v, t)

    def xrow(op, v, t):
        A(f"v_mov_b32 v{t}, v{v}\nv_permlane16_swap_b32 v{v}, v{t}\n{op} v{v}, v{v}, v{t}")
        A(f"v_mov_b32 v{t}, v{v}\nv_permlane32_swap_b32 v{v}, v{t}\n{op} v{v}, v{v}, v{t}")

    def rnd(v, t=None):
        A(f"v_cvt_pk_bf16_f32 v{v}, v{v}, v{v}\nv_and_b32 v{v}, 0xffff0000, v{v}")

    def silu(v, t0, t1):
        A(f"""v_mul_f32 v{t0}, 0xbfb8aa3b, v{v}
        v_exp_f32 v{t0}, v{t0}
        v_add_f32 v{t0}, 1.0, v{t0}
        v_rcp_f32 v{t1}, v{t0}
        v_mul_f32 v{v}, v{v}, v{t1}""")

    A(f"{KN}:")
    A("s_cmp_ge_u32 s2, 256\ns_cbranch_scc1 L_end")
    A("s_load_dwordx16 s[4:19], s[0:1], 0\ns_load_dwordx8 s[20:27], s[0:1], 64")
    A(f"v_lshlrev_b32 v2, 2, v0\nv_add_u32 v2, {MISC}, v2\nv_mov_b32 v3, 0\nds_write_b32 v2, v3")
    A("v_lshrrev_b32 v1, 6, v0\nv_and_b32 v0, 63, v0\nv_readfirstlane_b32 s3, v1")
    A(f"s_mov_b32 {BUD}, {budget}")
    A("""s_lshr_b32 s64, s2, 6
    s_and_b32 s65, s2, 63
    s_lshr_b32 s68, s65, 3
    s_and_b32 s72, s2, 1
    s_lshl_b32 s73, s72, 3
    s_or_b32 s68, s68, s73
    s_bfe_u32 s69, s2, 0x20001
    s_waitcnt lgkmcnt(0)
    s_barrier
    s_cmp_ge_u32 s3, 4
    s_cbranch_scc1 L_notL""")

    def more_idx():
        A("""s_lshr_b32 s66, s2, 4
        s_lshl_b32 s66, s66, 3
        s_and_b32 s73, s2, 7
        s_or_b32 s66, s66, s73
        s_bfe_u32 s67, s2, 0x10003
        s_bfe_u32 s70, s2, 0x30003
        s_lshl_b32 s71, s64, 2
        s_or_b32 s71, s71, s69""")

    SWQ, SGU, SK, SV, SDN, SWO = 28, 32, 36, 40, 44, 48
    A("s_setprio 3")
    stamp(0, 20)
    A("""v_lshrrev_b32 v2, 3, v0
    v_lshlrev_b32 v2, 13, v2
    v_and_b32 v3, 7, v0
    v_lshl_or_b32 v2, v3, 4, v2
    s_lshl_b32 s52, s69, 2
    s_add_u32 s52, s52, s3
    s_lshl_b32 s52, s52, 19
    s_lshl_b32 s73, s64, 11
    s_add_u32 s52, s52, s73
    s_lshl_b32 s73, s68, 7
    s_add_u32 s52, s52, s73
    s_lshl_b32 s57, s3, 15""")
    srd(SWQ, 10, 1 << 23)
    st = dict(issued=0, notified=0)
    ends = []

    def notify(val):
        A(f"v_mov_b32 v9, {val}\nds_write_b32 v8, v9 offset:{F_LAND}")

    def pace(Dt, first_ok=0):
        P = st["issued"]
        if P >= Dt:
            A(f"s_waitcnt vmcnt({Dt-1})")
            while st["notified"] < len(ends) and ends[st["notified"]][0] <= P - Dt:
                notify(ends[st["notified"]][1]); st["notified"] += 1

    def l_setup_rest():
        more_idx()
        A("""s_cmp_eq_u32 s72, 0
        s_cselect_b32 s32, s16, s18
        s_cselect_b32 s33, s17, s19
        s_mov_b32 s34, 7340032
        s_mov_b32 s35, 0x20000""")
        srd(SK, 6, 1 << 26); srd(SV, 8, 1 << 26); srd(SDN, 20, 7340032); srd(SWO, 12, 1 << 23)
        A(f"""s_lshl_b32 s53, s71, 1
        s_lshr_b32 s73, s3, 1
        s_add_u32 s53, s53, s73
        s_mul_i32 s53, s53, {32*7168}
        s_mul_i32 s73, s70, 896
        s_add_u32 s53, s53, s73
        s_and_b32 s73, s3, 1
        s_mul_i32 s73, s73, 448
        s_add_u32 s53, s53, s73
        s_lshl_b32 s54, s65, 2
        s_add_u32 s54, s54, s3
        s_lshl_b32 s54, s54, 13
        s_lshl_b32 s73, s64, 24
        s_add_u32 s54, s54, s73
        s_lshl_b32 s73, s67, 2
        s_add_u32 s73, s73, s3
        s_lshl_b32 s73, s73, 8
        s_mul_i32 s55, s66, {28*2048}
        s_add_u32 s55, s55, s73
        s_lshl_b32 s56, s66, 16
        s_add_u32 s56, s56, s73
        v_lshlrev_b32 v3, 4, v0
        v_add_u32 v4, 6720, v3
        v_cmp_gt_u32 vcc, 28, v0
        v_cndmask_b32 v3, v4, v3, vcc
        v_lshrrev_b32 v10, 4, v0
        v_and_b32 v11, 15, v0
        v_lshlrev_b32 v12, 1, v10
        v_xor_b32 v12, v11, v12
        v_xor_b32 v13, 8, v12
        v_lshlrev_b32 v12, 4, v12
        v_lshlrev_b32 v13, 4, v13
        v_lshl_or_b32 v4, v10, 8, v12
        v_lshl_or_b32 v5, v10, 8, v13
        v_lshl_or_b32 v6, v10, 11, v12
        v_lshl_or_b32 v7, v10, 11, v13
        s_lshl_b32 s73, s3, 8
        s_add_u32 s73, s73, {MISC}
        v_lshl_add_u32 v8, v0, 2, s73""")

    for i in range(8):
        pace(D)
        A(f"s_add_u32 m0, s57, {i*1024}")
        A(f"buffer_load_dwordx4 v2, s[{SWQ}:{SWQ+3}], s52 offen nt lds")
        A(f"s_add_u32 s52, s52, 65536")
        st["issued"] += 1
        if i == D - 1:
            l_setup_rest()
            stamp(1, 20)
    ends.append((7, 1))
    A("s_lshr_b64 exec, -1, 8")
    for t in (1, 2):
        for i in range(8):
            pace(D)
            A(f"s_add_u32 m0, s57, {t*8192 + i*896}")
            A(f"buffer_load_dwordx4 v3, s[{SGU}:{SGU+3}], s53 offen nt lds")
            A(f"s_add_u32 s53, s53, 14336")
            st["issued"] += 1
        ends.append((st["issued"] - 1, t + 1))
    A("s_mov_b64 exec, -1")
    assert st["notified"] == 2 and D <= 7
    stamp(2, 20)
    A(f"s_mov_b32 s58, 3\ns_add_u32 s59, s57, {3*8192}\nds_read_b32 v10, v8 offset:{F_CONS}")

    def slot_check():
        ok = A.lab("ok")
        A(f"s_waitcnt vmcnt({D-1}) lgkmcnt(0)")
        A("v_readfirstlane_b32 s61, v10\ns_sub_u32 s75, s58, 3\ns_cmp_ge_i32 s61, s75")
        A(f"s_cbranch_scc1 {ok}")
        spin(8, F_CONS, "s75", 10)
        A(f"{ok}:")

    def next_tile():
        A(f"ds_read_b32 v10, v8 offset:{F_CONS}")
        A("s_add_u32 s58, s58, 1\ns_and_b32 s59, s58, 3\ns_lshl_b32 s59, s59, 13\ns_add_u32 s59, s59, s57")

    A("L_lloop:")
    for sr in (SK, SV):
        slot_check()
        for i in range(8):
            if i: A(f"s_waitcnt vmcnt({D-1})")
            if i == D - 1: notify("s58")
            if i == 0: A("s_mov_b32 m0, s59")
            if i == 4: A("s_add_u32 m0, s59, 4096\ns_add_u32 s74, s54, 4096")
            A(f"buffer_load_dwordx4 v{4+(i&1)}, s[{sr}:{sr+3}], {'s54' if i < 4 else 's74'} offen offset:{(i&3)*1024} nt lds")
        next_tile()
    A(f"s_add_u32 s54, s54, {2<<20}\ns_cmp_lt_u32 s58, 19\ns_cbranch_scc1 L_lloop")
    stamp(3, 20)
    st["issued"] = 1000; st["notified"] = 0
    ends[:] = [(999, 19)]
    for t, n, sr, so in ((19, 7, SDN, 55), (20, 8, SWO, 56)):
        ok = A.lab("ok")
        A("s_waitcnt lgkmcnt(0)")
        A(f"v_readfirstlane_b32 s61, v10\ns_cmp_ge_i32 s61, {t-3}\ns_cbranch_scc1 {ok}")
        spin(8, F_CONS, t - 3, 10)
        A(f"{ok}:")
        for i in range(n):
            pace(Dend if (st["issued"] - 1000) >= 0 else D)
            A(f"s_add_u32 m0, s57, {(t&3)*8192 + i*1024}")
            A(f"buffer_load_dwordx4 v{6+(i&1)}, s[{sr}:{sr+3}], s{so} offen nt lds")
            A(f"s_add_u32 s{so}, s{so}, 8192")
            st["issued"] += 1
        ends.append((st["issued"] - 1, t + 1))
        if t == 19: A(f"ds_read_b32 v10, v8 offset:{F_CONS}")
    while st["notified"] < len(ends):
        e, val = ends[st["notified"]]
        A(f"s_waitcnt vmcnt({st['issued'] - 1 - e})")
        notify(val); st["notified"] += 1
        stamp(4 + val - 19, 20)
    if stamps:
        srd(28, 26, 1 << 28)
        stamp_flush(20, 28)
    A("s_endpgm")

    A("L_notL:")
    more_idx()
    A("s_cmp_ge_u32 s3, 8\ns_cbranch_scc1 L_P")
    WS, XS, DB = 28, 32, 36
    stamp(0, 140)
    A(f"""s_sub_u32 s76, s3, 4
    v_lshrrev_b32 v104, 4, v0
    v_lshlrev_b32 v105, 5, v0
    s_lshl_b32 s40, s69, 2
    s_add_u32 s40, s40, s76
    s_lshl_b32 s40, s40, 7
    s_lshl_b32 s41, s71, 1
    s_lshr_b32 s73, s76, 1
    s_add_u32 s41, s41, s73
    s_lshl_b32 s41, s41, 6
    v_lshlrev_b32 v106, 4, v104
    v_lshlrev_b32 v107, 4, v0
    v_mov_b32 v108, -1
    v_mov_b32 v109, -1
    v_mov_b32 v110, -1
    v_mov_b32 v111, -1""")
    srd(XS, 4, 2048)
    A(f"""buffer_load_dwordx4 v[64:67], v105, s[{XS}:{XS+3}], 0 offen
    buffer_load_dwordx4 v[68:71], v105, s[{XS}:{XS+3}], 0 offen offset:16
    buffer_load_dwordx4 v[128:131], v106, s[{XS}:{XS+3}], s40 offen
    buffer_load_dwordx4 v[132:135], v106, s[{XS}:{XS+3}], s40 offen offset:64
    buffer_load_dwordx4 v[136:139], v106, s[{XS}:{XS+3}], s41 offen""")
    srd(WS, 26, 1 << 28); srd(DB, 24, 256)
    A(f"""s_lshl_b32 s42, s66, 1
    s_add_u32 s42, s42, s67
    s_lshl_b32 s42, s42, 2
    s_add_u32 s42, s42, s76
    s_lshl_b32 s42, s42, 10
    s_add_u32 s42, s42, {OP}
    s_lshr_b32 s43, s76, 1
    s_lshl_b32 s43, s43, 19
    s_lshl_b32 s73, s2, 1
    s_and_b32 s74, s76, 1
    s_add_u32 s73, s73, s74
    s_lshl_b32 s73, s73, 10
    s_add_u32 s43, s43, s73
    s_add_u32 s43, s43, {FI}
    {'s_mov_b64 exec, 1' if noclear else ''}
    buffer_store_dwordx4 v[108:111], v107, s[{WS}:{WS+3}], s42 offen sc1
    buffer_store_dwordx4 v[108:111], v107, s[{WS}:{WS+3}], s43 offen sc1
    {'s_mov_b64 exec, -1' if noclear else ''}
    s_lshl_b32 s44, s2, 6
    s_add_u32 s44, s44, {ML}
    s_lshl_b32 s73, s76, 4
    s_add_u32 s44, s44, s73
    s_lshl_b32 s45, s2, 3
    s_add_u32 s45, s45, s76
    s_lshl_b32 s45, s45, 4
    s_add_u32 s45, s45, {GO}
    v_mov_b32 v112, 0
    s_mov_b64 exec, 1
    buffer_store_dwordx4 v[108:111], v112, s[{WS}:{WS+3}], s44 offen sc1
    buffer_store_dword v112, v112, s[{WS}:{WS+3}], s45 offen sc1
    s_mov_b64 exec, -1""")
    A(f"""s_lshl_b32 s46, s76, 15
    s_lshl_b32 s73, s76, 8
    s_add_u32 s73, s73, {MISC}
    v_lshl_add_u32 v1, v0, 2, s73
    v_mov_b32 v2, {MISC}
    v_and_b32 v113, 15, v0
    v_and_b32 v114, 7, v0
    v_lshlrev_b32 v114, 1, v114
    v_lshlrev_b32 v115, 8, v113
    s_add_u32 s73, s46, {3*8192}
    v_add_u32 v115, s73, v115""")
    for jj in range(4):
        A(f"v_add_u32 v116, {4*jj}, v104\nv_xor_b32 v116, v116, v114\nv_lshl_add_u32 v{4+jj}, v116, 4, v115")
    A(f"""v_lshrrev_b32 v116, 2, v0
    v_and_b32 v117, 7, v116
    v_and_b32 v118, 3, v0
    v_lshlrev_b32 v118, 3, v118
    v_lshl_add_u32 v116, v116, 8, v118
    v_add_u32 v116, s46, v116""")
    for b in range(8):
        A(f"v_xor_b32 v119, {b}, v117\nv_lshl_add_u32 v{8+b}, v119, 5, v116")
    A(f"""v_bfe_u32 v119, v0, 2, 2
    v_lshl_add_u32 v122, v104, 3, v119
    v_lshl_add_u32 v122, v122, 7, v118
    v_add_u32 v122, s46, v122
    v_and_b32 v123, 1, v104
    v_lshl_add_u32 v123, v123, 3, v119
    v_mul_u32_u24 v123, 448, v123
    v_lshrrev_b32 v119, 5, v0
    v_lshl_add_u32 v123, v119, 13, v123
    s_add_u32 s73, s46, 8192
    v_add3_u32 v123, v123, v118, s73""")
    stamp(17, 140)
    A("s_waitcnt vmcnt(7)")
    stamp(18, 140)
    for i in range(8):
        A(f"v_lshlrev_b32 v{72+2*i}, 16, v{64+i}\nv_and_b32 v{73+2*i}, 0xffff0000, v{64+i}")
    A("v_add_f32 v64, v72, v73\nv_add_f32 v65, v74, v75")
    for i in range(2, 8):
        A(f"v_add_f32 v{64+(i&1)}, v{64+(i&1)}, v{72+2*i}\nv_add_f32 v{64+(i&1)}, v{64+(i&1)}, v{73+2*i}") if False else None
    for i in range(4, 16):
        A(f"v_add_f32 v{64+(i&1)}, v{64+(i&1)}, v{72+i}")
    A("v_add_f32 v64, v64, v65")
    allred("v_add_f32", 64, 65)
    A("v_mul_f32 v64, 0x3a800000, v64")
    for i in range(16):
        A(f"v_sub_f32 v{72+i}, v{72+i}, v64")
    A("v_mul_f32 v66, v72, v72\nv_mul_f32 v67, v73, v73")
    for i in range(2, 16):
        A(f"v_fmac_f32 v{66+(i&1)}, v{72+i}, v{72+i}")
    A("v_add_f32 v66, v66, v67")
    allred("v_add_f32", 66, 67)
    A("v_mul_f32 v66, 0x3a800000, v66")
    rnd(64); rnd(66)
    A(f"v_add_f32 v66, {EPS:#x}, v66")
    rnd(66)
    A("v_sqrt_f32 v66, v66")
    rnd(66)
    A("v_rcp_f32 v67, v66\ns_waitcnt vmcnt(4)")
    for i in range(12):
        x = 128 + i
        A(f"""v_lshlrev_b32 v72, 16, v{x}
        v_and_b32 v73, 0xffff0000, v{x}
        v_sub_f32 v72, v72, v64
        v_sub_f32 v73, v73, v64
        v_cvt_pk_bf16_f32 v73, v72, v73
        v_lshlrev_b32 v72, 16, v73
        v_and_b32 v73, 0xffff0000, v73
        v_mul_f32 v74, v72, v67
        v_mul_f32 v75, v73, v67
        v_fma_f32 v72, -v74, v66, v72
        v_fma_f32 v73, -v75, v66, v73
        v_fmac_f32 v74, v72, v67
        v_fmac_f32 v75, v73, v67
        v_cvt_pk_bf16_f32 v{x}, v74, v75""")
    stamp(1, 140)

    def release(val):
        A(f"v_mov_b32 v3, {val}\nds_write_b32 v1, v3 offset:{F_CONS}")

    def cnt_add(off):
        A(f"s_mov_b64 exec, 1\nds_add_u32 v2, v124 offset:{off}\ns_mov_b64 exec, -1")

    def cnt_last(off, skip):
        A(f"s_mov_b64 exec, 1\nds_add_rtn_u32 v3, v2, v124 offset:{off}\ns_waitcnt lgkmcnt(0)")
        A(f"v_readfirstlane_b32 s61, v3\ns_cmp_eq_u32 s61, 3\ns_cbranch_scc0 {skip}")

    def tr_mfma(addr, nblk, blkstep, second, dreg, breg, frag0=64, acc=False, addr_per_blk=False, extra_off=0, rel=None):
        def rd(b):
            a = addr + b if addr_per_blk else addr
            o = extra_off + (0 if addr_per_blk else b * blkstep)
            f = frag0 + 4 * (b % 8)
            A(f"ds_read_b64_tr_b16 v[{f}:{f+1}], v{a} offset:{o}")
            A(f"ds_read_b64_tr_b16 v[{f+2}:{f+3}], v{a} offset:{o+second}")
        issued = min(7, nblk)
        for b in range(issued): rd(b)
        for b in range(nblk):
            A(f"s_waitcnt lgkmcnt({2*(issued-b-1)})")
            if rel is not None and b == nblk - 1: release(rel)
            f = frag0 + 4 * (b % 8)
            d = dreg(b)
            A(f"v_mfma_f32_16x16x32_bf16 v[{d}:{d+3}], v[{f}:{f+3}], v[{breg}:{breg+3}], {'v[%d:%d]' % (d, d+3) if acc else '0'}")
            if issued < nblk:
                rd(issued); issued += 1

    A("v_mov_b32 v124, 1")
    spin(1, F_LAND, 1, 3)
    stamp(2, 140)
    tr_mfma(122, 4, 32, 512, lambda b: 32 + 4*b, 128, frag0=64)
    tr_mfma(122, 4, 32, 512, lambda b: 32 + 4*b, 132, frag0=80, acc=True, extra_off=4096, rel=1)
    A(f"""s_lshl_b32 s73, s76, 8
    s_add_u32 s73, s73, {MISC + QRED}
    v_add_u32 v112, s73, v106""")
    execmask(*N0)
    for b in range(4):
        A(f"ds_write_b128 v112, v[{32+4*b}:{35+4*b}] offset:{b*64}")
    A("s_waitcnt vmcnt(0)")
    cnt_add(C_A)
    stamp(3, 140)
    spin(1, F_LAND, 3, 3)
    stamp(4, 140)
    gu_d = lambda b: 32 + 4*b if b < 8 else 96 + 4*(b - 8)
    tr_mfma(123, 14, 32, 1792, gu_d, 136, rel=3)
    A(f"""s_lshl_b32 s47, s72, 4
    s_add_u32 s47, s47, s71
    s_lshl_b32 s47, s47, 1
    s_lshr_b32 s73, s76, 1
    s_add_u32 s47, s47, s73
    s_mul_i32 s47, s47, 14336
    s_lshl_b32 s73, s70, 1
    s_and_b32 s74, s76, 1
    s_add_u32 s73, s73, s74
    s_mul_i32 s73, s73, 896
    s_add_u32 s47, s47, s73
    s_add_u32 s47, s47, {HP}
    v_lshrrev_b32 v125, 4, v0
    v_lshlrev_b32 v125, 4, v125""")
    execmask(*N0)
    for b in range(14):
        d = gu_d(b)
        A(f"buffer_store_dwordx4 v[{d}:{d+3}], v125, s[{WS}:{WS+3}], s47 offen offset:{b*64} sc1")
    execmask(*FULL)
    stamp(5, 140)
    A(f"""s_lshl_b32 s47, s64, 4
    s_add_u32 s47, s47, s76
    s_lshl_b32 s47, s47, 10
    s_add_u32 s48, s47, 8192
    v_lshlrev_b32 v126, 4, v0
    v_add_u32 v127, 4096, v126""")
    spin(2, C_QGO, 1, 3)
    stamp(6, 140)
    A(f"""buffer_load_dwordx4 v[64:67], v126, s[{WS}:{WS+3}], s47 offen offset:{QP} sc1
    buffer_load_dwordx4 v[68:71], v127, s[{WS}:{WS+3}], s47 offen offset:{QP} sc1
    buffer_load_dwordx4 v[72:75], v126, s[{WS}:{WS+3}], s48 offen offset:{QP} sc1
    buffer_load_dwordx4 v[76:79], v127, s[{WS}:{WS+3}], s48 offen offset:{QP} sc1
    s_lshl_b32 s73, s76, 9
    s_add_u32 s73, s73, {MISC + QBUF}
    v_lshl_add_u32 v112, v0, 3, s73
    v_and_b32 v113, 7, v0
    v_lshl_add_u32 v113, v113, 8, v125
    v_add_u32 v113, {MISC + QBUF}, v113""")
    for r in range(32):
        A(f"v_mov_b32 v{32+r}, 0")
    A("v_mov_b32 v120, 0xff800000\nv_mov_b32 v121, 0\ns_waitcnt vmcnt(0)")
    for r in range(4):
        A(f"v_add_f32 v{64+r}, v{64+r}, v{68+r}\nv_add_f32 v{72+r}, v{72+r}, v{76+r}")
    for r in range(4):
        A(f"v_add_f32 v{64+r}, v{64+r}, v{72+r}")
    A("v_cvt_pk_bf16_f32 v64, v64, v65\nv_cvt_pk_bf16_f32 v65, v66, v67\nds_write_b64 v112, v[64:65]")
    cnt_add(C_Q)
    cnt_add(C_B)
    spin(2, C_Q, 4, 3)
    for jj in range(4):
        A(f"ds_read_b128 v[{16+4*jj}:{19+4*jj}], v113 offset:{jj*64}")
    A(f"s_mov_b32 s49, 4\ns_mov_b32 s50, {LOG2E:#x}\ns_mov_b32 s51, {SCALE:#x}")
    stamp(7, 140)
    A("L_cloop:")
    spin(1, F_LAND, "s49", 3)
    for jj in range(4):
        for sub in range(2):
            f = 64 + 4*(2*jj + sub)
            A(f"ds_read_b128 v[{f}:{f+3}], v{4+jj} offset:{sub*4096}")
    for jj in range(4):
        for sub in range(2):
            k = 2*jj + sub
            f = 64 + 4*k; d = 96 + 4*sub
            A(f"s_waitcnt lgkmcnt({7-k})")
            if k == 7: release("s49")
            A(f"v_mfma_f32_16x16x32_bf16 v[{d}:{d+3}], v[{f}:{f+3}], v[{16+4*jj}:{19+4*jj}], {'0' if jj == 0 else 'v[%d:%d]' % (d, d+3)}")
    for jj in range(4):
        A(f"v_xor_b32 v{4+jj}, 0x4000, v{4+jj}")
    A("s_add_u32 s49, s49, 1")
    for rep in range(2):
        for i in range(4):
            A(f"v_cvt_pk_bf16_f32 v{104+i}, v{96+2*i}, v{97+2*i}")
        for i in range(4):
            A(f"v_lshlrev_b32 v{96+2*i}, 16, v{104+i}\nv_and_b32 v{97+2*i}, 0xffff0000, v{104+i}")
        if rep == 0:
            for i in range(8):
                A(f"v_mul_f32 v{96+i}, s51, v{96+i}")
    A("""v_max3_f32 v108, v96, v97, v98
    v_max3_f32 v109, v99, v100, v101
    v_max3_f32 v108, v108, v102, v103
    v_max3_f32 v108, v108, v109, v120""")
    xrow("v_max_f32", 108, 109)
    A("""v_sub_f32 v110, v120, v108
    v_mul_f32 v109, s50, v108
    v_mul_f32 v110, s50, v110
    v_cmp_neq_f32 vcc, v120, v108
    v_exp_f32 v110, v110
    v_mov_b32 v120, v108""")
    for i in range(8):
        A(f"v_fma_f32 v{96+i}, v{96+i}, s50, -v109")
    for i in range(8):
        A(f"v_exp_f32 v{96+i}, v{96+i}")
    A("v_mul_f32 v121, v121, v110")
    for i in range(4):
        A(f"v_cvt_pk_bf16_f32 v{104+i}, v{96+2*i}, v{97+2*i}")
    A("""v_add_f32 v96, v96, v97
    v_add_f32 v98, v98, v99
    v_add_f32 v100, v100, v101
    v_add_f32 v102, v102, v103
    v_add_f32 v96, v96, v98
    v_add_f32 v100, v100, v102
    v_add_f32 v96, v96, v100
    v_add_f32 v121, v121, v96
    s_cbranch_vccz L_c_noresc""")
    for r in range(32):
        A(f"v_mul_f32 v{32+r}, v{32+r}, v110")
    A("L_c_noresc:")
    A("s_cmp_eq_u32 s49, 19\ns_cbranch_scc1 L_c_last")
    spin(1, F_LAND, "s49", 3)
    tr_mfma(8, 8, 0, 4096, lambda b: 32 + 4*b, 104, acc=True, addr_per_blk=True, rel="s49")
    for b in range(8):
        A(f"v_xor_b32 v{8+b}, 0x4000, v{8+b}")
    A("s_add_u32 s49, s49, 1\ns_branch L_cloop")
    A("L_c_last:")
    stamp(8, 140)
    xrow("v_add_f32", 121, 109)
    A(f"""s_lshl_b32 s73, s76, 6
    s_add_u32 s73, s73, {MISC + MLX}
    v_lshl_add_u32 v112, v0, 3, s73
    s_mov_b32 exec_lo, 0xff
    s_mov_b32 exec_hi, 0
    ds_write_b64 v112, v[120:121]""")
    cnt_add(C_ML)
    A(f"""v_lshrrev_b32 v113, 5, v0
    s_lshl_b32 s73, s76, 1
    v_add_u32 v113, s73, v113
    v_lshlrev_b32 v112, 3, v113
    v_add_u32 v112, {MISC + MLX}, v112""")
    spin(2, C_ML, 4, 3)
    for k in range(4):
        A(f"ds_read_b64 v[{128+2*k}:{129+2*k}], v112 offset:{k*64}")
    A(f"""s_lshl_b32 s47, s64, 9
    s_add_u32 s47, s47, s65
    s_lshl_b32 s47, s47, 3
    s_add_u32 s47, s47, {ML}
    v_lshlrev_b32 v114, 9, v113
    s_waitcnt lgkmcnt(0)
    v_max3_f32 v136, v128, v130, v132
    v_max_f32 v136, v136, v134""")
    for k in range(4):
        A(f"v_sub_f32 v{128+2*k}, v{128+2*k}, v136\nv_mul_f32 v{128+2*k}, s50, v{128+2*k}")
    for k in range(4):
        A(f"v_exp_f32 v{128+2*k}, v{128+2*k}")
    A("""v_mul_f32 v137, v128, v129
    v_fmac_f32 v137, v130, v131
    v_fmac_f32 v137, v132, v133
    v_fmac_f32 v137, v134, v135
    v_min_u32 v136, -2, v136
    v_min_u32 v137, -2, v137
    s_mov_b32 exec_lo, 1
    s_mov_b32 exec_hi, 1""")
    A(f"buffer_store_dwordx2 v[136:137], v114, s[{WS}:{WS+3}], s47 offen sc1")
    execmask(*FULL)
    A(f"""v_and_b32 v115, 7, v0
    v_mul_u32_u24 v115, 528, v115
    s_add_u32 s73, s46, 8192
    v_add3_u32 v115, v115, v125, s73
    v_and_b32 v117, 31, v0
    v_mul_u32_u24 v116, 528, v113
    v_lshl_add_u32 v116, v117, 4, v116
    v_add_u32 v116, 8192, v116
    v_add_u32 v118, 0x10000, v116
    v_lshrrev_b32 v119, 3, v117
    v_lshl_add_u32 v119, v113, 2, v119
    v_and_b32 v117, 7, v0
    v_lshlrev_b32 v117, 4, v117
    v_lshl_add_u32 v117, v119, 13, v117
    s_lshl_b32 s47, s64, 11
    s_add_u32 s47, s47, s65
    s_lshl_b32 s47, s47, 7
    s_add_u32 s47, s47, {OP}""")
    spin(1, F_LAND, 19, 3)
    stamp(9, 140)
    tr_mfma(8, 8, 0, 4096, lambda b: 32 + 4*b, 104, acc=True, addr_per_blk=True)
    execmask(*NLT8)
    for b in range(8):
        A(f"ds_write_b128 v115, v[{32+4*b}:{35+4*b}] offset:{b*64}")
    cnt_add(C_O)
    spin(2, C_O, 4, 3)
    A("""ds_read_b128 v[64:67], v116
    ds_read_b128 v[68:71], v116 offset:32768
    ds_read_b128 v[72:75], v118
    ds_read_b128 v[76:79], v118 offset:32768
    s_waitcnt lgkmcnt(3)""")
    for r in range(4): A(f"v_mul_f32 v{64+r}, v{64+r}, v128")
    for k in range(1, 4):
        A(f"s_waitcnt lgkmcnt({3-k})")
        for r in range(4): A(f"v_fmac_f32 v{64+r}, v{64+4*k+r}, v{128+2*k}")
    for r in range(4): A(f"v_min_u32 v{64+r}, -2, v{64+r}")
    A(f"buffer_store_dwordx4 v[64:67], v117, s[{WS}:{WS+3}], s47 offen sc1")
    stamp(10, 140)

    def out_stores(base):
        A(f"""s_lshl_b32 s47, s67, 2
        s_add_u32 s47, s47, s76
        s_lshl_b32 s47, s47, 12
        s_add_u32 s47, s47, s66
        s_lshl_b32 s47, s47, 4
        s_add_u32 s47, s47, {base}""")
    def out_stores2():
        execmask(*N0)
        for b in range(8):
            d = 32 + 4*b
            for r in range(4): A(f"v_min_u32 v{d+r}, -2, v{d+r}")
            A(f"buffer_store_dwordx4 v[{d}:{d+3}], v119, s[{WS}:{WS+3}], s47 offen {ist}")
            if b < 7: A("s_add_u32 s47, s47, 8192")
        execmask(*FULL)

    A(f"""v_lshlrev_b32 v119, 7, v125
    v_add_u32 v112, {MISC + HBUF}, v125""")
    out_stores(FI)
    spin(2, C_HR, 1, 3)
    A("ds_read_b128 v[104:107], v112")
    spin(1, F_LAND, 20, 3)
    stamp(11, 140)
    tr_mfma(8, 8, 0, 4096, lambda b: 32 + 4*b, 104, addr_per_blk=True, extra_off=8192)
    out_stores2()
    cnt_add(C_PF)
    stamp(12, 140)
    A(f"""s_lshr_b32 s47, s66, 2
    s_lshl_b32 s47, s47, 9
    s_add_u32 s47, s47, {ML}
    v_lshlrev_b32 v112, 3, v0""")
    poll([f"buffer_load_dwordx2 v[128:129], v112, s[{WS}:{WS+3}], s47 offen sc1"], [128, 129], 130)
    A("v_mov_b32 v130, v128")
    allred("v_max_f32", 130, 131)
    A("v_sub_f32 v128, v128, v130\nv_mul_f32 v128, s50, v128\nv_exp_f32 v128, v128\nv_mul_f32 v129, v129, v128")
    allred("v_add_f32", 129, 131)
    A("""v_rcp_f32 v130, v129
    v_fma_f32 v131, -v129, v130, 1.0
    v_fmac_f32 v130, v131, v130
    v_mul_f32 v128, v128, v130""")
    stamp(13, 140)
    for b in range(8):
        A(f"v_xor_b32 v{8+b}, 0x4000, v{8+b}")
    A(f"""s_lshl_b32 s48, s66, 13
    s_lshl_b32 s73, s76, 5
    s_add_u32 s48, s48, s73
    s_add_u32 s48, s48, {OP}
    v_lshlrev_b32 v112, 7, v0
    v_lshrrev_b32 v113, 5, v0
    v_bfe_u32 v114, v0, 4, 1
    v_lshl_add_u32 v113, v114, 1, v113
    s_and_b32 s73, s76, 1
    s_lshl_b32 s73, s73, 5
    s_lshr_b32 s74, s76, 1
    s_lshl_b32 s74, s74, 3
    s_add_u32 s73, s73, s74
    s_add_u32 s73, s73, {MISC + OBUF}
    v_lshl_add_u32 v113, v113, 1, s73
    v_add_u32 v114, {MISC + OBUF}, v125""")
    out_stores(SI)
    poll([f"buffer_load_dwordx4 v[96:99], v112, s[{WS}:{WS+3}], s48 offen sc1",
          f"buffer_load_dwordx4 v[100:103], v112, s[{WS}:{WS+3}], s48 offen offset:16 sc1"], range(96, 104), 130)
    stamp(14, 140)
    for r in range(8): A(f"v_mul_f32 v{96+r}, v{96+r}, v128")
    for i in range(4): A(f"v_permlane32_swap_b32 v{96+2*i}, v{97+2*i}")
    for i in range(4): A(f"v_add_f32 v{96+2*i}, v{96+2*i}, v{97+2*i}")
    A("v_permlane16_swap_b32 v96, v98\nv_permlane16_swap_b32 v100, v102\nv_add_f32 v96, v96, v98\nv_add_f32 v100, v100, v102")
    for m in ("row_ror:8", "row_ror:4", "row_ror:2", "row_ror:1"):
        A(f"v_add_f32_dpp v96, v96, v96 {m} row_mask:0xf bank_mask:0xf\nv_add_f32_dpp v100, v100, v100 {m} row_mask:0xf bank_mask:0xf")
    A("v_cvt_pk_bf16_f32 v96, v96, v100")
    execmask(*N0)
    A("ds_write_b16 v113, v96\nds_write_b16_d16_hi v113, v96 offset:16")
    cnt_add(C_OB)
    spin(1, F_LAND, 21, 3)
    stamp(15, 140)
    for b in range(7):
        A(f"ds_read_b64_tr_b16 v[{64+4*b}:{65+4*b}], v{8+b}\nds_read_b64_tr_b16 v[{66+4*b}:{67+4*b}], v{8+b} offset:4096")
    A("s_waitcnt lgkmcnt(4)")
    A(f"ds_read_b64_tr_b16 v[92:93], v15\nds_read_b64_tr_b16 v[94:95], v15 offset:4096")
    spin(2, C_OB, 4, 3)
    A("ds_read_b128 v[104:107], v114\ns_waitcnt lgkmcnt(0)")
    for b in range(8):
        A(f"v_mfma_f32_16x16x32_bf16 v[{32+4*b}:{35+4*b}], v[{64+4*b}:{67+4*b}], v[104:107], 0")
    out_stores2()
    cnt_add(C_PS)
    stamp(16, 140)
    stamp_flush(140, WS)
    A("s_endpgm")

    A("L_P:")
    OUT = 40
    stamp(0, 60)
    A(f"""v_lshlrev_b32 v1, 4, v0
    v_mov_b32 v2, {MISC}
    v_mov_b32 v4, 0""")
    srd(WS, 26, 1 << 28); srd(XS, 4, 2048); srd(DB, 24, 256); srd(OUT, 22, 2048)
    A(f"""v_lshrrev_b32 v8, 5, v0
    v_bfe_u32 v9, v0, 4, 1
    v_lshl_add_u32 v8, v9, 1, v8
    v_lshlrev_b32 v8, 1, v8
    s_lshl_b32 s44, s2, 3
    buffer_load_ushort v9, v8, s[{XS}:{XS+3}], s44 offen
    v_mov_b32 v10, 1""")
    A(f"""s_lshl_b32 s47, s64, 2
    s_add_u32 s47, s47, s69
    s_lshl_b32 s47, s47, 4
    s_add_u32 s47, s47, s68
    s_lshl_b32 s47, s47, 8
    s_lshl_b32 s48, s64, 6
    s_lshl_b32 s49, s2, 7
    s_add_u32 s49, s49, {GO}
    s_lshl_b32 s50, s64, 13
    s_add_u32 s50, s50, {GO}
    v_add_u32 v13, {MISC + QRED}, v1
    v_lshlrev_b32 v11, 7, v0""")
    spin(2, C_A, 4, 3)
    A("s_mov_b32 exec_lo, 0xffff\ns_mov_b32 exec_hi, 0")
    for k in range(4):
        A(f"ds_read_b128 v[{16+4*k}:{19+4*k}], v13 offset:{k*256}")
    A("s_waitcnt lgkmcnt(0)")
    for r in range(4):
        A(f"v_add_f32 v{16+r}, v{16+r}, v{20+r}\nv_add_f32 v{24+r}, v{24+r}, v{28+r}")
    for r in range(4):
        A(f"v_add_f32 v{16+r}, v{16+r}, v{24+r}")
    A(f"""buffer_store_dwordx4 v[16:19], v1, s[{WS}:{WS+3}], s47 offen offset:{QP} sc1
    s_mov_b64 exec, 1
    v_mov_b32 v12, 1
    s_waitcnt vmcnt(0)""")
    stamp(1, 60)

    def arrive(off, last, skip):
        A(f"""buffer_atomic_add v12, v4, s[{DB}:{DB+3}], {off} {asc}
        s_waitcnt vmcnt(0)
        v_readfirstlane_b32 s61, v12
        s_cmp_eq_u32 s61, {last}
        s_cbranch_scc0 {skip}""")

    def gostore(off):
        if gst == 'atom':
            return f"buffer_atomic_add v10, v11, s[{WS}:{WS+3}], s50 offen offset:{off}"
        return f"buffer_store_dword v10, v11, s[{WS}:{WS+3}], s50 offen offset:{off} {gst}"

    def wait_go(off):
        l0, l1 = A.lab("go"), A.lab("go")
        if gld == 'atom':
            ld = f"v_mov_b32 v12, 0\nbuffer_atomic_add v12, v4, s[{WS}:{WS+3}], s49 offen offset:{off} sc0"
        else:
            ld = f"buffer_load_dword v12, v4, s[{WS}:{WS+3}], s49 offen offset:{off} {gld}"
        A(f"""{l0}:
        {ld}
        s_waitcnt vmcnt(0)
        v_readfirstlane_b32 s61, v12
        s_cmp_eq_u32 s61, 1
        s_cbranch_scc1 {l1}""")
        if sleep_go: A(f"s_sleep {sleep_go}")
        A(f"""s_sub_u32 {BUD}, {BUD}, 16
        s_cbranch_scc0 {l0}
        s_mov_b32 {BUD}, 0
        {l1}:""")

    arrive("s48 offen", 63, "L_p_a1")
    A(f"""s_mov_b64 exec, -1
    {gostore(0)}
    s_mov_b64 exec, 1
    L_p_a1:""")
    stamp(9, 60)
    wait_go(0)
    A(f"ds_write_b32 v2, v10 offset:{C_QGO}")
    stamp(2, 60)
    spin(2, C_B, 4, 3)
    A("v_mov_b32 v12, 1")
    arrive("s48 offen offset:32", 63, "L_p_a2")
    A("v_mov_b32 v12, 1")
    arrive("0 offen offset:16", 3, "L_p_a2")
    A(f"s_mov_b64 exec, -1\ns_mov_b32 s50, {GO}")
    for k in range(4):
        A(gostore(16))
        if k < 3: A("s_add_u32 s50, s50, 8192")
    A("s_mov_b64 exec, 1\nL_p_a2:")
    wait_go(16)
    A("s_mov_b64 exec, -1")
    stamp(3, 60)
    A(f"""v_lshrrev_b32 v11, 3, v0
    v_mul_u32_u24 v11, {8*14336}, v11
    v_and_b32 v12, 7, v0
    v_lshl_add_u32 v11, v12, 4, v11
    s_mul_i32 s45, s66, 112
    s_add_u32 s45, s45, {HP}""")
    for i in range(8):
        A(f"buffer_load_dwordx4 v[{16+4*i}:{19+4*i}], v11, s[{WS}:{WS+3}], s45 offen sc1")
        if i < 7: A("s_add_u32 s45, s45, 14336")
    for i in range(1, 8):
        A(f"s_waitcnt vmcnt({7-i})")
        for r in range(4): A(f"v_add_f32 v{16+r}, v{16+r}, v{16+4*i+r}")
    for r in range(4): A(f"v_add_f32_dpp v{16+r}, v{16+r}, v{16+r} row_ror:8 row_mask:0xf bank_mask:0xf")
    for r in range(4): A(f"v_mov_b32 v{20+r}, v{16+r}")
    for r in range(4): A(f"v_permlane16_swap_b32 v{16+r}, v{20+r}")
    for r in range(4): A(f"v_add_f32 v{16+r}, v{16+r}, v{20+r}")
    for r in range(4): rnd(16 + r)
    for r in range(4): A(f"v_mov_b32 v{20+r}, v{16+r}")
    for r in range(4): A(f"v_permlane32_swap_b32 v{16+r}, v{20+r}")
    for r in range(4):
        silu(16 + r, 24, 25); rnd(16 + r)
        A(f"v_mul_f32 v{16+r}, v{16+r}, v{20+r}")
    A(f"""v_cvt_pk_bf16_f32 v16, v16, v17
    v_cvt_pk_bf16_f32 v17, v18, v19
    v_cmp_eq_u32 vcc, 7, v12
    v_cndmask_b32 v16, v16, v4, vcc
    v_cndmask_b32 v17, v17, v4, vcc
    v_and_b32 v13, 3, v0
    v_lshlrev_b32 v13, 4, v13
    v_lshrrev_b32 v12, 2, v12
    v_lshl_add_u32 v13, v12, 3, v13
    v_add_u32 v13, {MISC + HBUF}, v13
    s_mov_b32 exec_lo, 0xff
    s_mov_b32 exec_hi, 0
    ds_write_b64 v13, v[16:17]
    ds_write_b32 v2, v10 offset:{C_HR}
    s_mov_b64 exec, -1
    s_lshl_b32 s45, s2, 11
    s_add_u32 s46, s45, {SI}
    s_add_u32 s45, s45, {FI}""")
    stamp(4, 60)

    def inbox(so):
        poll([f"buffer_load_dwordx4 v[16:19], v1, s[{WS}:{WS+3}], {so} offen {ild}",
              f"buffer_load_dwordx4 v[20:23], v1, s[{WS}:{WS+3}], {so} offen offset:1024 {ild}"], range(16, 24), 24)
        for r in range(4): A(f"v_add_f32 v{16+r}, v{16+r}, v{20+r}")
        A("""v_permlane32_swap_b32 v16, v17
        v_permlane32_swap_b32 v18, v19
        v_add_f32 v16, v16, v17
        v_add_f32 v18, v18, v19
        v_permlane16_swap_b32 v16, v18
        v_add_f32 v16, v16, v18""")
        for m in ("row_ror:8", "row_ror:4", "row_ror:2", "row_ror:1"):
            A(f"v_add_f32_dpp v16, v16, v16 {m} row_mask:0xf bank_mask:0xf")
        rnd(16)

    spin(2, C_PF, 4, 3)
    stamp(5, 60)
    inbox("s45")
    silu(16, 24, 25); rnd(16)
    A("v_mov_b32 v14, v16\nv_lshlrev_b32 v9, 16, v9")
    stamp(6, 60)
    spin(2, C_PS, 4, 3)
    stamp(7, 60)
    inbox("s46")
    A("v_mul_f32 v16, v16, v14")
    rnd(16)
    A("v_add_f32 v16, v16, v9\nv_cvt_pk_bf16_f32 v16, v16, v16")
    execmask(*N0)
    A(f"buffer_store_short v16, v8, s[{OUT}:{OUT+3}], s44 offen sc1")
    stamp(8, 60)
    stamp_flush(60, WS)
    A("L_end:\ns_endpgm")

    bad = A.verify_edges()
    assert not bad, bad
    nv = 144
    txt = HEAD + f"; @launch grid=(256,1,1) block=(576,1,1) lds={LDS_BYTES}\n"
    txt += f'.amdgcn_target "amdgcn-amd-amdhsa--gfx950"\n.text\n.globl {KN}\n.p2align 8\n.type {KN},@function\n'
    txt += A.text()
    txt += f""".section .rodata,"a"
.p2align 6
.amdhsa_kernel {KN}
  .amdhsa_next_free_vgpr {nv}
  .amdhsa_next_free_sgpr 96
  .amdhsa_accum_offset {nv}
  .amdhsa_group_segment_fixed_size 0
  .amdhsa_kernarg_size 96
  .amdhsa_user_sgpr_count 2
  .amdhsa_user_sgpr_kernarg_segment_ptr 1
  .amdhsa_system_sgpr_workgroup_id_x 1
  .amdhsa_float_denorm_mode_32 3
.end_amdhsa_kernel
"""
    return txt


if __name__ == "__main__":
    kw = eval("dict(%s)" % (sys.argv[2] if len(sys.argv) > 2 else ""))
    open(sys.argv[1], "w").write(gen(**kw))
```

```python
import sys
sys.path.insert(0, "work")
from asmlib import Asm

KN = "recurrent_scan__gqa_block_cached__swiglu_ffn__decode_kernel"
HEAD = open("recurrent_scan__gqa_block_cached__swiglu_ffn__decode.s.ref").read().split("; Override launch")[0] \
    if __import__("os").path.exists("recurrent_scan__gqa_block_cached__swiglu_ffn__decode.s.ref") else ""

QP, HP, ML, GO, OP, FI, SI = 0x0, 0x10000, 0xF0000, 0xF8000, 0x100000, 0x200000, 0x280000
HF = GO
STAMP_OFF = 128 << 20
MISC = 131072
F_LAND, F_CONS = 0, 1024
C_A, C_ST1, C_QGO, C_B, C_Q, C_ML, C_O, C_OB, C_HR, C_PF, C_PS = [2048 + 4 * i for i in range(11)]
QRED, QBUF, MLX, HBUF, OBUF = 3072, 4096, 6144, 6400, 6464
LDS_BYTES = MISC + 8192
LOG2E = 0x3FB8AA3B
SCALE = 0x3DB504F3
EPS = 0x3727C5AC


def gen(D=5, Dend=8, stamps=False, sleep_poll=2, budget=1 << 20, ild='sc1', ist='sc1', asc='sc0', noclear=False, gld='sc1', gst='sc1', sleep_go=2, dbgst=False):
    A = Asm()
    BUD = "s60"

    def stamp(k, vreg):
        if stamps or (dbgst and vreg == 60):
            A(f"s_memrealtime s[62:63]\ns_waitcnt lgkmcnt(0)\nv_writelane_b32 v{vreg}, s62, {k}")

    def stamp_flush(vreg, srd):
        if stamps:
            A(f"""s_mov_b64 exec, -1
            s_mul_i32 s62, s2, 9
            s_add_u32 s62, s62, s3
            s_lshl_b32 s62, s62, 8
            s_add_u32 s62, s62, {STAMP_OFF}
            v_lshlrev_b32 v0, 2, v0
            buffer_store_dword v{vreg}, v0, s[{srd}:{srd+3}], s62 offen""")

    def spin(vaddr, off, needv, vt, st="s61", pre=False):
        l0, l1, l2 = A.lab("sp"), A.lab("sp"), A.lab("sp")
        if pre:
            A(f"s_branch {l2}") if False else None
        A(f"{l0}:")
        A(f"ds_read_b32 v{vt}, v{vaddr} offset:{off}")
        A(f"s_waitcnt lgkmcnt(0)")
        A(f"v_readfirstlane_b32 {st}, v{vt}")
        A(f"s_cmp_ge_i32 {st}, {needv}")
        A(f"s_cbranch_scc1 {l1}")
        A(f"s_sub_u32 {BUD}, {BUD}, 1")
        A(f"s_cbranch_scc0 {l0}")
        A(f"s_mov_b32 {BUD}, 0")
        A(f"{l1}:")

    def srd(base, ptr, size):
        A(f"s_mov_b32 s{base}, s{ptr}\ns_mov_b32 s{base+1}, s{ptr+1}\ns_mov_b32 s{base+2}, {size}\ns_mov_b32 s{base+3}, 0x20000")

    def execmask(lo, hi):
        if lo == 0xFFFFFFFF and hi == 0xFFFFFFFF:
            A("s_mov_b64 exec, -1")
        elif hi == 0 and lo <= 64:
            A(f"s_mov_b64 exec, {lo}")
        else:
            A(f"s_mov_b32 exec_lo, {lo:#x}\ns_mov_b32 exec_hi, {hi:#x}")
    FULL = (0xFFFFFFFF, 0xFFFFFFFF)
    N0 = (0x00010001, 0x00010001)
    NLT8 = (0x00FF00FF, 0x00FF00FF)

    def poll(loads, regs, vt):
        l0, l1 = A.lab("pl"), A.lab("pl")
        A(f"{l0}:")
        for t in loads: A(t)
        A("s_waitcnt vmcnt(0)")
        rs = list(regs)
        if len(rs) == 2:
            A(f"v_max_u32 v{vt}, v{rs[0]}, v{rs[1]}")
        else:
            A(f"v_max3_u32 v{vt}, v{rs[0]}, v{rs[1]}, v{rs[2]}")
            k = 3
            while k < len(rs):
                if k + 1 < len(rs):
                    A(f"v_max3_u32 v{vt}, v{vt}, v{rs[k]}, v{rs[k+1]}"); k += 2
                else:
                    A(f"v_max_u32 v{vt}, v{vt}, v{rs[k]}"); k += 1
        A(f"v_cmp_eq_u32 vcc, -1, v{vt}")
        A("s_and_b64 vcc, vcc, exec")
        A(f"s_cbranch_scc0 {l1}")
        A("s_mov_b64 exec, vcc")
        if sleep_poll: A(f"s_sleep {sleep_poll}")
        A(f"s_sub_u32 {BUD}, {BUD}, 16")
        A(f"s_cbranch_scc0 {l0}")
        A(f"s_mov_b32 {BUD}, 0")
        A(f"{l1}:")
        A("s_mov_b64 exec, -1")

    def allred(op, v, t):
        for m in ("quad_perm:[1,0,3,2]", "quad_perm:[2,3,0,1]", "row_half_mirror", "row_mirror"):
            A(f"{op}_dpp v{v}, v{v}, v{v} {m} row_mask:0xf bank_mask:0xf")
        xrow(op, v, t)

    def xrow(op, v, t):
        A(f"v_mov_b32 v{t}, v{v}\nv_permlane16_swap_b32 v{v}, v{t}\n{op} v{v}, v{v}, v{t}")
        A(f"v_mov_b32 v{t}, v{v}\nv_permlane32_swap_b32 v{v}, v{t}\n{op} v{v}, v{v}, v{t}")

    def rnd(v, t=None):
        A(f"v_cvt_pk_bf16_f32 v{v}, v{v}, v{v}\nv_and_b32 v{v}, 0xffff0000, v{v}")

    def silu(v, t0, t1):
        A(f"""v_mul_f32 v{t0}, 0xbfb8aa3b, v{v}
        v_exp_f32 v{t0}, v{t0}
        v_add_f32 v{t0}, 1.0, v{t0}
        v_rcp_f32 v{t1}, v{t0}
        v_mul_f32 v{v}, v{v}, v{t1}""")

    A(f"{KN}:")
    if stamps or dbgst: A("s_memrealtime s[80:81]")
    A("s_cmp_ge_u32 s2, 256\ns_cbranch_scc1 L_end")
    A("s_load_dwordx16 s[4:19], s[0:1], 0\ns_load_dwordx8 s[20:27], s[0:1], 64")
    A(f"v_lshlrev_b32 v2, 2, v0\nv_add_u32 v2, {MISC}, v2\nv_mov_b32 v3, 0\nds_write_b32 v2, v3")
    A("v_lshrrev_b32 v1, 6, v0\nv_and_b32 v0, 63, v0\nv_readfirstlane_b32 s3, v1")
    A(f"s_mov_b32 {BUD}, {budget}")
    A("""s_lshr_b32 s64, s2, 6
    s_and_b32 s65, s2, 63
    s_lshr_b32 s68, s65, 3
    s_and_b32 s72, s2, 1
    s_lshl_b32 s73, s72, 3
    s_or_b32 s68, s68, s73
    s_bfe_u32 s69, s2, 0x20001
    s_waitcnt lgkmcnt(0)
    s_barrier
    s_cmp_ge_u32 s3, 4
    s_cbranch_scc1 L_notL""")

    def more_idx():
        A("""s_lshr_b32 s66, s2, 4
        s_lshl_b32 s66, s66, 3
        s_and_b32 s73, s2, 7
        s_or_b32 s66, s66, s73
        s_bfe_u32 s67, s2, 0x10003
        s_bfe_u32 s70, s2, 0x30003
        s_lshl_b32 s71, s64, 2
        s_or_b32 s71, s71, s69""")

    SWQ, SGU, SK, SV, SDN, SWO = 28, 32, 36, 40, 44, 48
    A("s_setprio 3")
    stamp(0, 20)
    A("""v_lshrrev_b32 v2, 3, v0
    v_lshlrev_b32 v2, 13, v2
    v_and_b32 v3, 7, v0
    v_lshl_or_b32 v2, v3, 4, v2
    s_lshl_b32 s52, s69, 2
    s_add_u32 s52, s52, s3
    s_lshl_b32 s52, s52, 19
    s_lshl_b32 s73, s64, 11
    s_add_u32 s52, s52, s73
    s_lshl_b32 s73, s68, 7
    s_add_u32 s52, s52, s73
    s_lshl_b32 s57, s3, 15""")
    srd(SWQ, 10, 1 << 23)
    st = dict(issued=0, notified=0)
    ends = []

    def notify(val):
        A(f"v_mov_b32 v9, {val}\nds_write_b32 v8, v9 offset:{F_LAND}")

    def pace(Dt, first_ok=0):
        P = st["issued"]
        if P >= Dt:
            A(f"s_waitcnt vmcnt({Dt-1})")
            while st["notified"] < len(ends) and ends[st["notified"]][0] <= P - Dt:
                notify(ends[st["notified"]][1]); st["notified"] += 1

    def l_setup_rest():
        more_idx()
        A("""s_cmp_eq_u32 s72, 0
        s_cselect_b32 s32, s16, s18
        s_cselect_b32 s33, s17, s19
        s_mov_b32 s34, 7340032
        s_mov_b32 s35, 0x20000""")
        srd(SK, 6, 1 << 26); srd(SV, 8, 1 << 26); srd(SDN, 20, 7340032); srd(SWO, 12, 1 << 23)
        A(f"""s_lshl_b32 s53, s71, 1
        s_lshr_b32 s73, s3, 1
        s_add_u32 s53, s53, s73
        s_mul_i32 s53, s53, {32*7168}
        s_mul_i32 s73, s70, 896
        s_add_u32 s53, s53, s73
        s_and_b32 s73, s3, 1
        s_mul_i32 s73, s73, 448
        s_add_u32 s53, s53, s73
        s_lshl_b32 s54, s65, 2
        s_add_u32 s54, s54, s3
        s_lshl_b32 s54, s54, 13
        s_lshl_b32 s73, s64, 24
        s_add_u32 s54, s54, s73
        s_lshl_b32 s73, s67, 2
        s_add_u32 s73, s73, s3
        s_lshl_b32 s73, s73, 8
        s_mul_i32 s55, s66, {28*2048}
        s_add_u32 s55, s55, s73
        s_lshl_b32 s56, s66, 16
        s_add_u32 s56, s56, s73
        v_lshlrev_b32 v3, 4, v0
        v_add_u32 v4, 6720, v3
        v_cmp_gt_u32 vcc, 28, v0
        v_cndmask_b32 v3, v4, v3, vcc
        v_lshrrev_b32 v10, 4, v0
        v_and_b32 v11, 15, v0
        v_lshlrev_b32 v12, 1, v10
        v_xor_b32 v12, v11, v12
        v_xor_b32 v13, 8, v12
        v_lshlrev_b32 v12, 4, v12
        v_lshlrev_b32 v13, 4, v13
        v_lshl_or_b32 v4, v10, 8, v12
        v_lshl_or_b32 v5, v10, 8, v13
        v_lshl_or_b32 v6, v10, 11, v12
        v_lshl_or_b32 v7, v10, 11, v13
        s_lshl_b32 s73, s3, 8
        s_add_u32 s73, s73, {MISC}
        v_lshl_add_u32 v8, v0, 2, s73""")

    for i in range(8):
        pace(D)
        A(f"s_add_u32 m0, s57, {i*1024}")
        A(f"buffer_load_dwordx4 v2, s[{SWQ}:{SWQ+3}], s52 offen nt lds")
        A(f"s_add_u32 s52, s52, 65536")
        st["issued"] += 1
        if i == D - 1:
            l_setup_rest()
            stamp(1, 20)
    ends.append((7, 1))
    A("s_lshr_b64 exec, -1, 8")
    for t in (1, 2):
        for i in range(8):
            pace(D)
            A(f"s_add_u32 m0, s57, {t*8192 + i*896}")
            A(f"buffer_load_dwordx4 v3, s[{SGU}:{SGU+3}], s53 offen nt lds")
            A(f"s_add_u32 s53, s53, 14336")
            st["issued"] += 1
        ends.append((st["issued"] - 1, t + 1))
    A("s_mov_b64 exec, -1")
    assert st["notified"] == 2 and D <= 7
    stamp(2, 20)
    A(f"s_mov_b32 s58, 3\ns_add_u32 s59, s57, {3*8192}\nds_read_b32 v10, v8 offset:{F_CONS}")

    def slot_check():
        ok = A.lab("ok")
        A(f"s_waitcnt vmcnt({D-1}) lgkmcnt(0)")
        A("v_readfirstlane_b32 s61, v10\ns_sub_u32 s75, s58, 3\ns_cmp_ge_i32 s61, s75")
        A(f"s_cbranch_scc1 {ok}")
        spin(8, F_CONS, "s75", 10)
        A(f"{ok}:")

    def next_tile():
        A(f"ds_read_b32 v10, v8 offset:{F_CONS}")
        A("s_add_u32 s58, s58, 1\ns_and_b32 s59, s58, 3\ns_lshl_b32 s59, s59, 13\ns_add_u32 s59, s59, s57")

    A("L_lloop:")
    for sr in (SK, SV):
        slot_check()
        for i in range(8):
            if i: A(f"s_waitcnt vmcnt({D-1})")
            if i == D - 1: notify("s58")
            if i == 0: A("s_mov_b32 m0, s59")
            if i == 4: A("s_add_u32 m0, s59, 4096\ns_add_u32 s74, s54, 4096")
            A(f"buffer_load_dwordx4 v{4+(i&1)}, s[{sr}:{sr+3}], {'s54' if i < 4 else 's74'} offen offset:{(i&3)*1024} nt lds")
        next_tile()
    A(f"s_add_u32 s54, s54, {2<<20}\ns_cmp_lt_u32 s58, 19\ns_cbranch_scc1 L_lloop")
    stamp(3, 20)
    st["issued"] = 1000; st["notified"] = 0
    ends[:] = [(999, 19)]
    for t, n, sr, so in ((19, 7, SDN, 55), (20, 8, SWO, 56)):
        ok = A.lab("ok")
        A("s_waitcnt lgkmcnt(0)")
        A(f"v_readfirstlane_b32 s61, v10\ns_cmp_ge_i32 s61, {t-3}\ns_cbranch_scc1 {ok}")
        spin(8, F_CONS, t - 3, 10)
        A(f"{ok}:")
        for i in range(n):
            pace(Dend if (st["issued"] - 1000) >= 0 else D)
            A(f"s_add_u32 m0, s57, {(t&3)*8192 + i*1024}")
            A(f"buffer_load_dwordx4 v{6+(i&1)}, s[{sr}:{sr+3}], s{so} offen nt lds")
            A(f"s_add_u32 s{so}, s{so}, 8192")
            st["issued"] += 1
        ends.append((st["issued"] - 1, t + 1))
        if t == 19: A(f"ds_read_b32 v10, v8 offset:{F_CONS}")
    while st["notified"] < len(ends):
        e, val = ends[st["notified"]]
        A(f"s_waitcnt vmcnt({st['issued'] - 1 - e})")
        notify(val); st["notified"] += 1
        stamp(4 + val - 19, 20)
    if stamps:
        srd(28, 26, 1 << 28)
        stamp_flush(20, 28)
    A("s_endpgm")

    A("L_notL:")
    more_idx()
    A("s_cmp_ge_u32 s3, 8\ns_cbranch_scc1 L_P")
    WS, XS, DB = 28, 32, 36
    stamp(0, 140)
    A(f"""s_sub_u32 s76, s3, 4
    v_lshrrev_b32 v104, 4, v0
    v_lshlrev_b32 v105, 5, v0
    s_lshl_b32 s40, s69, 2
    s_add_u32 s40, s40, s76
    s_lshl_b32 s40, s40, 7
    s_lshl_b32 s41, s71, 1
    s_lshr_b32 s73, s76, 1
    s_add_u32 s41, s41, s73
    s_lshl_b32 s41, s41, 6
    v_lshlrev_b32 v106, 4, v104
    v_lshlrev_b32 v107, 4, v0
    v_mov_b32 v108, -1
    v_mov_b32 v109, -1
    v_mov_b32 v110, -1
    v_mov_b32 v111, -1""")
    srd(XS, 4, 2048)
    A(f"""buffer_load_dwordx4 v[64:67], v105, s[{XS}:{XS+3}], 0 offen
    buffer_load_dwordx4 v[68:71], v105, s[{XS}:{XS+3}], 0 offen offset:16
    buffer_load_dwordx4 v[128:131], v106, s[{XS}:{XS+3}], s40 offen
    buffer_load_dwordx4 v[132:135], v106, s[{XS}:{XS+3}], s40 offen offset:64
    buffer_load_dwordx4 v[136:139], v106, s[{XS}:{XS+3}], s41 offen""")
    srd(WS, 26, 1 << 28); srd(DB, 24, 256)
    A(f"""s_lshl_b32 s42, s66, 1
    s_add_u32 s42, s42, s67
    s_lshl_b32 s42, s42, 2
    s_add_u32 s42, s42, s76
    s_lshl_b32 s42, s42, 10
    s_add_u32 s42, s42, {OP}
    s_lshr_b32 s43, s76, 1
    s_lshl_b32 s43, s43, 19
    s_lshl_b32 s73, s2, 1
    s_and_b32 s74, s76, 1
    s_add_u32 s73, s73, s74
    s_lshl_b32 s73, s73, 10
    s_add_u32 s43, s43, s73
    s_add_u32 s43, s43, {FI}
    {'s_mov_b64 exec, 1' if noclear else ''}
    buffer_store_dwordx4 v[108:111], v107, s[{WS}:{WS+3}], s42 offen sc1
    buffer_store_dwordx4 v[108:111], v107, s[{WS}:{WS+3}], s43 offen sc1
    {'s_mov_b64 exec, -1' if noclear else ''}
    s_lshl_b32 s44, s2, 6
    s_add_u32 s44, s44, {ML}
    s_lshl_b32 s73, s76, 4
    s_add_u32 s44, s44, s73
    s_lshl_b32 s45, s2, 3
    s_add_u32 s45, s45, s76
    s_lshl_b32 s45, s45, 4
    s_add_u32 s45, s45, {GO}
    v_mov_b32 v112, 0
    s_mov_b64 exec, 1
    buffer_store_dwordx4 v[108:111], v112, s[{WS}:{WS+3}], s44 offen sc1
    buffer_store_dword v112, v112, s[{WS}:{WS+3}], s45 offen sc1
    s_mov_b64 exec, -1""")
    A(f"""s_lshl_b32 s46, s76, 15
    s_lshl_b32 s73, s76, 8
    s_add_u32 s73, s73, {MISC}
    v_lshl_add_u32 v1, v0, 2, s73
    v_mov_b32 v2, {MISC}
    v_and_b32 v113, 15, v0
    v_and_b32 v114, 7, v0
    v_lshlrev_b32 v114, 1, v114
    v_lshlrev_b32 v115, 8, v113
    s_add_u32 s73, s46, {3*8192}
    v_add_u32 v115, s73, v115""")
    for jj in range(4):
        A(f"v_add_u32 v116, {4*jj}, v104\nv_xor_b32 v116, v116, v114\nv_lshl_add_u32 v{4+jj}, v116, 4, v115")
    A(f"""v_lshrrev_b32 v116, 2, v0
    v_and_b32 v117, 7, v116
    v_and_b32 v118, 3, v0
    v_lshlrev_b32 v118, 3, v118
    v_lshl_add_u32 v116, v116, 8, v118
    v_add_u32 v116, s46, v116""")
    for b in range(8):
        A(f"v_xor_b32 v119, {b}, v117\nv_lshl_add_u32 v{8+b}, v119, 5, v116")
    A(f"""v_bfe_u32 v119, v0, 2, 2
    v_lshl_add_u32 v122, v104, 3, v119
    v_lshl_add_u32 v122, v122, 7, v118
    v_add_u32 v122, s46, v122
    v_and_b32 v123, 1, v104
    v_lshl_add_u32 v123, v123, 3, v119
    v_mul_u32_u24 v123, 448, v123
    v_lshrrev_b32 v119, 5, v0
    v_lshl_add_u32 v123, v119, 13, v123
    s_add_u32 s73, s46, 8192
    v_add3_u32 v123, v123, v118, s73""")
    stamp(17, 140)
    A("s_waitcnt vmcnt(7)")
    stamp(18, 140)
    for i in range(8):
        A(f"v_lshlrev_b32 v{72+2*i}, 16, v{64+i}\nv_and_b32 v{73+2*i}, 0xffff0000, v{64+i}")
    A("v_add_f32 v64, v72, v73\nv_add_f32 v65, v74, v75")
    for i in range(2, 8):
        A(f"v_add_f32 v{64+(i&1)}, v{64+(i&1)}, v{72+2*i}\nv_add_f32 v{64+(i&1)}, v{64+(i&1)}, v{73+2*i}") if False else None
    for i in range(4, 16):
        A(f"v_add_f32 v{64+(i&1)}, v{64+(i&1)}, v{72+i}")
    A("v_add_f32 v64, v64, v65")
    allred("v_add_f32", 64, 65)
    A("v_mul_f32 v64, 0x3a800000, v64")
    for i in range(16):
        A(f"v_sub_f32 v{72+i}, v{72+i}, v64")
    A("v_mul_f32 v66, v72, v72\nv_mul_f32 v67, v73, v73")
    for i in range(2, 16):
        A(f"v_fmac_f32 v{66+(i&1)}, v{72+i}, v{72+i}")
    A("v_add_f32 v66, v66, v67")
    allred("v_add_f32", 66, 67)
    A("v_mul_f32 v66, 0x3a800000, v66")
    rnd(64); rnd(66)
    A(f"v_add_f32 v66, {EPS:#x}, v66")
    rnd(66)
    A("v_sqrt_f32 v66, v66")
    rnd(66)
    A("v_rcp_f32 v67, v66\ns_waitcnt vmcnt(4)")
    for i in range(12):
        x = 128 + i
        A(f"""v_lshlrev_b32 v72, 16, v{x}
        v_and_b32 v73, 0xffff0000, v{x}
        v_sub_f32 v72, v72, v64
        v_sub_f32 v73, v73, v64
        v_cvt_pk_bf16_f32 v73, v72, v73
        v_lshlrev_b32 v72, 16, v73
        v_and_b32 v73, 0xffff0000, v73
        v_mul_f32 v74, v72, v67
        v_mul_f32 v75, v73, v67
        v_fma_f32 v72, -v74, v66, v72
        v_fma_f32 v73, -v75, v66, v73
        v_fmac_f32 v74, v72, v67
        v_fmac_f32 v75, v73, v67
        v_cvt_pk_bf16_f32 v{x}, v74, v75""")
    stamp(1, 140)

    def release(val):
        A(f"v_mov_b32 v3, {val}\nds_write_b32 v1, v3 offset:{F_CONS}")

    def cnt_add(off):
        A(f"s_mov_b64 exec, 1\nds_add_u32 v2, v124 offset:{off}\ns_mov_b64 exec, -1")

    def cnt_last(off, skip):
        A(f"s_mov_b64 exec, 1\nds_add_rtn_u32 v3, v2, v124 offset:{off}\ns_waitcnt lgkmcnt(0)")
        A(f"v_readfirstlane_b32 s61, v3\ns_cmp_eq_u32 s61, 3\ns_cbranch_scc0 {skip}")

    def tr_mfma(addr, nblk, blkstep, second, dreg, breg, frag0=64, acc=False, addr_per_blk=False, extra_off=0, rel=None):
        def rd(b):
            a = addr + b if addr_per_blk else addr
            o = extra_off + (0 if addr_per_blk else b * blkstep)
            f = frag0 + 4 * (b % 8)
            A(f"ds_read_b64_tr_b16 v[{f}:{f+1}], v{a} offset:{o}")
            A(f"ds_read_b64_tr_b16 v[{f+2}:{f+3}], v{a} offset:{o+second}")
        issued = min(7, nblk)
        for b in range(issued): rd(b)
        for b in range(nblk):
            A(f"s_waitcnt lgkmcnt({2*(issued-b-1)})")
            if rel is not None and b == nblk - 1: release(rel)
            f = frag0 + 4 * (b % 8)
            d = dreg(b)
            A(f"v_mfma_f32_16x16x32_bf16 v[{d}:{d+3}], v[{f}:{f+3}], v[{breg}:{breg+3}], {'v[%d:%d]' % (d, d+3) if acc else '0'}")
            if issued < nblk:
                rd(issued); issued += 1

    A("v_mov_b32 v124, 1")
    spin(1, F_LAND, 1, 3)
    stamp(2, 140)
    tr_mfma(122, 4, 32, 512, lambda b: 32 + 4*b, 128, frag0=64)
    tr_mfma(122, 4, 32, 512, lambda b: 32 + 4*b, 132, frag0=80, acc=True, extra_off=4096, rel=1)
    A(f"""s_lshl_b32 s73, s76, 8
    s_add_u32 s73, s73, {MISC + QRED}
    v_add_u32 v112, s73, v106""")
    execmask(*N0)
    for b in range(4):
        A(f"ds_write_b128 v112, v[{32+4*b}:{35+4*b}] offset:{b*64}")
    A("s_waitcnt vmcnt(0)")
    cnt_add(C_A)
    stamp(3, 140)
    spin(1, F_LAND, 3, 3)
    stamp(4, 140)
    gu_d = lambda b: 32 + 4*b if b < 8 else 96 + 4*(b - 8)
    tr_mfma(123, 14, 32, 1792, gu_d, 136, rel=3)
    A(f"""s_lshl_b32 s47, s72, 4
    s_add_u32 s47, s47, s71
    s_lshl_b32 s47, s47, 1
    s_lshr_b32 s73, s76, 1
    s_add_u32 s47, s47, s73
    s_mul_i32 s47, s47, 14336
    s_lshl_b32 s73, s70, 1
    s_and_b32 s74, s76, 1
    s_add_u32 s73, s73, s74
    s_mul_i32 s73, s73, 896
    s_add_u32 s47, s47, s73
    s_add_u32 s47, s47, {HP}
    v_lshrrev_b32 v125, 4, v0
    v_lshlrev_b32 v125, 4, v125""")
    execmask(*N0)
    for b in range(14):
        d = gu_d(b)
        A(f"buffer_store_dwordx4 v[{d}:{d+3}], v125, s[{WS}:{WS+3}], s47 offen offset:{b*64} sc1")
    execmask(*FULL)
    stamp(5, 140)
    A(f"""s_lshl_b32 s47, s64, 4
    s_add_u32 s47, s47, s76
    s_lshl_b32 s47, s47, 10
    s_add_u32 s48, s47, 8192
    v_lshlrev_b32 v126, 4, v0
    v_add_u32 v127, 4096, v126""")
    spin(2, C_QGO, 1, 3)
    stamp(6, 140)
    A(f"""buffer_load_dwordx4 v[64:67], v126, s[{WS}:{WS+3}], s47 offen offset:{QP} sc1
    buffer_load_dwordx4 v[68:71], v127, s[{WS}:{WS+3}], s47 offen offset:{QP} sc1
    buffer_load_dwordx4 v[72:75], v126, s[{WS}:{WS+3}], s48 offen offset:{QP} sc1
    buffer_load_dwordx4 v[76:79], v127, s[{WS}:{WS+3}], s48 offen offset:{QP} sc1
    s_lshl_b32 s73, s76, 9
    s_add_u32 s73, s73, {MISC + QBUF}
    v_lshl_add_u32 v112, v0, 3, s73
    v_and_b32 v113, 7, v0
    v_lshl_add_u32 v113, v113, 8, v125
    v_add_u32 v113, {MISC + QBUF}, v113""")
    for r in range(32):
        A(f"v_mov_b32 v{32+r}, 0")
    A("v_mov_b32 v120, 0xff800000\nv_mov_b32 v121, 0\ns_waitcnt vmcnt(0)")
    for r in range(4):
        A(f"v_add_f32 v{64+r}, v{64+r}, v{68+r}\nv_add_f32 v{72+r}, v{72+r}, v{76+r}")
    for r in range(4):
        A(f"v_add_f32 v{64+r}, v{64+r}, v{72+r}")
    A("v_cvt_pk_bf16_f32 v64, v64, v65\nv_cvt_pk_bf16_f32 v65, v66, v67\nds_write_b64 v112, v[64:65]")
    cnt_add(C_Q)
    cnt_add(C_B)
    spin(2, C_Q, 4, 3)
    for jj in range(4):
        A(f"ds_read_b128 v[{16+4*jj}:{19+4*jj}], v113 offset:{jj*64}")
    A(f"s_mov_b32 s49, 4\ns_mov_b32 s50, {LOG2E:#x}\ns_mov_b32 s51, {SCALE:#x}")
    stamp(7, 140)
    A("L_cloop:")
    spin(1, F_LAND, "s49", 3)
    for jj in range(4):
        for sub in range(2):
            f = 64 + 4*(2*jj + sub)
            A(f"ds_read_b128 v[{f}:{f+3}], v{4+jj} offset:{sub*4096}")
    for jj in range(4):
        for sub in range(2):
            k = 2*jj + sub
            f = 64 + 4*k; d = 96 + 4*sub
            A(f"s_waitcnt lgkmcnt({7-k})")
            if k == 7: release("s49")
            A(f"v_mfma_f32_16x16x32_bf16 v[{d}:{d+3}], v[{f}:{f+3}], v[{16+4*jj}:{19+4*jj}], {'0' if jj == 0 else 'v[%d:%d]' % (d, d+3)}")
    for jj in range(4):
        A(f"v_xor_b32 v{4+jj}, 0x4000, v{4+jj}")
    A("s_add_u32 s49, s49, 1")
    for rep in range(2):
        for i in range(4):
            A(f"v_cvt_pk_bf16_f32 v{104+i}, v{96+2*i}, v{97+2*i}")
        for i in range(4):
            A(f"v_lshlrev_b32 v{96+2*i}, 16, v{104+i}\nv_and_b32 v{97+2*i}, 0xffff0000, v{104+i}")
        if rep == 0:
            for i in range(8):
                A(f"v_mul_f32 v{96+i}, s51, v{96+i}")
    A("""v_max3_f32 v108, v96, v97, v98
    v_max3_f32 v109, v99, v100, v101
    v_max3_f32 v108, v108, v102, v103
    v_max3_f32 v108, v108, v109, v120""")
    xrow("v_max_f32", 108, 109)
    A("""v_sub_f32 v110, v120, v108
    v_mul_f32 v109, s50, v108
    v_mul_f32 v110, s50, v110
    v_cmp_neq_f32 vcc, v120, v108
    v_exp_f32 v110, v110
    v_mov_b32 v120, v108""")
    for i in range(8):
        A(f"v_fma_f32 v{96+i}, v{96+i}, s50, -v109")
    for i in range(8):
        A(f"v_exp_f32 v{96+i}, v{96+i}")
    A("v_mul_f32 v121, v121, v110")
    for i in range(4):
        A(f"v_cvt_pk_bf16_f32 v{104+i}, v{96+2*i}, v{97+2*i}")
    A("""v_add_f32 v96, v96, v97
    v_add_f32 v98, v98, v99
    v_add_f32 v100, v100, v101
    v_add_f32 v102, v102, v103
    v_add_f32 v96, v96, v98
    v_add_f32 v100, v100, v102
    v_add_f32 v96, v96, v100
    v_add_f32 v121, v121, v96
    s_cbranch_vccz L_c_noresc""")
    for r in range(32):
        A(f"v_mul_f32 v{32+r}, v{32+r}, v110")
    A("L_c_noresc:")
    A("s_cmp_eq_u32 s49, 19\ns_cbranch_scc1 L_c_last")
    spin(1, F_LAND, "s49", 3)
    tr_mfma(8, 8, 0, 4096, lambda b: 32 + 4*b, 104, acc=True, addr_per_blk=True, rel="s49")
    for b in range(8):
        A(f"v_xor_b32 v{8+b}, 0x4000, v{8+b}")
    A("s_add_u32 s49, s49, 1\ns_branch L_cloop")
    A("L_c_last:")
    stamp(8, 140)
    xrow("v_add_f32", 121, 109)
    A(f"""s_lshl_b32 s73, s76, 6
    s_add_u32 s73, s73, {MISC + MLX}
    v_lshl_add_u32 v112, v0, 3, s73
    s_mov_b32 exec_lo, 0xff
    s_mov_b32 exec_hi, 0
    ds_write_b64 v112, v[120:121]""")
    cnt_add(C_ML)
    A(f"""v_lshrrev_b32 v113, 5, v0
    s_lshl_b32 s73, s76, 1
    v_add_u32 v113, s73, v113
    v_lshlrev_b32 v112, 3, v113
    v_add_u32 v112, {MISC + MLX}, v112""")
    spin(2, C_ML, 4, 3)
    for k in range(4):
        A(f"ds_read_b64 v[{128+2*k}:{129+2*k}], v112 offset:{k*64}")
    A(f"""s_lshl_b32 s47, s64, 9
    s_add_u32 s47, s47, s65
    s_lshl_b32 s47, s47, 3
    s_add_u32 s47, s47, {ML}
    v_lshlrev_b32 v114, 9, v113
    s_waitcnt lgkmcnt(0)
    v_max3_f32 v136, v128, v130, v132
    v_max_f32 v136, v136, v134""")
    for k in range(4):
        A(f"v_sub_f32 v{128+2*k}, v{128+2*k}, v136\nv_mul_f32 v{128+2*k}, s50, v{128+2*k}")
    for k in range(4):
        A(f"v_exp_f32 v{128+2*k}, v{128+2*k}")
    A("""v_mul_f32 v137, v128, v129
    v_fmac_f32 v137, v130, v131
    v_fmac_f32 v137, v132, v133
    v_fmac_f32 v137, v134, v135
    v_min_u32 v136, -2, v136
    v_min_u32 v137, -2, v137
    s_mov_b32 exec_lo, 1
    s_mov_b32 exec_hi, 1""")
    A(f"buffer_store_dwordx2 v[136:137], v114, s[{WS}:{WS+3}], s47 offen sc1")
    execmask(*FULL)
    A(f"""v_and_b32 v115, 7, v0
    v_mul_u32_u24 v115, 528, v115
    s_add_u32 s73, s46, 8192
    v_add3_u32 v115, v115, v125, s73
    v_and_b32 v117, 31, v0
    v_mul_u32_u24 v116, 528, v113
    v_lshl_add_u32 v116, v117, 4, v116
    v_add_u32 v116, 8192, v116
    v_add_u32 v118, 0x10000, v116
    v_lshrrev_b32 v119, 3, v117
    v_lshl_add_u32 v119, v113, 2, v119
    v_and_b32 v117, 7, v0
    v_lshlrev_b32 v117, 4, v117
    v_lshl_add_u32 v117, v119, 13, v117
    s_lshl_b32 s47, s64, 11
    s_add_u32 s47, s47, s65
    s_lshl_b32 s47, s47, 7
    s_add_u32 s47, s47, {OP}""")
    spin(1, F_LAND, 19, 3)
    stamp(9, 140)
    tr_mfma(8, 8, 0, 4096, lambda b: 32 + 4*b, 104, acc=True, addr_per_blk=True)
    execmask(*NLT8)
    for b in range(8):
        A(f"ds_write_b128 v115, v[{32+4*b}:{35+4*b}] offset:{b*64}")
    cnt_add(C_O)
    spin(2, C_O, 4, 3)
    A("""ds_read_b128 v[64:67], v116
    ds_read_b128 v[68:71], v116 offset:32768
    ds_read_b128 v[72:75], v118
    ds_read_b128 v[76:79], v118 offset:32768
    s_waitcnt lgkmcnt(3)""")
    for r in range(4): A(f"v_mul_f32 v{64+r}, v{64+r}, v128")
    for k in range(1, 4):
        A(f"s_waitcnt lgkmcnt({3-k})")
        for r in range(4): A(f"v_fmac_f32 v{64+r}, v{64+4*k+r}, v{128+2*k}")
    for r in range(4): A(f"v_min_u32 v{64+r}, -2, v{64+r}")
    A(f"buffer_store_dwordx4 v[64:67], v117, s[{WS}:{WS+3}], s47 offen sc1")
    stamp(10, 140)

    def out_stores(base):
        A(f"""s_lshl_b32 s47, s67, 2
        s_add_u32 s47, s47, s76
        s_lshl_b32 s47, s47, 12
        s_add_u32 s47, s47, s66
        s_lshl_b32 s47, s47, 4
        s_add_u32 s47, s47, {base}""")
    def out_stores2():
        execmask(*N0)
        for b in range(8):
            d = 32 + 4*b
            for r in range(4): A(f"v_min_u32 v{d+r}, -2, v{d+r}")
            A(f"buffer_store_dwordx4 v[{d}:{d+3}], v119, s[{WS}:{WS+3}], s47 offen {ist}")
            if b < 7: A("s_add_u32 s47, s47, 8192")
        execmask(*FULL)

    A(f"""v_lshlrev_b32 v119, 7, v125
    v_add_u32 v112, {MISC + HBUF}, v125""")
    out_stores(FI)
    spin(2, C_HR, 1, 3)
    A("ds_read_b128 v[104:107], v112")
    spin(1, F_LAND, 20, 3)
    stamp(11, 140)
    tr_mfma(8, 8, 0, 4096, lambda b: 32 + 4*b, 104, addr_per_blk=True, extra_off=8192)
    out_stores2()
    cnt_add(C_PF)
    stamp(12, 140)
    A(f"""s_lshr_b32 s47, s66, 2
    s_lshl_b32 s47, s47, 9
    s_add_u32 s47, s47, {ML}
    v_lshlrev_b32 v112, 3, v0""")
    poll([f"buffer_load_dwordx2 v[128:129], v112, s[{WS}:{WS+3}], s47 offen sc1"], [128, 129], 130)
    A("v_mov_b32 v130, v128")
    allred("v_max_f32", 130, 131)
    A("v_sub_f32 v128, v128, v130\nv_mul_f32 v128, s50, v128\nv_exp_f32 v128, v128\nv_mul_f32 v129, v129, v128")
    allred("v_add_f32", 129, 131)
    A("""v_rcp_f32 v130, v129
    v_fma_f32 v131, -v129, v130, 1.0
    v_fmac_f32 v130, v131, v130
    v_mul_f32 v128, v128, v130""")
    stamp(13, 140)
    for b in range(8):
        A(f"v_xor_b32 v{8+b}, 0x4000, v{8+b}")
    A(f"""s_lshl_b32 s48, s66, 13
    s_lshl_b32 s73, s76, 5
    s_add_u32 s48, s48, s73
    s_add_u32 s48, s48, {OP}
    v_lshlrev_b32 v112, 7, v0
    v_lshrrev_b32 v113, 5, v0
    v_bfe_u32 v114, v0, 4, 1
    v_lshl_add_u32 v113, v114, 1, v113
    s_and_b32 s73, s76, 1
    s_lshl_b32 s73, s73, 5
    s_lshr_b32 s74, s76, 1
    s_lshl_b32 s74, s74, 3
    s_add_u32 s73, s73, s74
    s_add_u32 s73, s73, {MISC + OBUF}
    v_lshl_add_u32 v113, v113, 1, s73
    v_add_u32 v114, {MISC + OBUF}, v125""")
    out_stores(SI)
    poll([f"buffer_load_dwordx4 v[96:99], v112, s[{WS}:{WS+3}], s48 offen sc1",
          f"buffer_load_dwordx4 v[100:103], v112, s[{WS}:{WS+3}], s48 offen offset:16 sc1"], range(96, 104), 130)
    stamp(14, 140)
    for r in range(8): A(f"v_mul_f32 v{96+r}, v{96+r}, v128")
    for i in range(4): A(f"v_permlane32_swap_b32 v{96+2*i}, v{97+2*i}")
    for i in range(4): A(f"v_add_f32 v{96+2*i}, v{96+2*i}, v{97+2*i}")
    A("v_permlane16_swap_b32 v96, v98\nv_permlane16_swap_b32 v100, v102\nv_add_f32 v96, v96, v98\nv_add_f32 v100, v100, v102")
    for m in ("row_ror:8", "row_ror:4", "row_ror:2", "row_ror:1"):
        A(f"v_add_f32_dpp v96, v96, v96 {m} row_mask:0xf bank_mask:0xf\nv_add_f32_dpp v100, v100, v100 {m} row_mask:0xf bank_mask:0xf")
    A("v_cvt_pk_bf16_f32 v96, v96, v100")
    execmask(*N0)
    A("ds_write_b16 v113, v96\nds_write_b16_d16_hi v113, v96 offset:16")
    cnt_add(C_OB)
    spin(1, F_LAND, 21, 3)
    stamp(15, 140)
    for b in range(7):
        A(f"ds_read_b64_tr_b16 v[{64+4*b}:{65+4*b}], v{8+b}\nds_read_b64_tr_b16 v[{66+4*b}:{67+4*b}], v{8+b} offset:4096")
    A("s_waitcnt lgkmcnt(4)")
    A(f"ds_read_b64_tr_b16 v[92:93], v15\nds_read_b64_tr_b16 v[94:95], v15 offset:4096")
    spin(2, C_OB, 4, 3)
    A("ds_read_b128 v[104:107], v114\ns_waitcnt lgkmcnt(0)")
    for b in range(8):
        A(f"v_mfma_f32_16x16x32_bf16 v[{32+4*b}:{35+4*b}], v[{64+4*b}:{67+4*b}], v[104:107], 0")
    out_stores2()
    cnt_add(C_PS)
    stamp(16, 140)
    stamp_flush(140, WS)
    A("s_endpgm")

    A("L_P:")
    OUT = 40
    stamp(0, 60)
    A(f"""v_lshlrev_b32 v1, 4, v0
    v_mov_b32 v2, {MISC}
    v_mov_b32 v4, 0""")
    srd(WS, 26, 1 << 28); srd(XS, 4, 2048); srd(DB, 24, 256); srd(OUT, 22, 2048)
    A(f"""v_lshrrev_b32 v8, 5, v0
    v_bfe_u32 v9, v0, 4, 1
    v_lshl_add_u32 v8, v9, 1, v8
    v_lshlrev_b32 v8, 1, v8
    s_lshl_b32 s44, s2, 3
    buffer_load_ushort v9, v8, s[{XS}:{XS+3}], s44 offen
    v_mov_b32 v10, 1""")
    A(f"""s_lshl_b32 s47, s64, 2
    s_add_u32 s47, s47, s69
    s_lshl_b32 s47, s47, 4
    s_add_u32 s47, s47, s68
    s_lshl_b32 s47, s47, 8
    s_lshl_b32 s48, s64, 6
    s_lshl_b32 s49, s2, 7
    s_add_u32 s49, s49, {GO}
    s_lshl_b32 s50, s64, 13
    s_add_u32 s50, s50, {GO}
    v_add_u32 v13, {MISC + QRED}, v1
    v_lshlrev_b32 v11, 7, v0""")
    spin(2, C_A, 4, 3)
    A("s_mov_b32 exec_lo, 0xffff\ns_mov_b32 exec_hi, 0")
    for k in range(4):
        A(f"ds_read_b128 v[{16+4*k}:{19+4*k}], v13 offset:{k*256}")
    A("s_waitcnt lgkmcnt(0)")
    for r in range(4):
        A(f"v_add_f32 v{16+r}, v{16+r}, v{20+r}\nv_add_f32 v{24+r}, v{24+r}, v{28+r}")
    for r in range(4):
        A(f"v_add_f32 v{16+r}, v{16+r}, v{24+r}")
    A(f"""buffer_store_dwordx4 v[16:19], v1, s[{WS}:{WS+3}], s47 offen offset:{QP} sc1
    s_mov_b64 exec, 1
    v_mov_b32 v12, 1
    s_waitcnt vmcnt(0)""")
    stamp(1, 60)

    def arrive(off, last, skip):
        A(f"""buffer_atomic_add v12, v4, s[{DB}:{DB+3}], {off} {asc}
        s_waitcnt vmcnt(0)
        v_readfirstlane_b32 s61, v12
        s_and_b32 s61, s61, {last}
        s_cmp_eq_u32 s61, {last}
        s_cbranch_scc0 {skip}""")

    def gostore(off):
        if gst == 'atom':
            return f"buffer_atomic_add v10, v11, s[{WS}:{WS+3}], s50 offen offset:{off}"
        return f"buffer_store_dword v10, v11, s[{WS}:{WS+3}], s50 offen offset:{off} {gst}"

    def wait_go(off):
        l0, l1 = A.lab("go"), A.lab("go")
        if gld == 'atom':
            ld = f"v_mov_b32 v12, 0\nbuffer_atomic_add v12, v4, s[{WS}:{WS+3}], s49 offen offset:{off} sc0"
        else:
            ld = f"buffer_load_dword v12, v4, s[{WS}:{WS+3}], s49 offen offset:{off} {gld}"
        A(f"""{l0}:
        {ld}
        s_waitcnt vmcnt(0)
        v_readfirstlane_b32 s61, v12
        s_cmp_eq_u32 s61, 1
        s_cbranch_scc1 {l1}""")
        if sleep_go: A(f"s_sleep {sleep_go}")
        A(f"""s_sub_u32 {BUD}, {BUD}, 16
        s_cbranch_scc0 {l0}
        s_mov_b32 {BUD}, 0
        {l1}:""")

    arrive("s48 offen", 63, "L_p_a1")
    A(f"""s_mov_b64 exec, -1
    {gostore(0)}
    s_mov_b64 exec, 1
    L_p_a1:""")
    stamp(9, 60)
    wait_go(0)
    A(f"ds_write_b32 v2, v10 offset:{C_QGO}")
    stamp(2, 60)
    spin(2, C_B, 4, 3)
    A("v_mov_b32 v12, 1")
    arrive("s48 offen offset:32", 63, "L_p_a2")
    A("v_mov_b32 v12, 1")
    arrive("0 offen offset:16", 3, "L_p_a2")
    A(f"s_mov_b64 exec, -1\ns_mov_b32 s50, {GO}")
    for k in range(4):
        A(gostore(16))
        if k < 3: A("s_add_u32 s50, s50, 8192")
    A("s_mov_b64 exec, 1\nL_p_a2:")
    wait_go(16)
    A("s_mov_b64 exec, -1")
    stamp(3, 60)
    A(f"""v_lshrrev_b32 v11, 3, v0
    v_mul_u32_u24 v11, {8*14336}, v11
    v_and_b32 v12, 7, v0
    v_lshl_add_u32 v11, v12, 4, v11
    s_mul_i32 s45, s66, 112
    s_add_u32 s45, s45, {HP}""")
    for i in range(8):
        A(f"buffer_load_dwordx4 v[{16+4*i}:{19+4*i}], v11, s[{WS}:{WS+3}], s45 offen sc1")
        if i < 7: A("s_add_u32 s45, s45, 14336")
    for i in range(1, 8):
        A(f"s_waitcnt vmcnt({7-i})")
        for r in range(4): A(f"v_add_f32 v{16+r}, v{16+r}, v{16+4*i+r}")
    for r in range(4): A(f"v_add_f32_dpp v{16+r}, v{16+r}, v{16+r} row_ror:8 row_mask:0xf bank_mask:0xf")
    for r in range(4): A(f"v_mov_b32 v{20+r}, v{16+r}")
    for r in range(4): A(f"v_permlane16_swap_b32 v{16+r}, v{20+r}")
    for r in range(4): A(f"v_add_f32 v{16+r}, v{16+r}, v{20+r}")
    for r in range(4): rnd(16 + r)
    for r in range(4): A(f"v_mov_b32 v{20+r}, v{16+r}")
    for r in range(4): A(f"v_permlane32_swap_b32 v{16+r}, v{20+r}")
    for r in range(4):
        silu(16 + r, 24, 25); rnd(16 + r)
        A(f"v_mul_f32 v{16+r}, v{16+r}, v{20+r}")
    A(f"""v_cvt_pk_bf16_f32 v16, v16, v17
    v_cvt_pk_bf16_f32 v17, v18, v19
    v_cmp_eq_u32 vcc, 7, v12
    v_cndmask_b32 v16, v16, v4, vcc
    v_cndmask_b32 v17, v17, v4, vcc
    v_and_b32 v13, 3, v0
    v_lshlrev_b32 v13, 4, v13
    v_lshrrev_b32 v12, 2, v12
    v_lshl_add_u32 v13, v12, 3, v13
    v_add_u32 v13, {MISC + HBUF}, v13
    s_mov_b32 exec_lo, 0xff
    s_mov_b32 exec_hi, 0
    ds_write_b64 v13, v[16:17]
    ds_write_b32 v2, v10 offset:{C_HR}
    s_mov_b64 exec, -1
    s_lshl_b32 s45, s2, 11
    s_add_u32 s46, s45, {SI}
    s_add_u32 s45, s45, {FI}""")
    stamp(4, 60)

    def inbox(so):
        poll([f"buffer_load_dwordx4 v[16:19], v1, s[{WS}:{WS+3}], {so} offen {ild}",
              f"buffer_load_dwordx4 v[20:23], v1, s[{WS}:{WS+3}], {so} offen offset:1024 {ild}"], range(16, 24), 24)
        for r in range(4): A(f"v_add_f32 v{16+r}, v{16+r}, v{20+r}")
        A("""v_permlane32_swap_b32 v16, v17
        v_permlane32_swap_b32 v18, v19
        v_add_f32 v16, v16, v17
        v_add_f32 v18, v18, v19
        v_permlane16_swap_b32 v16, v18
        v_add_f32 v16, v16, v18""")
        for m in ("row_ror:8", "row_ror:4", "row_ror:2", "row_ror:1"):
            A(f"v_add_f32_dpp v16, v16, v16 {m} row_mask:0xf bank_mask:0xf")
        rnd(16)

    spin(2, C_PF, 4, 3)
    stamp(5, 60)
    inbox("s45")
    silu(16, 24, 25); rnd(16)
    A("v_mov_b32 v14, v16\nv_lshlrev_b32 v9, 16, v9")
    stamp(6, 60)
    spin(2, C_PS, 4, 3)
    stamp(7, 60)
    inbox("s46")
    A("v_mul_f32 v16, v16, v14")
    rnd(16)
    A("v_add_f32 v16, v16, v9\nv_cvt_pk_bf16_f32 v16, v16, v16")
    execmask(*N0)
    A(f"buffer_store_short v16, v8, s[{OUT}:{OUT+3}], s44 offen sc1")
    stamp(8, 60)
    if stamps or dbgst: A("v_writelane_b32 v60, s80, 10")
    if dbgst:
        A("s_mov_b64 exec, 1")
        for slot, k, inv in ((1, 10, 1), (2, 10, 0), (3, 1, 0), (5, 2, 1), (6, 2, 0), (7, 4, 0), (9, 5, 1), (10, 5, 0), (11, 7, 1), (12, 7, 0), (13, 8, 1), (14, 8, 0), (15, 0, 0)):
            A(f"v_readlane_b32 s62, v60, {k}")
            if inv: A("s_not_b32 s62, s62")
            A(f"v_mov_b32 v12, s62\nbuffer_atomic_umax v12, v4, s[{DB}:{DB+3}], 0 offen offset:{4*slot}")
    stamp_flush(60, WS)
    A("L_end:\ns_endpgm")

    bad = A.verify_edges()
    assert not bad, bad
    nv = 144
    txt = HEAD + f"; @launch grid=(256,1,1) block=(576,1,1) lds={LDS_BYTES}\n"
    txt += f'.amdgcn_target "amdgcn-amd-amdhsa--gfx950"\n.text\n.globl {KN}\n.p2align 8\n.type {KN},@function\n'
    txt += A.text()
    txt += f""".section .rodata,"a"
.p2align 6
.amdhsa_kernel {KN}
  .amdhsa_next_free_vgpr {nv}
  .amdhsa_next_free_sgpr 96
  .amdhsa_accum_offset {nv}
  .amdhsa_group_segment_fixed_size 0
  .amdhsa_kernarg_size 96
  .amdhsa_user_sgpr_count 2
  .amdhsa_user_sgpr_kernarg_segment_ptr 1
  .amdhsa_system_sgpr_workgroup_id_x 1
  .amdhsa_float_denorm_mode_32 3
.end_amdhsa_kernel
"""
    return txt


if __name__ == "__main__":
    kw = eval("dict(%s)" % (sys.argv[2] if len(sys.argv) > 2 else ""))
    open(sys.argv[1], "w").write(gen(**kw))
```

```python
import sys
sys.path.insert(0, "work")
from asmlib import Asm

KN = "recurrent_scan__gqa_block_cached__swiglu_ffn__decode_kernel"
HEAD = open("recurrent_scan__gqa_block_cached__swiglu_ffn__decode.s.ref").read().split("; Override launch")[0] \
    if __import__("os").path.exists("recurrent_scan__gqa_block_cached__swiglu_ffn__decode.s.ref") else ""

QP, HP, ML, EP, PG, QF, FI, SI, OP = 0x0, 0x20000, 0x90000, 0x98000, 0x99000, 0x9C000, 0xA0000, 0x120000, 0x1A0000
W8 = True
TAGM = 0x3FF
STAMP_OFF = 128 << 20
MISC = 131072
F_LAND, F_CONS = 0, 1024
C_A, C_W, C_H, C_D, C_Q, C_ML, C_O, C_OB, C_HR, C_PF, C_PS = [2048 + 4 * i for i in range(11)]
QRED, QBUF, MLX, HBUF, OBUF, WBUF, HRED = 3072, 4096, 6144, 6400, 6464, 6656, 8192
LDS_BYTES = MISC + 12288
LOG2E = 0x3FB8AA3B
SCALE = 0x3DB504F3
EPS = 0x3727C5AC


def gen(D=5, Dend=8, stamps=False, sleep_poll=2, budget=1 << 20, dbgst=False, touch=True, kvs=8, lonly=0, spin_sleep=0, sleep_ml=4, sdelay=0, ctl=None, u0=3, step=2, pst='', pld='sc1'):
    A = Asm()
    BUD = "s60"

    def stamp(k, vreg):
        if stamps is True or (stamps == 'min' and vreg == 60 and k == 8) or (dbgst and vreg == 60):
            A(f"s_memrealtime s[62:63]\ns_waitcnt lgkmcnt(0)\nv_writelane_b32 v{vreg}, s62, {k}")

    def stamp_flush(vreg, srd):
        if stamps is True or (stamps and vreg == 60):
            A(f"""s_mov_b64 exec, -1
            s_mul_i32 s62, s2, 9
            s_add_u32 s62, s62, s3
            s_lshl_b32 s62, s62, 8
            s_add_u32 s62, s62, {STAMP_OFF}
            v_lshlrev_b32 v0, 2, v0
            buffer_store_dword v{vreg}, v0, s[{srd}:{srd+3}], s62 offen""")

    def spin(vaddr, off, needv, vt, st="s61", pre=False):
        l0, l1, l2 = A.lab("sp"), A.lab("sp"), A.lab("sp")
        if pre:
            A(f"s_branch {l2}") if False else None
        A(f"{l0}:")
        A(f"ds_read_b32 v{vt}, v{vaddr} offset:{off}")
        A(f"s_waitcnt lgkmcnt(0)")
        A(f"v_readfirstlane_b32 {st}, v{vt}")
        A(f"s_cmp_ge_i32 {st}, {needv}")
        A(f"s_cbranch_scc1 {l1}")
        if spin_sleep: A(f"s_sleep {spin_sleep}")
        A(f"s_sub_u32 {BUD}, {BUD}, 1")
        A(f"s_cbranch_scc0 {l0}")
        A(f"s_mov_b32 {BUD}, 0")
        A(f"{l1}:")

    def srd(base, ptr, size):
        A(f"s_mov_b32 s{base}, s{ptr}\ns_mov_b32 s{base+1}, s{ptr+1}\ns_mov_b32 s{base+2}, {size}\ns_mov_b32 s{base+3}, 0x20000")

    def execmask(lo, hi):
        if lo == 0xFFFFFFFF and hi == 0xFFFFFFFF:
            A("s_mov_b64 exec, -1")
        elif hi == 0 and lo <= 64:
            A(f"s_mov_b64 exec, {lo}")
        else:
            A(f"s_mov_b32 exec_lo, {lo:#x}\ns_mov_b32 exec_hi, {hi:#x}")
    FULL = (0xFFFFFFFF, 0xFFFFFFFF)
    N0 = (0x00010001, 0x00010001)
    NLT8 = (0x00FF00FF, 0x00FF00FF)

    def poll(loads, regs, vt, first_issued=None, slp=None, words=False):
        l0, l1, l2 = A.lab("pl"), A.lab("pl"), A.lab("pl")
        if first_issued is not None: A(f"s_waitcnt vmcnt({first_issued})\ns_branch {l2}")
        A(f"{l0}:")
        for t in loads: A(t)
        A("s_waitcnt vmcnt(0)")
        A(f"{l2}:")
        rs = list(regs)
        if words: rs = rs[1::2]
        for k, r in enumerate(rs):
            A(f"v_xor_b32 v{r}, s{84 if words else 80 + (k & 3)}, v{r}")
        if len(rs) == 2: A(f"v_or_b32 v{vt}, v{rs[0]}, v{rs[1]}")
        else: A(f"v_or3_b32 v{vt}, v{rs[0]}, v{rs[1]}, v{rs[2]}")
        k = 3
        while k < len(rs):
            if k + 1 < len(rs):
                A(f"v_or3_b32 v{vt}, v{vt}, v{rs[k]}, v{rs[k+1]}"); k += 2
            else:
                A(f"v_or_b32 v{vt}, v{vt}, v{rs[k]}"); k += 1
        if not words: A(f"v_and_b32 v{vt}, {TAGM:#x}, v{vt}")
        A(f"v_cmp_ne_u32 vcc, 0, v{vt}")
        A("s_and_b64 vcc, vcc, exec")
        A(f"s_cbranch_scc0 {l1}")
        A("s_mov_b64 exec, vcc")
        slp = sleep_poll if slp is None else slp
        if slp: A(f"s_sleep {slp}")
        A(f"s_sub_u32 {BUD}, {BUD}, 16")
        A(f"s_cbranch_scc0 {l0}")
        A(f"s_mov_b32 {BUD}, 0")
        A(f"{l1}:")
        A("s_mov_b64 exec, -1")

    def tag(r0, vm):
        for k in range(4):
            A(f"v_bfi_b32 v{r0+k}, v{vm}, s{80+k}, v{r0+k}")

    def tags_setup():
        A(f"s_add_u32 s84, s79, 1\ns_and_b32 s80, s84, {TAGM:#x}")
        for k in range(1, 4):
            A(f"s_add_u32 s{80+k}, s80, {256*k}\ns_and_b32 s{80+k}, s{80+k}, {TAGM:#x}")

    def controller(DBs):
        if not ctl: return
        levels = list(dict.fromkeys([D] + [d for d in ctl[0::2] if d != D]))
        A(f"""s_mov_b32 s52, {4 + 2*u0}
        s_and_b32 s53, s2, 7
        s_lshl_b32 s53, s53, 7
        s_add_u32 s53, s53, {PG}
        s_lshr_b32 s55, s2, 3
        s_lshl_b32 s55, s55, 2
        s_add_u32 s55, s55, s53
        s_lshl_b32 s56, s84, 8
        s_mov_b32 exec_lo, -1
        s_mov_b32 exec_hi, 0
        v_lshlrev_b32 v11, 2, v0
        L_ctl:""")
        spin(2, F_LAND, "s52", 3)
        A(f"""buffer_load_dword v12, v11, s[28:31], s53 offen {pld}
        s_add_u32 s57, s56, s52
        v_mov_b32 v15, s57
        s_mov_b32 exec_lo, 1
        buffer_store_dword v15, v4, s[28:31], s55 offen {pst}
        s_mov_b32 exec_lo, -1
        s_waitcnt vmcnt(1)
        v_subrev_u32 v12, s57, v12
        v_cmp_gt_u32 vcc, 32, v12
        s_bcnt1_i32_b32 s61, vcc_lo
        s_mov_b32 s54, {levels.index(ctl[0])}""")
        for t, d in zip(ctl[1::2], ctl[2::2]):
            A(f"s_cmp_ge_u32 s61, {t}\ns_cselect_b32 s54, {levels.index(d)}, s54")
        A(f"v_mov_b32 v12, s54\nds_write_b32 v2, v12 offset:{C_D}")
        A(f"s_add_u32 s52, s52, {step}\ns_cmp_le_u32 s52, 17\ns_cbranch_scc1 L_ctl\ns_mov_b64 exec, -1")

    def allred(op, v, t):
        for m in ("quad_perm:[1,0,3,2]", "quad_perm:[2,3,0,1]", "row_half_mirror", "row_mirror"):
            A(f"{op}_dpp v{v}, v{v}, v{v} {m} row_mask:0xf bank_mask:0xf")
        xrow(op, v, t)

    def xrow(op, v, t):
        A(f"v_mov_b32 v{t}, v{v}\nv_permlane16_swap_b32 v{v}, v{t}\n{op} v{v}, v{v}, v{t}")
        A(f"v_mov_b32 v{t}, v{v}\nv_permlane32_swap_b32 v{v}, v{t}\n{op} v{v}, v{v}, v{t}")

    def rnd(v, t=None):
        A(f"v_cvt_pk_bf16_f32 v{v}, v{v}, v{v}\nv_and_b32 v{v}, 0xffff0000, v{v}")

    def silu(v, t0, t1):
        A(f"""v_mul_f32 v{t0}, 0xbfb8aa3b, v{v}
        v_exp_f32 v{t0}, v{t0}
        v_add_f32 v{t0}, 1.0, v{t0}
        v_rcp_f32 v{t1}, v{t0}
        v_mul_f32 v{v}, v{v}, v{t1}""")

    A(f"{KN}:")
    if stamps or dbgst: A("s_memrealtime s[90:91]")
    A("s_cmp_ge_u32 s2, 256\ns_cbranch_scc1 L_end")
    A("s_load_dwordx16 s[4:19], s[0:1], 0\ns_load_dwordx8 s[20:27], s[0:1], 64")
    A(f"v_lshlrev_b32 v2, 2, v0\nv_add_u32 v2, {MISC}, v2\nv_mov_b32 v3, 0\nds_write_b32 v2, v3")
    A("v_lshrrev_b32 v1, 6, v0\nv_and_b32 v0, 63, v0\nv_readfirstlane_b32 s3, v1")
    A(f"s_mov_b32 {BUD}, {budget}")
    A("""s_lshr_b32 s64, s2, 6
    s_and_b32 s65, s2, 63
    s_lshr_b32 s68, s65, 3
    s_and_b32 s72, s2, 1
    s_lshl_b32 s73, s72, 3
    s_or_b32 s68, s68, s73
    s_bfe_u32 s69, s2, 0x20001
    s_waitcnt lgkmcnt(0)
    s_barrier
    s_cmp_ge_u32 s3, 4
    s_cbranch_scc1 L_notL""")

    def more_idx():
        A("""s_lshr_b32 s66, s2, 4
        s_lshl_b32 s66, s66, 3
        s_and_b32 s73, s2, 7
        s_or_b32 s66, s66, s73
        s_bfe_u32 s67, s2, 0x10003
        s_bfe_u32 s70, s2, 0x40003
        s_lshr_b32 s71, s2, 7
        s_lshl_b32 s71, s71, 2
        s_or_b32 s71, s71, s69""")

    SWQ, SGU, SK, SV, SDN, SWO = 28, 32, 36, 40, 44, 48
    A("s_setprio 3")
    stamp(0, 20)
    A("""v_lshrrev_b32 v2, 3, v0
    v_lshlrev_b32 v2, 13, v2
    v_and_b32 v3, 7, v0
    v_lshl_or_b32 v2, v3, 4, v2
    s_lshl_b32 s52, s69, 2
    s_add_u32 s52, s52, s3
    s_lshl_b32 s52, s52, 19
    s_lshl_b32 s73, s64, 11
    s_add_u32 s52, s52, s73
    s_lshl_b32 s73, s68, 7
    s_add_u32 s52, s52, s73
    s_lshl_b32 s57, s3, 15""")
    srd(SWQ, 10, 1 << 23)
    st = dict(issued=0, notified=0)
    ends = []

    def notify(val):
        A(f"v_mov_b32 v9, {val}\nds_write_b32 v8, v9 offset:{F_LAND}")

    def pace(Dt, first_ok=0):
        P = st["issued"]
        if P >= Dt:
            A(f"s_waitcnt vmcnt({Dt-1})")
            while st["notified"] < len(ends) and ends[st["notified"]][0] <= P - Dt:
                notify(ends[st["notified"]][1]); st["notified"] += 1

    def l_setup_rest():
        more_idx()
        A("""s_cmp_eq_u32 s72, 0
        s_cselect_b32 s32, s16, s18
        s_cselect_b32 s33, s17, s19
        s_mov_b32 s34, 7340032
        s_mov_b32 s35, 0x20000""")
        srd(SK, 6, 1 << 26); srd(SDN, 20, 7340032); srd(SWO, 12, 1 << 23)
        A(f"""s_lshl_b32 s53, s71, 2
        s_add_u32 s53, s53, s3
        s_mul_i32 s53, s53, {32*7168}
        s_mul_i32 s73, s70, 448
        s_add_u32 s53, s53, s73
        s_lshl_b32 s54, s65, 2
        s_add_u32 s54, s54, s3
        s_lshr_b32 s73, s54, {kvs}
        s_lshl_b32 s73, s73, {kvs + 3}
        s_and_b32 s54, s54, {(1 << kvs) - 1}
        s_add_u32 s54, s54, s73
        s_lshl_b32 s54, s54, 13
        s_lshl_b32 s73, s64, 24
        s_add_u32 s54, s54, s73
        s_lshl_b32 s73, s67, 2
        s_add_u32 s73, s73, s3
        s_lshl_b32 s73, s73, 8
        s_mul_i32 s55, s66, {28*2048}
        s_add_u32 s55, s55, s73
        s_lshl_b32 s56, s66, 16
        s_add_u32 s56, s56, s73
        v_lshlrev_b32 v3, 4, v0
        v_add_u32 v4, 6720, v3
        v_cmp_gt_u32 vcc, 28, v0
        v_cndmask_b32 v3, v4, v3, vcc
        v_lshrrev_b32 v10, 4, v0
        v_and_b32 v11, 15, v0
        v_lshlrev_b32 v12, 1, v10
        v_xor_b32 v12, v11, v12
        v_xor_b32 v13, 8, v12
        v_lshlrev_b32 v12, 4, v12
        v_lshlrev_b32 v13, 4, v13
        v_lshl_or_b32 v4, v10, 8, v12
        v_lshl_or_b32 v5, v10, 8, v13
        v_lshl_or_b32 v6, v10, 11, v12
        v_lshl_or_b32 v7, v10, 11, v13
        s_lshl_b32 s73, s3, 8
        s_add_u32 s73, s73, {MISC}
        v_lshl_add_u32 v8, v0, 2, s73""")

    for i in range(8):
        pace(D)
        A(f"s_add_u32 m0, s57, {i*1024}")
        A(f"buffer_load_dwordx4 v2, s[{SWQ}:{SWQ+3}], s52 offen nt lds")
        A(f"s_add_u32 s52, s52, 65536")
        st["issued"] += 1
        if i == D - 1:
            l_setup_rest()
            stamp(1, 20)
    ends.append((7, 1))
    A("s_lshr_b64 exec, -1, 8")
    for t in (1, 2):
        for i in range(8):
            pace(D)
            A(f"s_add_u32 m0, s57, {t*8192 + i*896}")
            A(f"buffer_load_dwordx4 v3, s[{SGU}:{SGU+3}], s53 offen nt lds")
            A(f"s_add_u32 s53, s53, 14336")
            st["issued"] += 1
        ends.append((st["issued"] - 1, t + 1))
    A("s_mov_b64 exec, -1")
    assert st["notified"] == 2 and D <= 8
    stamp(2, 20)
    levels = [D] + ([d for d in ctl[0::2] if d != D] if ctl else [])
    levels = list(dict.fromkeys(levels))
    A(f"s_mov_b32 s58, 3\ns_add_u32 s59, s57, {3*8192}\nv_mov_b32 v11, {MISC}\nds_read_b32 v10, v8 offset:{F_CONS}\nds_read_b32 v12, v11 offset:{C_D}")
    A("L_lloop:")
    A("s_waitcnt lgkmcnt(0)")
    if stamps is True: A("s_add_u32 m0, s58, 8\nv_writelane_b32 v20, s62, m0")
    A("v_readfirstlane_b32 s61, v10\nv_readfirstlane_b32 s77, v12\ns_sub_u32 s75, s58, 3\ns_cmp_ge_i32 s61, s75\ns_cbranch_scc1 L_lok")
    spin(8, F_CONS, "s75", 10)
    A("L_lok:\ns_mov_b32 m0, s59\ns_add_u32 s74, s54, 4096")
    for k in range(1, len(levels)):
        A(f"s_cmp_eq_u32 s77, {k}\ns_cbranch_scc1 L_lb{k}")
    for k, Dk in enumerate(levels):
        A(f"L_lb{k}:")
        for i in range(8):
            A(f"s_waitcnt vmcnt({Dk-1})")
            if i == Dk - 1: notify("s58")
            if i == 4: A("s_add_u32 m0, s59, 4096")
            A(f"buffer_load_dwordx4 v{4+(i&1)}, s[{SK}:{SK+3}], {'s54' if i < 4 else 's74'} offen offset:{(i&3)*1024} nt lds")
        if k < len(levels) - 1: A("s_branch L_lnext")
    A("L_lnext:")
    if stamps is True: A("s_memrealtime s[62:63]")
    A(f"""ds_read_b32 v10, v8 offset:{F_CONS}
    ds_read_b32 v12, v11 offset:{C_D}
    s_add_u32 s58, s58, 1
    s_and_b32 s59, s58, 3
    s_lshl_b32 s59, s59, 13
    s_add_u32 s59, s59, s57
    s_bitcmp1_b32 s58, 0
    s_cselect_b32 s{SK}, s6, s8
    s_cselect_b32 s{SK+1}, s7, s9
    s_cselect_b32 s73, {8192 << kvs}, 0
    s_add_u32 s54, s54, s73
    s_cmp_lt_u32 s58, 19
    s_cbranch_scc1 L_lloop""")
    stamp(3, 20)
    st["issued"] = 1000; st["notified"] = 0
    ends[:] = [(999, 19)]
    for t, n, sr, so in ((19, 7, SDN, 55), (20, 8, SWO, 56)):
        ok = A.lab("ok")
        A("s_waitcnt lgkmcnt(0)")
        A(f"v_readfirstlane_b32 s61, v10\ns_cmp_ge_i32 s61, {t-3}\ns_cbranch_scc1 {ok}")
        spin(8, F_CONS, t - 3, 10)
        A(f"{ok}:")
        for i in range(n):
            pace(Dend if (st["issued"] - 1000) >= 0 else D)
            A(f"s_add_u32 m0, s57, {(t&3)*8192 + i*1024}")
            A(f"buffer_load_dwordx4 v{6+(i&1)}, s[{sr}:{sr+3}], s{so} offen nt lds")
            A(f"s_add_u32 s{so}, s{so}, 8192")
            st["issued"] += 1
        ends.append((st["issued"] - 1, t + 1))
        if t == 19: A(f"ds_read_b32 v10, v8 offset:{F_CONS}")
    while st["notified"] < len(ends):
        e, val = ends[st["notified"]]
        A(f"s_waitcnt vmcnt({st['issued'] - 1 - e})")
        notify(val); st["notified"] += 1
        stamp(4 + val - 19, 20)
    if stamps is True:
        srd(28, 26, 1 << 28)
        stamp_flush(20, 28)
    A("s_endpgm")

    A("L_notL:")
    A(f"s_load_dword s79, s[26:27], {EP:#x}")
    more_idx()
    if lonly:
        A("s_cmp_ge_u32 s3, 8\ns_cbranch_scc1 L_Px")
        if lonly == 1:
            A(f"s_sub_u32 s76, s3, 4\ns_lshl_b32 s73, s76, 8\ns_add_u32 s73, s73, {MISC}\nv_lshl_add_u32 v1, v0, 2, s73\nv_mov_b32 v3, 100\nds_write_b32 v1, v3 offset:{F_CONS}\ns_endpgm")
        else:
            A(f"s_sub_u32 s76, s3, 4\ns_lshl_b32 s73, s76, 8\ns_add_u32 s73, s73, {MISC}\nv_lshl_add_u32 v1, v0, 2, s73\ns_mov_b32 s49, 1\nL_xl:")
            spin(1, F_LAND, "s49", 3)
            A(f"v_mov_b32 v3, s49\nds_write_b32 v1, v3 offset:{F_CONS}\ns_add_u32 s49, s49, 1\ns_cmp_lt_u32 s49, 22\ns_cbranch_scc1 L_xl\ns_endpgm")
        A("L_Px:")
        srd(28, 26, 1 << 28); srd(36, 24, 256)
        A(f"v_mov_b32 v2, {MISC}\nv_mov_b32 v4, 0\ns_waitcnt lgkmcnt(0)")
        tags_setup()
        controller(36)
        A(f"s_cmp_lg_u32 s2, 0\ns_cbranch_scc1 L_px2\ns_mov_b64 exec, 1\nv_mov_b32 v16, s84\ns_mov_b32 s45, {EP}\nbuffer_store_dword v16, v4, s[28:31], s45 offen sc1\nL_px2:")
        stamp(8, 60)
        A("v_writelane_b32 v60, s90, 10")
        stamp_flush(60, 28)
        A("s_endpgm")
    A("s_cmp_ge_u32 s3, 8\ns_cbranch_scc1 L_P")
    WS, XS, DB = 28, 32, 36
    stamp(0, 167)
    A(f"""s_sub_u32 s76, s3, 4
    v_lshrrev_b32 v104, 4, v0
    s_lshl_b32 s40, s69, 2
    s_add_u32 s40, s40, s76
    s_lshl_b32 s40, s40, 7
    s_lshl_b32 s41, s71, 2
    s_add_u32 s41, s41, s76
    s_lshl_b32 s41, s41, 6
    v_lshlrev_b32 v106, 4, v104
    v_lshlrev_b32 v107, 4, v0
""")
    srd(XS, 4, 2048)
    A(f"""buffer_load_dwordx4 v[64:67], v107, s[{XS}:{XS+3}], 0 offen
    buffer_load_dwordx4 v[68:71], v107, s[{XS}:{XS+3}], 0 offen offset:1024
    buffer_load_dwordx4 v[128:131], v106, s[{XS}:{XS+3}], s40 offen
    buffer_load_dwordx4 v[132:135], v106, s[{XS}:{XS+3}], s40 offen offset:64
    buffer_load_dwordx4 v[136:139], v106, s[{XS}:{XS+3}], s41 offen""")
    srd(WS, 26, 1 << 28)
    A(f"""s_lshl_b32 s46, s76, 15
    s_lshl_b32 s73, s76, 8
    s_add_u32 s73, s73, {MISC}
    v_lshl_add_u32 v1, v0, 2, s73
    v_mov_b32 v2, {MISC}
    v_and_b32 v113, 15, v0
    v_and_b32 v114, 7, v0
    v_lshlrev_b32 v114, 1, v114
    v_lshlrev_b32 v115, 8, v113
    s_add_u32 s73, s46, {3*8192}
    v_add_u32 v115, s73, v115""")
    for jj in range(4):
        A(f"v_add_u32 v116, {4*jj}, v104\nv_xor_b32 v116, v116, v114\nv_lshl_add_u32 v{4+jj}, v116, 4, v115")
    A(f"""v_lshrrev_b32 v116, 2, v0
    v_and_b32 v117, 7, v116
    v_and_b32 v118, 3, v0
    v_lshlrev_b32 v118, 3, v118
    v_lshl_add_u32 v116, v116, 8, v118
    v_add_u32 v116, s46, v116""")
    for b in range(8):
        A(f"v_xor_b32 v119, {b}, v117\nv_lshl_add_u32 v{8+b}, v119, 5, v116")
    A(f"""v_bfe_u32 v119, v0, 2, 2
    v_lshl_add_u32 v122, v104, 3, v119
    v_lshl_add_u32 v122, v122, 7, v118
    v_add_u32 v122, s46, v122
    v_and_b32 v123, 1, v104
    v_lshl_add_u32 v123, v123, 3, v119
    v_mul_u32_u24 v123, 448, v123
    v_lshrrev_b32 v119, 5, v0
    v_lshl_add_u32 v123, v119, 13, v123
    s_add_u32 s73, s46, 8192
    v_add3_u32 v123, v123, v118, s73""")
    stamp(17, 167)
    A("s_waitcnt vmcnt(3)")
    stamp(18, 167)
    for i in range(8):
        A(f"v_lshlrev_b32 v{72+2*i}, 16, v{64+i}\nv_and_b32 v{73+2*i}, 0xffff0000, v{64+i}")
    A("v_add_f32 v64, v72, v73\nv_add_f32 v65, v74, v75")
    for i in range(2, 8):
        A(f"v_add_f32 v{64+(i&1)}, v{64+(i&1)}, v{72+2*i}\nv_add_f32 v{64+(i&1)}, v{64+(i&1)}, v{73+2*i}") if False else None
    for i in range(4, 16):
        A(f"v_add_f32 v{64+(i&1)}, v{64+(i&1)}, v{72+i}")
    A("v_add_f32 v64, v64, v65")
    allred("v_add_f32", 64, 65)
    A("v_mul_f32 v64, 0x3a800000, v64")
    for i in range(16):
        A(f"v_sub_f32 v{72+i}, v{72+i}, v64")
    A("v_mul_f32 v66, v72, v72\nv_mul_f32 v67, v73, v73")
    for i in range(2, 16):
        A(f"v_fmac_f32 v{66+(i&1)}, v{72+i}, v{72+i}")
    A("v_add_f32 v66, v66, v67")
    allred("v_add_f32", 66, 67)
    A("v_mul_f32 v66, 0x3a800000, v66")
    rnd(64); rnd(66)
    A(f"v_add_f32 v66, {EPS:#x}, v66")
    rnd(66)
    A("v_sqrt_f32 v66, v66")
    rnd(66)
    A("v_rcp_f32 v67, v66\ns_waitcnt vmcnt(0)")
    for i in range(12):
        x = 128 + i
        A(f"""v_lshlrev_b32 v72, 16, v{x}
        v_and_b32 v73, 0xffff0000, v{x}
        v_sub_f32 v72, v72, v64
        v_sub_f32 v73, v73, v64
        v_cvt_pk_bf16_f32 v73, v72, v73
        v_lshlrev_b32 v72, 16, v73
        v_and_b32 v73, 0xffff0000, v73
        v_mul_f32 v74, v72, v67
        v_mul_f32 v75, v73, v67
        v_fma_f32 v72, -v74, v66, v72
        v_fma_f32 v73, -v75, v66, v73
        v_fmac_f32 v74, v72, v67
        v_fmac_f32 v75, v73, v67
        v_cvt_pk_bf16_f32 v{x}, v74, v75""")
    stamp(1, 167)

    def release(val):
        A(f"v_mov_b32 v3, {val}\nds_write_b32 v1, v3 offset:{F_CONS}")

    def cnt_add(off):
        A(f"s_mov_b64 exec, 1\nds_add_u32 v2, v124 offset:{off}\ns_mov_b64 exec, -1")

    def cnt_last(off, skip):
        A(f"s_mov_b64 exec, 1\nds_add_rtn_u32 v3, v2, v124 offset:{off}\ns_waitcnt lgkmcnt(0)")
        A(f"v_readfirstlane_b32 s61, v3\ns_cmp_eq_u32 s61, 3\ns_cbranch_scc0 {skip}")

    def tr_mfma(addr, nblk, blkstep, second, dreg, breg, frag0=64, acc=False, addr_per_blk=False, extra_off=0, rel=None):
        def rd(b):
            a = addr + b if addr_per_blk else addr
            o = extra_off + (0 if addr_per_blk else b * blkstep)
            f = frag0 + 4 * (b % 8)
            A(f"ds_read_b64_tr_b16 v[{f}:{f+1}], v{a} offset:{o}")
            A(f"ds_read_b64_tr_b16 v[{f+2}:{f+3}], v{a} offset:{o+second}")
        issued = min(7, nblk)
        for b in range(issued): rd(b)
        for b in range(nblk):
            A(f"s_waitcnt lgkmcnt({2*(issued-b-1)})")
            if rel is not None and b == nblk - 1: release(rel)
            f = frag0 + 4 * (b % 8)
            d = dreg(b)
            A(f"v_mfma_f32_16x16x32_bf16 v[{d}:{d+3}], v[{f}:{f+3}], v[{breg}:{breg+3}], {'v[%d:%d]' % (d, d+3) if acc else '0'}")
            if issued < nblk:
                rd(issued); issued += 1

    A("v_mov_b32 v124, 1")
    spin(1, F_LAND, 1, 3)
    stamp(2, 167)
    tr_mfma(122, 4, 32, 512, lambda b: 32 + 4*b, 128, frag0=64)
    tr_mfma(122, 4, 32, 512, lambda b: 32 + 4*b, 132, frag0=80, acc=True, extra_off=4096, rel=1)
    A(f"""s_lshl_b32 s73, s76, 8
    s_add_u32 s73, s73, {MISC + QRED}
    v_add_u32 v112, s73, v106""")
    execmask(*N0)
    for b in range(4):
        A(f"ds_write_b128 v112, v[{32+4*b}:{35+4*b}] offset:{b*64}")
    cnt_add(C_A)
    tags_setup()
    A(f"v_mov_b32 v166, {TAGM:#x}")
    stamp(3, 167)
    spin(1, F_LAND, 3, 3)
    stamp(4, 167)
    gu_d = lambda b: 32 + 4*b if b < 8 else 96 + 4*(b - 8)
    tr_mfma(123, 14, 32, 1792, gu_d, 136, rel=3)
    A(f"""v_lshrrev_b32 v125, 4, v0
    v_lshlrev_b32 v125, 4, v125
    s_mul_i32 s73, s76, 896
    s_add_u32 s73, s73, {MISC + HRED}
    v_add_u32 v126, s73, v125""")
    execmask(*N0)
    for b in range(14):
        d = gu_d(b)
        A(f"ds_write_b128 v126, v[{d}:{d+3}] offset:{b*64}")
    cnt_add(C_H)
    stamp(5, 167)
    A("v_mov_b32 v120, 0xff800000\nv_mov_b32 v121, 0")
    A(f"s_mov_b32 s49, 4\ns_mov_b32 s50, {LOG2E:#x}\ns_mov_b32 s51, {SCALE:#x}")

    def v_reads(f0, off=0):
        for b in range(7):
            A(f"ds_read_b64_tr_b16 v[{f0+4*b}:{f0+1+4*b}], v{8+b} offset:{off}\nds_read_b64_tr_b16 v[{f0+2+4*b}:{f0+3+4*b}], v{8+b} offset:{off+4096}")
        A("s_waitcnt lgkmcnt(4)")
        A(f"ds_read_b64_tr_b16 v[{f0+28}:{f0+29}], v15 offset:{off}\nds_read_b64_tr_b16 v[{f0+30}:{f0+31}], v15 offset:{off+4096}")

    A("L_cloop:")
    spin(1, F_LAND, "s49", 3)
    for jj in range(4):
        for sub in range(2):
            f = 64 + 4*(2*jj + sub)
            A(f"ds_read_b128 v[{f}:{f+3}], v{4+jj} offset:{sub*4096}")
    A("s_waitcnt lgkmcnt(0)")
    release("s49")
    for jj in range(4):
        A(f"v_xor_b32 v{4+jj}, 0x4000, v{4+jj}")
    A("s_add_u32 s49, s49, 1\ns_cmp_eq_u32 s49, 19\ns_cbranch_scc1 L_c_qk")
    spin(1, F_LAND, "s49", 3)
    v_reads(128)
    A("s_waitcnt lgkmcnt(0)")
    release("s49")
    for b in range(8):
        A(f"v_xor_b32 v{8+b}, 0x4000, v{8+b}")
    A("s_add_u32 s49, s49, 1\ns_cmp_eq_u32 s49, 6\ns_cbranch_scc1 L_c_getq")
    A("L_c_qk:")
    for jj in range(4):
        for sub in range(2):
            k = 2*jj + sub
            f = 64 + 4*k; d = 96 + 4*sub
            A(f"v_mfma_f32_16x16x32_bf16 v[{d}:{d+3}], v[{f}:{f+3}], v[{16+4*jj}:{19+4*jj}], {'0' if jj == 0 else 'v[%d:%d]' % (d, d+3)}")
    for rep in range(2):
        for i in range(4):
            A(f"v_cvt_pk_bf16_f32 v{104+i}, v{96+2*i}, v{97+2*i}")
        for i in range(4):
            A(f"v_lshlrev_b32 v{96+2*i}, 16, v{104+i}\nv_and_b32 v{97+2*i}, 0xffff0000, v{104+i}")
        if rep == 0:
            for i in range(8):
                A(f"v_mul_f32 v{96+i}, s51, v{96+i}")
    A("""v_max3_f32 v108, v96, v97, v98
    v_max3_f32 v109, v99, v100, v101
    v_max3_f32 v108, v108, v102, v103
    v_max3_f32 v108, v108, v109, v120""")
    xrow("v_max_f32", 108, 109)
    A("""v_sub_f32 v110, v120, v108
    v_mul_f32 v109, s50, v108
    v_mul_f32 v110, s50, v110
    v_cmp_neq_f32 vcc, v120, v108
    v_exp_f32 v110, v110
    v_mov_b32 v120, v108""")
    for i in range(8):
        A(f"v_fma_f32 v{96+i}, v{96+i}, s50, -v109")
    for i in range(8):
        A(f"v_exp_f32 v{96+i}, v{96+i}")
    A("v_mul_f32 v121, v121, v110")
    for i in range(4):
        A(f"v_cvt_pk_bf16_f32 v{104+i}, v{96+2*i}, v{97+2*i}")
    A("""v_add_f32 v96, v96, v97
    v_add_f32 v98, v98, v99
    v_add_f32 v100, v100, v101
    v_add_f32 v102, v102, v103
    v_add_f32 v96, v96, v98
    v_add_f32 v100, v100, v102
    v_add_f32 v96, v96, v100
    v_add_f32 v121, v121, v96
    s_cbranch_vccz L_c_noresc""")
    for r in range(32):
        A(f"v_mul_f32 v{32+r}, v{32+r}, v110")
    A("L_c_noresc:")
    A("s_cmp_eq_u32 s49, 19\ns_cbranch_scc1 L_c_last")
    for b in range(8):
        A(f"v_mfma_f32_16x16x32_bf16 v[{32+4*b}:{35+4*b}], v[{128+4*b}:{131+4*b}], v[104:107], v[{32+4*b}:{35+4*b}]")
    A("s_branch L_cloop")
    A("L_c_getq:")
    A(f"""s_lshl_b32 s47, s64, 2
    s_add_u32 s47, s47, s76
    s_lshl_b32 s47, s47, 10
    s_add_u32 s47, s47, {QF}
    v_lshlrev_b32 v126, 4, v0""")
    A(f"""s_lshl_b32 s73, s76, 9
    s_add_u32 s73, s73, {MISC + QBUF}
    v_lshl_add_u32 v112, v0, 3, s73
    v_and_b32 v113, 7, v0
    v_lshl_add_u32 v113, v113, 8, v125
    v_add_u32 v113, {MISC + QBUF}, v113""")
    spin(1, F_LAND, 6, 3)
    stamp(6, 167)
    for r in range(32):
        A(f"v_mov_b32 v{32+r}, 0")
    poll([f"buffer_load_dwordx4 v[96:99], v126, s[{WS}:{WS+3}], s47 offen sc1"], range(96, 100), 114, words=True, slp=6)
    A("v_mov_b32 v97, v98\nds_write_b64 v112, v[96:97]")
    cnt_add(C_Q)
    spin(2, C_Q, 4, 3)
    for jj in range(4):
        A(f"ds_read_b128 v[{16+4*jj}:{19+4*jj}], v113 offset:{jj*64}")
    A("s_waitcnt lgkmcnt(0)")
    stamp(7, 167)
    A("s_branch L_c_qk")
    A("L_c_last:")
    stamp(8, 167)
    xrow("v_add_f32", 121, 109)
    A(f"""s_lshl_b32 s73, s76, 6
    s_add_u32 s73, s73, {MISC + MLX}
    v_lshl_add_u32 v112, v0, 3, s73
    s_mov_b32 exec_lo, 0xff
    s_mov_b32 exec_hi, 0
    ds_write_b64 v112, v[120:121]""")
    cnt_add(C_ML)
    A(f"""v_lshrrev_b32 v113, 5, v0
    s_lshl_b32 s73, s76, 1
    v_add_u32 v113, s73, v113
    v_lshlrev_b32 v112, 3, v113
    v_add_u32 v112, {MISC + MLX}, v112""")
    spin(2, C_ML, 4, 3)
    for k in range(4):
        A(f"ds_read_b64 v[{96+2*k}:{97+2*k}], v112 offset:{k*64}")
    A(f"""s_lshl_b32 s47, s64, 9
    s_add_u32 s47, s47, s65
    s_lshl_b32 s47, s47, 4
    s_add_u32 s47, s47, {ML}
    v_lshlrev_b32 v114, 10, v113
    s_waitcnt lgkmcnt(0)
    v_max3_f32 v164, v96, v98, v100
    v_max_f32 v164, v164, v102""")
    for k in range(4):
        A(f"v_sub_f32 v{160+k}, v{96+2*k}, v164\nv_mul_f32 v{160+k}, s50, v{160+k}")
    for k in range(4):
        A(f"v_exp_f32 v{160+k}, v{160+k}")
    A("""v_mul_f32 v165, v160, v97
    v_fmac_f32 v165, v161, v99
    v_fmac_f32 v165, v162, v101
    v_fmac_f32 v165, v163, v103
    v_mov_b32 v96, v164
    v_mov_b32 v97, v165
    v_mov_b32 v98, 0
    v_mov_b32 v99, 0""")
    tag(96, 166)
    A("s_mov_b32 exec_lo, 1\ns_mov_b32 exec_hi, 1")
    A(f"buffer_store_dwordx4 v[96:99], v114, s[{WS}:{WS+3}], s47 offen sc1")
    execmask(*FULL)
    A(f"""v_and_b32 v115, 7, v0
    v_mul_u32_u24 v115, 528, v115
    s_add_u32 s73, s46, 8192
    v_add3_u32 v115, v115, v125, s73
    v_and_b32 v117, 31, v0
    v_mul_u32_u24 v116, 528, v113
    v_lshl_add_u32 v116, v117, 4, v116
    v_add_u32 v116, 8192, v116
    v_add_u32 v118, 0x10000, v116
    v_lshrrev_b32 v119, 3, v117
    v_lshl_add_u32 v119, v113, 2, v119
    v_and_b32 v117, 7, v0
    v_lshlrev_b32 v117, 4, v117
    v_lshl_add_u32 v117, v119, 13, v117
    s_lshl_b32 s47, s64, 11
    s_add_u32 s47, s47, s65
    s_lshl_b32 s47, s47, 7
    s_add_u32 s47, s47, {OP}""")
    spin(1, F_LAND, 19, 3)
    stamp(9, 167)
    tr_mfma(8, 8, 0, 4096, lambda b: 32 + 4*b, 104, acc=True, addr_per_blk=True)
    execmask(*NLT8)
    for b in range(8):
        A(f"ds_write_b128 v115, v[{32+4*b}:{35+4*b}] offset:{b*64}")
    cnt_add(C_O)
    spin(2, C_O, 4, 3)
    A("""ds_read_b128 v[64:67], v116
    ds_read_b128 v[68:71], v116 offset:32768
    ds_read_b128 v[72:75], v118
    ds_read_b128 v[76:79], v118 offset:32768
    s_waitcnt lgkmcnt(3)""")
    for r in range(4): A(f"v_mul_f32 v{64+r}, v{64+r}, v160")
    for k in range(1, 4):
        A(f"s_waitcnt lgkmcnt({3-k})")
        for r in range(4): A(f"v_fmac_f32 v{64+r}, v{64+4*k+r}, v{160+k}")
    tag(64, 166)
    A(f"buffer_store_dwordx4 v[64:67], v117, s[{WS}:{WS+3}], s47 offen sc1")
    stamp(10, 167)

    def out_stores(base):
        A(f"""s_lshl_b32 s47, s66, 1
        s_add_u32 s47, s47, s67
        s_lshl_b32 s47, s47, 2
        s_add_u32 s47, s47, s76
        s_lshl_b32 s47, s47, 9
        s_add_u32 s47, s47, {base}""")
    def out_stores2():
        execmask(*N0)
        for b in range(8):
            d = 32 + 4*b
            tag(d, 166)
            A(f"buffer_store_dwordx4 v[{d}:{d+3}], v125, s[{WS}:{WS+3}], s47 offen offset:{64*b} sc1")
        execmask(*FULL)

    A(f"""v_add_u32 v119, {MISC + HBUF}, v125
    s_lshl_b32 s48, s66, 13
    s_lshl_b32 s73, s76, 5
    s_add_u32 s48, s48, s73
    s_add_u32 s48, s48, {OP}
    v_lshlrev_b32 v112, 7, v0
    v_lshrrev_b32 v113, 5, v0
    v_bfe_u32 v114, v0, 4, 1
    v_lshl_add_u32 v113, v114, 1, v113
    s_and_b32 s73, s76, 1
    s_lshl_b32 s73, s73, 5
    s_lshr_b32 s74, s76, 1
    s_lshl_b32 s74, s74, 3
    s_add_u32 s73, s73, s74
    s_add_u32 s73, s73, {MISC + OBUF}
    v_lshl_add_u32 v113, v113, 1, s73
    v_add_u32 v114, {MISC + OBUF}, v125
    v_lshlrev_b32 v115, 2, v0
    v_add_u32 v115, {MISC + WBUF}, v115""")
    out_stores(FI)
    spin(2, C_HR, 1, 3)
    A("ds_read_b128 v[104:107], v119")
    spin(1, F_LAND, 20, 3)
    stamp(11, 167)
    tr_mfma(8, 8, 0, 4096, lambda b: 32 + 4*b, 104, addr_per_blk=True, extra_off=8192)
    out_stores2()
    stamp(12, 167)
    for b in range(8):
        A(f"v_xor_b32 v{8+b}, 0x4000, v{8+b}")
    out_stores(SI)
    spin(2, C_W, 1, 3)
    old = [f"buffer_load_dwordx4 v[96:99], v112, s[{WS}:{WS+3}], s48 offen sc1",
           f"buffer_load_dwordx4 v[100:103], v112, s[{WS}:{WS+3}], s48 offen offset:16 sc1"]
    for t in old: A(t)
    A("ds_read_b32 v128, v115")
    stamp(13, 167)
    spin(1, F_LAND, 21, 3)
    stamp(15, 167)
    v_reads(64)
    poll(old, range(96, 104), 130, first_issued=0)
    stamp(14, 167)
    A("s_waitcnt lgkmcnt(0)")
    for r in range(8): A(f"v_mul_f32 v{96+r}, v{96+r}, v128")
    for i in range(4): A(f"v_permlane32_swap_b32 v{96+2*i}, v{97+2*i}")
    for i in range(4): A(f"v_add_f32 v{96+2*i}, v{96+2*i}, v{97+2*i}")
    A("v_permlane16_swap_b32 v96, v98\nv_permlane16_swap_b32 v100, v102\nv_add_f32 v96, v96, v98\nv_add_f32 v100, v100, v102")
    for m in ("row_ror:8", "row_ror:4", "row_ror:2", "row_ror:1"):
        A(f"v_add_f32_dpp v96, v96, v96 {m} row_mask:0xf bank_mask:0xf\nv_add_f32_dpp v100, v100, v100 {m} row_mask:0xf bank_mask:0xf")
    A("v_cvt_pk_bf16_f32 v96, v96, v100")
    execmask(*N0)
    A("ds_write_b16 v113, v96\nds_write_b16_d16_hi v113, v96 offset:16")
    cnt_add(C_OB)
    spin(2, C_OB, 4, 3)
    A("ds_read_b128 v[104:107], v114\ns_waitcnt lgkmcnt(0)")
    for b in range(8):
        A(f"v_mfma_f32_16x16x32_bf16 v[{32+4*b}:{35+4*b}], v[{64+4*b}:{67+4*b}], v[104:107], 0")
    out_stores2()
    cnt_add(C_PS)
    stamp(16, 167)
    stamp_flush(167, WS)
    A("s_endpgm")

    A("L_P:")
    OUT = 40
    stamp(0, 60)
    A(f"""v_lshlrev_b32 v1, 4, v0
    v_mov_b32 v2, {MISC}
    v_mov_b32 v4, 0""")
    srd(WS, 26, 1 << 28); srd(XS, 4, 2048); srd(OUT, 22, 2048)
    if dbgst: srd(DB, 24, 256)
    A(f"""v_lshrrev_b32 v8, 5, v0
    v_bfe_u32 v9, v0, 4, 1
    v_lshl_add_u32 v8, v9, 1, v8
    v_lshlrev_b32 v8, 1, v8
    s_and_b32 s44, s2, 7
    s_lshl_b32 s44, s44, 5
    s_lshr_b32 s73, s2, 3
    s_or_b32 s44, s44, s73
    s_lshl_b32 s51, s44, 4
    s_lshl_b32 s44, s44, 3
    buffer_load_ushort v9, v8, s[{XS}:{XS+3}], s44 offen
    v_mov_b32 v10, 1""")
    A(f"""s_lshl_b32 s47, s64, 4
    s_add_u32 s47, s47, s68
    s_lshl_b32 s47, s47, 4
    s_add_u32 s47, s47, s69
    s_lshl_b32 s47, s47, 7
    s_add_u32 s49, s47, 16
    v_lshrrev_b32 v5, 2, v0
    v_and_b32 v6, 3, v0
    v_lshlrev_b32 v6, 5, v6
    v_lshl_or_b32 v5, v5, 9, v6
    v_add_u32 v13, {MISC + QRED}, v1
    v_add_u32 v11, {MISC + HRED}, v1
    s_lshl_b32 s48, s72, 3
    s_add_u32 s48, s48, s71
    s_mul_i32 s48, s48, 28672
    s_mul_i32 s73, s70, 896
    s_add_u32 s48, s48, s73
    s_add_u32 s48, s48, {HP}
    s_add_u32 s50, s48, 14336""")
    spin(2, C_A, 4, 3)
    tags_setup()

    def sum4_store(va, step, so, so2, vo):
        for k in range(4):
            A(f"ds_read_b128 v[{16+4*k}:{19+4*k}], v{va} offset:{k*step}")
        A("s_waitcnt lgkmcnt(0)")
        for r in range(4):
            A(f"v_add_f32 v{16+r}, v{16+r}, v{20+r}\nv_add_f32 v{24+r}, v{24+r}, v{28+r}")
        for r in range(4):
            A(f"v_add_f32 v{32+2*r}, v{16+r}, v{24+r}\nv_mov_b32 v{33+2*r}, s84")
        A(f"buffer_store_dwordx4 v[32:35], v{vo}, s[{WS}:{WS+3}], {so} offen sc1")
        A(f"buffer_store_dwordx4 v[36:39], v{vo}, s[{WS}:{WS+3}], {so2} offen sc1")
    A("s_mov_b32 exec_lo, 0xffff\ns_mov_b32 exec_hi, 0")
    sum4_store(13, 256, "s47", "s49", 5)
    stamp(1, 60)
    spin(2, F_LAND, 3, 3)
    A(f"""s_lshl_b32 s47, s2, 9
    s_lshl_b32 s49, s2, 6
    s_add_u32 s49, s49, {QF}
    s_mov_b32 exec_lo, -1
    s_mov_b32 exec_hi, 0""")
    poll([f"buffer_load_dwordx4 v[16:19], v1, s[{WS}:{WS+3}], s47 offen offset:{QP} sc1"], range(16, 20), 20, words=True, slp=6)
    for r in (16, 18): A(f"v_add_f32_dpp v{r}, v{r}, v{r} row_ror:8 row_mask:0xf bank_mask:0xf")
    A("""v_mov_b32 v17, v16
    v_mov_b32 v19, v18
    v_permlane16_swap_b32 v16, v17
    v_permlane16_swap_b32 v18, v19
    v_add_f32 v16, v16, v17
    v_add_f32 v18, v18, v19
    v_cvt_pk_bf16_f32 v16, v16, v18
    v_mov_b32 v17, s84
    v_lshlrev_b32 v18, 3, v0
    s_mov_b32 exec_lo, 0xff
    s_mov_b32 exec_hi, 0""")
    A(f"buffer_store_dwordx2 v[16:17], v18, s[{WS}:{WS+3}], s49 offen sc1")
    stamp(9, 60)
    A("s_lshr_b64 exec, -1, 8")
    spin(2, C_H, 4, 3)
    sum4_store(11, 896, "s48", "s50", 1)
    A("s_mov_b64 exec, -1")
    stamp(2, 60)
    spin(2, C_Q, 4, 3)
    stamp(3, 60)
    A(f"""v_lshrrev_b32 v11, 3, v0
    v_mul_u32_u24 v11, {2*28672}, v11
    v_and_b32 v12, 7, v0
    v_lshl_add_u32 v11, v12, 4, v11
    s_mul_i32 s45, s66, 112
    s_add_u32 s45, s45, {HP}
    s_add_u32 s46, s45, 14336
    s_add_u32 s47, s45, 28672
    s_add_u32 s48, s45, 43008
    s_mov_b32 exec_lo, 0x7f7f7f7f
    s_mov_b32 exec_hi, 0x7f7f7f7f""")
    poll([f"buffer_load_dwordx4 v[{32+8*k+4*h}:{35+8*k+4*h}], v11, s[{WS}:{WS+3}], s{45+2*k+h} offen sc1"
          for k in range(2) for h in range(2)], range(32, 48), 24, slp=16, words=True)
    for r in range(4): A(f"v_add_f32 v{16+r}, v{32+2*r}, v{40+2*r}")
    for r in range(4): A(f"v_add_f32_dpp v{16+r}, v{16+r}, v{16+r} row_ror:8 row_mask:0xf bank_mask:0xf")
    for r in range(4): A(f"v_mov_b32 v{20+r}, v{16+r}")
    for r in range(4): A(f"v_permlane16_swap_b32 v{16+r}, v{20+r}")
    for r in range(4): A(f"v_add_f32 v{16+r}, v{16+r}, v{20+r}")
    for r in range(4): rnd(16 + r)
    for r in range(4): A(f"v_mov_b32 v{20+r}, v{16+r}")
    for r in range(4): A(f"v_permlane32_swap_b32 v{16+r}, v{20+r}")
    for r in range(4):
        silu(16 + r, 24, 25); rnd(16 + r)
        A(f"v_mul_f32 v{16+r}, v{16+r}, v{20+r}")
    A(f"""v_cvt_pk_bf16_f32 v16, v16, v17
    v_cvt_pk_bf16_f32 v17, v18, v19
    v_cmp_eq_u32 vcc, 7, v12
    v_cndmask_b32 v16, v16, v4, vcc
    v_cndmask_b32 v17, v17, v4, vcc
    v_and_b32 v13, 3, v0
    v_lshlrev_b32 v13, 4, v13
    v_lshrrev_b32 v12, 2, v12
    v_lshl_add_u32 v13, v12, 3, v13
    v_add_u32 v13, {MISC + HBUF}, v13
    s_mov_b32 exec_lo, 0xff
    s_mov_b32 exec_hi, 0
    ds_write_b64 v13, v[16:17]
    ds_write_b32 v2, v10 offset:{C_HR}
    s_mov_b64 exec, -1
    s_add_u32 s46, s51, {SI}
    s_add_u32 s45, s51, {FI}
    v_lshlrev_b32 v6, 12, v0
    v_add_u32 v7, 0x40000, v6""")
    stamp(4, 60)

    def inbox(so):
        poll([f"buffer_load_dwordx4 v[16:19], v6, s[{WS}:{WS+3}], {so} offen sc1",
              f"buffer_load_dwordx4 v[20:23], v7, s[{WS}:{WS+3}], {so} offen sc1"], range(16, 24), 24)
        for r in range(4): A(f"v_add_f32 v{16+r}, v{16+r}, v{20+r}")
        A("""v_permlane32_swap_b32 v16, v17
        v_permlane32_swap_b32 v18, v19
        v_add_f32 v16, v16, v17
        v_add_f32 v18, v18, v19
        v_permlane16_swap_b32 v16, v18
        v_add_f32 v16, v16, v18""")
        for m in ("row_ror:8", "row_ror:4", "row_ror:2", "row_ror:1"):
            A(f"v_add_f32_dpp v16, v16, v16 {m} row_mask:0xf bank_mask:0xf")
        rnd(16)

    A(f"""s_lshr_b32 s47, s66, 2
    s_lshl_b32 s47, s47, 10
    s_add_u32 s47, s47, {ML}
    s_mov_b32 s50, {LOG2E:#x}
    v_lshlrev_b32 v13, 2, v0
    v_add_u32 v13, {MISC + WBUF}, v13""")
    if not lonly: controller(DB)
    spin(2, C_ML, 4, 3)
    if touch: A(f"buffer_load_ushort v15, v8, s[{OUT}:{OUT+3}], s44 offen")
    poll([f"buffer_load_dwordx4 v[16:19], v1, s[{WS}:{WS+3}], s47 offen sc1"], range(16, 20), 20, slp=sleep_ml)
    A("v_mov_b32 v18, v16")
    allred("v_max_f32", 18, 19)
    A("v_sub_f32 v16, v16, v18\nv_mul_f32 v16, s50, v16\nv_exp_f32 v16, v16\nv_mul_f32 v17, v17, v16")
    allred("v_add_f32", 17, 19)
    A(f"""v_rcp_f32 v18, v17
    v_fma_f32 v19, -v17, v18, 1.0
    v_fmac_f32 v18, v19, v18
    v_mul_f32 v16, v16, v18
    ds_write_b32 v13, v16
    s_mov_b64 exec, 1
    ds_write_b32 v2, v10 offset:{C_W}
    s_mov_b64 exec, -1""")
    stamp(11, 60)
    spin(2, C_OB, 4, 3)
    stamp(5, 60)
    inbox("s45")
    silu(16, 24, 25); rnd(16)
    A("v_mov_b32 v14, v16\nv_lshlrev_b32 v9, 16, v9")
    stamp(6, 60)
    spin(2, C_PS, 4, 3)
    if sdelay: A(f"s_sleep {sdelay}")
    stamp(7, 60)
    inbox("s46")
    A("v_mul_f32 v16, v16, v14")
    rnd(16)
    A("v_add_f32 v16, v16, v9\nv_cvt_pk_bf16_f32 v16, v16, v16")
    execmask(*N0)
    A(f"buffer_store_short v16, v8, s[{OUT}:{OUT+3}], s44 offen sc1")
    A(f"""s_cmp_lg_u32 s2, 0
    s_cbranch_scc1 L_p_noep
    s_mov_b64 exec, 1
    v_mov_b32 v16, s84
    s_mov_b32 s45, {EP}
    buffer_store_dword v16, v4, s[{WS}:{WS+3}], s45 offen sc1
    L_p_noep:""")
    stamp(8, 60)
    if stamps or dbgst: A("v_writelane_b32 v60, s90, 10")
    if dbgst:
        A("s_mov_b64 exec, 1")
        for slot, k, inv in ((1, 10, 1), (2, 10, 0), (3, 1, 0), (5, 2, 1), (6, 2, 0), (7, 4, 0), (9, 5, 1), (10, 5, 0), (11, 7, 1), (12, 7, 0), (13, 8, 1), (14, 8, 0), (15, 0, 0)):
            A(f"v_readlane_b32 s62, v60, {k}")
            if inv: A("s_not_b32 s62, s62")
            A(f"v_mov_b32 v12, s62\nbuffer_atomic_umax v12, v4, s[{DB}:{DB+3}], 0 offen offset:{4*slot}")
    stamp_flush(60, WS)
    A("L_end:\ns_endpgm")

    bad = A.verify_edges()
    assert not bad, bad
    nv = 168 if stamps else 168
    txt = HEAD + f"; @launch grid=(256,1,1) block=(576,1,1) lds={LDS_BYTES}\n"
    txt += f'.amdgcn_target "amdgcn-amd-amdhsa--gfx950"\n.text\n.globl {KN}\n.p2align 8\n.type {KN},@function\n'
    txt += A.text()
    txt += f""".section .rodata,"a"
.p2align 6
.amdhsa_kernel {KN}
  .amdhsa_next_free_vgpr {nv}
  .amdhsa_next_free_sgpr 96
  .amdhsa_accum_offset {nv}
  .amdhsa_group_segment_fixed_size 0
  .amdhsa_kernarg_size 96
  .amdhsa_user_sgpr_count 2
  .amdhsa_user_sgpr_kernarg_segment_ptr 1
  .amdhsa_system_sgpr_workgroup_id_x 1
  .amdhsa_float_denorm_mode_32 3
.end_amdhsa_kernel
"""
    return txt


if __name__ == "__main__":
    kw = eval("dict(%s)" % (sys.argv[2] if len(sys.argv) > 2 else ""))
    open(sys.argv[1], "w").write(gen(**kw))
```

```python
import sys
sys.path.insert(0, "work")
from asmlib import Asm

KN = "recurrent_scan__gqa_block_cached__swiglu_ffn__decode_kernel"
HEAD = open("recurrent_scan__gqa_block_cached__swiglu_ffn__decode.s.ref").read().split("; Override launch")[0] \
    if __import__("os").path.exists("recurrent_scan__gqa_block_cached__swiglu_ffn__decode.s.ref") else ""

QP, HP, ML, EP, PG, QF, FI, SI, OP = 0x0, 0x20000, 0x90000, 0x98000, 0x99000, 0x9C000, 0xA0000, 0x120000, 0x1A0000
W8 = True
TAGM = 0x3FF
STAMP_OFF = 128 << 20
MISC = 131072
F_LAND, F_CONS = 0, 1024
C_A, C_W, C_H, C_D, C_Q, C_ML, C_O, C_OB, C_HR, C_PF, C_PS = [2048 + 4 * i for i in range(11)]
QRED, QBUF, MLX, HBUF, OBUF, WBUF, HRED = 3072, 4096, 6144, 6400, 6464, 6656, 8192
LDS_BYTES = MISC + 12288
LOG2E = 0x3FB8AA3B
SCALE = 0x3DB504F3
EPS = 0x3727C5AC


def gen(D=5, Dend=8, stamps=False, sleep_poll=2, budget=1 << 20, dbgst=False, touch=True, kvs=8, lonly=0, spin_sleep=0, sleep_ml=4, sdelay=0, ctl=None, u0=3, step=2, pst='', pld='sc1', floor=0):
    A = Asm()
    BUD = "s60"

    def stamp(k, vreg):
        if stamps is True or (stamps == 'min' and vreg == 60 and k == 8) or (dbgst and vreg == 60):
            A(f"s_memrealtime s[62:63]\ns_waitcnt lgkmcnt(0)\nv_writelane_b32 v{vreg}, s62, {k}")

    def stamp_flush(vreg, srd):
        if stamps is True or (stamps and vreg == 60):
            A(f"""s_mov_b64 exec, -1
            s_mul_i32 s62, s2, 9
            s_add_u32 s62, s62, s3
            s_lshl_b32 s62, s62, 8
            s_add_u32 s62, s62, {STAMP_OFF}
            v_lshlrev_b32 v0, 2, v0
            buffer_store_dword v{vreg}, v0, s[{srd}:{srd+3}], s62 offen""")

    def spin(vaddr, off, needv, vt, st="s61", pre=False):
        l0, l1, l2 = A.lab("sp"), A.lab("sp"), A.lab("sp")
        if pre:
            A(f"s_branch {l2}") if False else None
        A(f"{l0}:")
        A(f"ds_read_b32 v{vt}, v{vaddr} offset:{off}")
        A(f"s_waitcnt lgkmcnt(0)")
        A(f"v_readfirstlane_b32 {st}, v{vt}")
        A(f"s_cmp_ge_i32 {st}, {needv}")
        A(f"s_cbranch_scc1 {l1}")
        if spin_sleep: A(f"s_sleep {spin_sleep}")
        A(f"s_sub_u32 {BUD}, {BUD}, 1")
        A(f"s_cbranch_scc0 {l0}")
        A(f"s_mov_b32 {BUD}, 0")
        A(f"{l1}:")

    def srd(base, ptr, size):
        A(f"s_mov_b32 s{base}, s{ptr}\ns_mov_b32 s{base+1}, s{ptr+1}\ns_mov_b32 s{base+2}, {size}\ns_mov_b32 s{base+3}, 0x20000")

    def execmask(lo, hi):
        if lo == 0xFFFFFFFF and hi == 0xFFFFFFFF:
            A("s_mov_b64 exec, -1")
        elif hi == 0 and lo <= 64:
            A(f"s_mov_b64 exec, {lo}")
        else:
            A(f"s_mov_b32 exec_lo, {lo:#x}\ns_mov_b32 exec_hi, {hi:#x}")
    FULL = (0xFFFFFFFF, 0xFFFFFFFF)
    N0 = (0x00010001, 0x00010001)
    NLT8 = (0x00FF00FF, 0x00FF00FF)

    def poll(loads, regs, vt, first_issued=None, slp=None, words=False):
        l0, l1, l2 = A.lab("pl"), A.lab("pl"), A.lab("pl")
        if first_issued is not None: A(f"s_waitcnt vmcnt({first_issued})\ns_branch {l2}")
        A(f"{l0}:")
        for t in loads: A(t)
        A("s_waitcnt vmcnt(0)")
        A(f"{l2}:")
        rs = list(regs)
        if words: rs = rs[1::2]
        for k, r in enumerate(rs):
            A(f"v_xor_b32 v{r}, s{84 if words else 80 + (k & 3)}, v{r}")
        if len(rs) == 2: A(f"v_or_b32 v{vt}, v{rs[0]}, v{rs[1]}")
        else: A(f"v_or3_b32 v{vt}, v{rs[0]}, v{rs[1]}, v{rs[2]}")
        k = 3
        while k < len(rs):
            if k + 1 < len(rs):
                A(f"v_or3_b32 v{vt}, v{vt}, v{rs[k]}, v{rs[k+1]}"); k += 2
            else:
                A(f"v_or_b32 v{vt}, v{vt}, v{rs[k]}"); k += 1
        if not words: A(f"v_and_b32 v{vt}, {TAGM:#x}, v{vt}")
        A(f"v_cmp_ne_u32 vcc, 0, v{vt}")
        A("s_and_b64 vcc, vcc, exec")
        A(f"s_cbranch_scc0 {l1}")
        A("s_mov_b64 exec, vcc")
        slp = sleep_poll if slp is None else slp
        if slp: A(f"s_sleep {slp}")
        A(f"s_sub_u32 {BUD}, {BUD}, 16")
        A(f"s_cbranch_scc0 {l0}")
        A(f"s_mov_b32 {BUD}, 0")
        A(f"{l1}:")
        A("s_mov_b64 exec, -1")

    def tag(r0, vm):
        for k in range(4):
            A(f"v_bfi_b32 v{r0+k}, v{vm}, s{80+k}, v{r0+k}")

    def tags_setup():
        A(f"s_add_u32 s84, s79, 1\ns_and_b32 s80, s84, {TAGM:#x}")
        for k in range(1, 4):
            A(f"s_add_u32 s{80+k}, s80, {256*k}\ns_and_b32 s{80+k}, s{80+k}, {TAGM:#x}")

    def controller(DBs):
        if not ctl: return
        levels = list(dict.fromkeys([D] + [d for d in ctl[0::2] if d != D]))
        A(f"""s_mov_b32 s52, {4 + 2*u0}
        s_and_b32 s53, s2, 7
        s_lshl_b32 s53, s53, 7
        s_add_u32 s53, s53, {PG}
        s_lshr_b32 s55, s2, 3
        s_lshl_b32 s55, s55, 2
        s_add_u32 s55, s55, s53
        s_lshl_b32 s56, s84, 8
        s_mov_b32 exec_lo, -1
        s_mov_b32 exec_hi, 0
        v_lshlrev_b32 v11, 2, v0
        L_ctl:""")
        spin(2, F_LAND, "s52", 3)
        A(f"""buffer_load_dword v12, v11, s[28:31], s53 offen {pld}
        s_add_u32 s57, s56, s52
        v_mov_b32 v15, s57
        s_mov_b32 exec_lo, 1
        buffer_store_dword v15, v4, s[28:31], s55 offen {pst}
        s_mov_b32 exec_lo, -1
        s_waitcnt vmcnt(1)
        v_subrev_u32 v12, s57, v12
        v_cmp_gt_u32 vcc, 32, v12
        s_bcnt1_i32_b32 s61, vcc_lo
        s_mov_b32 s54, {levels.index(ctl[0])}""")
        for t, d in zip(ctl[1::2], ctl[2::2]):
            A(f"s_cmp_ge_u32 s61, {t}\ns_cselect_b32 s54, {levels.index(d)}, s54")
        A(f"v_mov_b32 v12, s54\nds_write_b32 v2, v12 offset:{C_D}")
        A(f"s_add_u32 s52, s52, {step}\ns_cmp_le_u32 s52, 17\ns_cbranch_scc1 L_ctl\ns_mov_b64 exec, -1")

    def allred(op, v, t):
        for m in ("quad_perm:[1,0,3,2]", "quad_perm:[2,3,0,1]", "row_half_mirror", "row_mirror"):
            A(f"{op}_dpp v{v}, v{v}, v{v} {m} row_mask:0xf bank_mask:0xf")
        xrow(op, v, t)

    def xrow(op, v, t):
        A(f"v_mov_b32 v{t}, v{v}\nv_permlane16_swap_b32 v{v}, v{t}\n{op} v{v}, v{v}, v{t}")
        A(f"v_mov_b32 v{t}, v{v}\nv_permlane32_swap_b32 v{v}, v{t}\n{op} v{v}, v{v}, v{t}")

    def rnd(v, t=None):
        A(f"v_cvt_pk_bf16_f32 v{v}, v{v}, v{v}\nv_and_b32 v{v}, 0xffff0000, v{v}")

    def silu(v, t0, t1):
        A(f"""v_mul_f32 v{t0}, 0xbfb8aa3b, v{v}
        v_exp_f32 v{t0}, v{t0}
        v_add_f32 v{t0}, 1.0, v{t0}
        v_rcp_f32 v{t1}, v{t0}
        v_mul_f32 v{v}, v{v}, v{t1}""")

    A(f"{KN}:")
    if stamps or dbgst or floor: A("s_memrealtime s[90:91]")
    A("s_cmp_ge_u32 s2, 256\ns_cbranch_scc1 L_end")
    A("s_load_dwordx16 s[4:19], s[0:1], 0\ns_load_dwordx8 s[20:27], s[0:1], 64")
    A(f"v_lshlrev_b32 v2, 2, v0\nv_add_u32 v2, {MISC}, v2\nv_mov_b32 v3, 0\nds_write_b32 v2, v3")
    A("v_lshrrev_b32 v1, 6, v0\nv_and_b32 v0, 63, v0\nv_readfirstlane_b32 s3, v1")
    A(f"s_mov_b32 {BUD}, {budget}")
    A("""s_lshr_b32 s64, s2, 6
    s_and_b32 s65, s2, 63
    s_lshr_b32 s68, s65, 3
    s_and_b32 s72, s2, 1
    s_lshl_b32 s73, s72, 3
    s_or_b32 s68, s68, s73
    s_bfe_u32 s69, s2, 0x20001
    s_waitcnt lgkmcnt(0)
    s_barrier
    s_cmp_ge_u32 s3, 4
    s_cbranch_scc1 L_notL""")

    def more_idx():
        A("""s_lshr_b32 s66, s2, 4
        s_lshl_b32 s66, s66, 3
        s_and_b32 s73, s2, 7
        s_or_b32 s66, s66, s73
        s_bfe_u32 s67, s2, 0x10003
        s_bfe_u32 s70, s2, 0x40003
        s_lshr_b32 s71, s2, 7
        s_lshl_b32 s71, s71, 2
        s_or_b32 s71, s71, s69""")

    SWQ, SGU, SK, SV, SDN, SWO = 28, 32, 36, 40, 44, 48
    A("s_setprio 3")
    stamp(0, 20)
    A("""v_lshrrev_b32 v2, 3, v0
    v_lshlrev_b32 v2, 13, v2
    v_and_b32 v3, 7, v0
    v_lshl_or_b32 v2, v3, 4, v2
    s_lshl_b32 s52, s69, 2
    s_add_u32 s52, s52, s3
    s_lshl_b32 s52, s52, 19
    s_lshl_b32 s73, s64, 11
    s_add_u32 s52, s52, s73
    s_lshl_b32 s73, s68, 7
    s_add_u32 s52, s52, s73
    s_lshl_b32 s57, s3, 15""")
    srd(SWQ, 10, 1 << 23)
    st = dict(issued=0, notified=0)
    ends = []

    def notify(val):
        A(f"v_mov_b32 v9, {val}\nds_write_b32 v8, v9 offset:{F_LAND}")

    def pace(Dt, first_ok=0):
        P = st["issued"]
        if P >= Dt:
            A(f"s_waitcnt vmcnt({Dt-1})")
            while st["notified"] < len(ends) and ends[st["notified"]][0] <= P - Dt:
                notify(ends[st["notified"]][1]); st["notified"] += 1

    def l_setup_rest():
        more_idx()
        A("""s_cmp_eq_u32 s72, 0
        s_cselect_b32 s32, s16, s18
        s_cselect_b32 s33, s17, s19
        s_mov_b32 s34, 7340032
        s_mov_b32 s35, 0x20000""")
        srd(SK, 6, 1 << 26); srd(SDN, 20, 7340032); srd(SWO, 12, 1 << 23)
        A(f"""s_lshl_b32 s53, s71, 2
        s_add_u32 s53, s53, s3
        s_mul_i32 s53, s53, {32*7168}
        s_mul_i32 s73, s70, 448
        s_add_u32 s53, s53, s73
        s_lshl_b32 s54, s65, 2
        s_add_u32 s54, s54, s3
        s_lshr_b32 s73, s54, {kvs}
        s_lshl_b32 s73, s73, {kvs + 3}
        s_and_b32 s54, s54, {(1 << kvs) - 1}
        s_add_u32 s54, s54, s73
        s_lshl_b32 s54, s54, 13
        s_lshl_b32 s73, s64, 24
        s_add_u32 s54, s54, s73
        s_lshl_b32 s73, s67, 2
        s_add_u32 s73, s73, s3
        s_lshl_b32 s73, s73, 8
        s_mul_i32 s55, s66, {28*2048}
        s_add_u32 s55, s55, s73
        s_lshl_b32 s56, s66, 16
        s_add_u32 s56, s56, s73
        v_lshlrev_b32 v3, 4, v0
        v_add_u32 v4, 6720, v3
        v_cmp_gt_u32 vcc, 28, v0
        v_cndmask_b32 v3, v4, v3, vcc
        v_lshrrev_b32 v10, 4, v0
        v_and_b32 v11, 15, v0
        v_lshlrev_b32 v12, 1, v10
        v_xor_b32 v12, v11, v12
        v_xor_b32 v13, 8, v12
        v_lshlrev_b32 v12, 4, v12
        v_lshlrev_b32 v13, 4, v13
        v_lshl_or_b32 v4, v10, 8, v12
        v_lshl_or_b32 v5, v10, 8, v13
        v_lshl_or_b32 v6, v10, 11, v12
        v_lshl_or_b32 v7, v10, 11, v13
        s_lshl_b32 s73, s3, 8
        s_add_u32 s73, s73, {MISC}
        v_lshl_add_u32 v8, v0, 2, s73""")

    for i in range(8):
        pace(D)
        A(f"s_add_u32 m0, s57, {i*1024}")
        A(f"buffer_load_dwordx4 v2, s[{SWQ}:{SWQ+3}], s52 offen nt lds")
        A(f"s_add_u32 s52, s52, 65536")
        st["issued"] += 1
        if i == D - 1:
            l_setup_rest()
            stamp(1, 20)
    ends.append((7, 1))
    A("s_lshr_b64 exec, -1, 8")
    for t in (1, 2):
        for i in range(8):
            pace(D)
            A(f"s_add_u32 m0, s57, {t*8192 + i*896}")
            A(f"buffer_load_dwordx4 v3, s[{SGU}:{SGU+3}], s53 offen nt lds")
            A(f"s_add_u32 s53, s53, 14336")
            st["issued"] += 1
        ends.append((st["issued"] - 1, t + 1))
    A("s_mov_b64 exec, -1")
    assert st["notified"] == 2 and D <= 8
    stamp(2, 20)
    levels = [D] + ([d for d in ctl[0::2] if d != D] if ctl else [])
    levels = list(dict.fromkeys(levels))
    A(f"s_mov_b32 s58, 3\ns_add_u32 s59, s57, {3*8192}\nv_mov_b32 v11, {MISC}\nds_read_b32 v10, v8 offset:{F_CONS}\nds_read_b32 v12, v11 offset:{C_D}")
    A("L_lloop:")
    A("s_waitcnt lgkmcnt(0)")
    if stamps is True: A("s_add_u32 m0, s58, 8\nv_writelane_b32 v20, s62, m0")
    A("v_readfirstlane_b32 s61, v10\nv_readfirstlane_b32 s77, v12\ns_sub_u32 s75, s58, 3\ns_cmp_ge_i32 s61, s75\ns_cbranch_scc1 L_lok")
    spin(8, F_CONS, "s75", 10)
    A("L_lok:\ns_mov_b32 m0, s59\ns_add_u32 s74, s54, 4096")
    for k in range(1, len(levels)):
        A(f"s_cmp_eq_u32 s77, {k}\ns_cbranch_scc1 L_lb{k}")
    for k, Dk in enumerate(levels):
        A(f"L_lb{k}:")
        for i in range(8):
            A(f"s_waitcnt vmcnt({Dk-1})")
            if i == Dk - 1: notify("s58")
            if i == 4: A("s_add_u32 m0, s59, 4096")
            A(f"buffer_load_dwordx4 v{4+(i&1)}, s[{SK}:{SK+3}], {'s54' if i < 4 else 's74'} offen offset:{(i&3)*1024} nt lds")
        if k < len(levels) - 1: A("s_branch L_lnext")
    A("L_lnext:")
    if stamps is True: A("s_memrealtime s[62:63]")
    A(f"""ds_read_b32 v10, v8 offset:{F_CONS}
    ds_read_b32 v12, v11 offset:{C_D}
    s_add_u32 s58, s58, 1
    s_and_b32 s59, s58, 3
    s_lshl_b32 s59, s59, 13
    s_add_u32 s59, s59, s57
    s_bitcmp1_b32 s58, 0
    s_cselect_b32 s{SK}, s6, s8
    s_cselect_b32 s{SK+1}, s7, s9
    s_cselect_b32 s73, {8192 << kvs}, 0
    s_add_u32 s54, s54, s73
    s_cmp_lt_u32 s58, 19
    s_cbranch_scc1 L_lloop""")
    stamp(3, 20)
    st["issued"] = 1000; st["notified"] = 0
    ends[:] = [(999, 19)]
    for t, n, sr, so in ((19, 7, SDN, 55), (20, 8, SWO, 56)):
        ok = A.lab("ok")
        A("s_waitcnt lgkmcnt(0)")
        A(f"v_readfirstlane_b32 s61, v10\ns_cmp_ge_i32 s61, {t-3}\ns_cbranch_scc1 {ok}")
        spin(8, F_CONS, t - 3, 10)
        A(f"{ok}:")
        for i in range(n):
            pace(Dend if (st["issued"] - 1000) >= 0 else D)
            A(f"s_add_u32 m0, s57, {(t&3)*8192 + i*1024}")
            A(f"buffer_load_dwordx4 v{6+(i&1)}, s[{sr}:{sr+3}], s{so} offen nt lds")
            A(f"s_add_u32 s{so}, s{so}, 8192")
            st["issued"] += 1
        ends.append((st["issued"] - 1, t + 1))
        if t == 19: A(f"ds_read_b32 v10, v8 offset:{F_CONS}")
    while st["notified"] < len(ends):
        e, val = ends[st["notified"]]
        A(f"s_waitcnt vmcnt({st['issued'] - 1 - e})")
        notify(val); st["notified"] += 1
        stamp(4 + val - 19, 20)
    if stamps is True:
        srd(28, 26, 1 << 28)
        stamp_flush(20, 28)
    A("s_endpgm")

    A("L_notL:")
    A(f"s_load_dword s79, s[26:27], {EP:#x}")
    more_idx()
    if lonly:
        A("s_cmp_ge_u32 s3, 8\ns_cbranch_scc1 L_Px")
        if lonly == 1:
            A(f"s_sub_u32 s76, s3, 4\ns_lshl_b32 s73, s76, 8\ns_add_u32 s73, s73, {MISC}\nv_lshl_add_u32 v1, v0, 2, s73\nv_mov_b32 v3, 100\nds_write_b32 v1, v3 offset:{F_CONS}\ns_endpgm")
        else:
            A(f"s_sub_u32 s76, s3, 4\ns_lshl_b32 s73, s76, 8\ns_add_u32 s73, s73, {MISC}\nv_lshl_add_u32 v1, v0, 2, s73\ns_mov_b32 s49, 1\nL_xl:")
            spin(1, F_LAND, "s49", 3)
            A(f"v_mov_b32 v3, s49\nds_write_b32 v1, v3 offset:{F_CONS}\ns_add_u32 s49, s49, 1\ns_cmp_lt_u32 s49, 22\ns_cbranch_scc1 L_xl\ns_endpgm")
        A("L_Px:")
        srd(28, 26, 1 << 28); srd(36, 24, 256)
        A(f"v_mov_b32 v2, {MISC}\nv_mov_b32 v4, 0\ns_waitcnt lgkmcnt(0)")
        tags_setup()
        controller(36)
        A(f"s_cmp_lg_u32 s2, 0\ns_cbranch_scc1 L_px2\ns_mov_b64 exec, 1\nv_mov_b32 v16, s84\ns_mov_b32 s45, {EP}\nbuffer_store_dword v16, v4, s[28:31], s45 offen sc1\nL_px2:")
        stamp(8, 60)
        A("v_writelane_b32 v60, s90, 10")
        stamp_flush(60, 28)
        A("s_endpgm")
    A("s_cmp_ge_u32 s3, 8\ns_cbranch_scc1 L_P")
    WS, XS, DB = 28, 32, 36
    stamp(0, 167)
    A(f"""s_sub_u32 s76, s3, 4
    v_lshrrev_b32 v104, 4, v0
    s_lshl_b32 s40, s69, 2
    s_add_u32 s40, s40, s76
    s_lshl_b32 s40, s40, 7
    s_lshl_b32 s41, s71, 2
    s_add_u32 s41, s41, s76
    s_lshl_b32 s41, s41, 6
    v_lshlrev_b32 v106, 4, v104
    v_lshlrev_b32 v107, 4, v0
""")
    srd(XS, 4, 2048)
    A(f"""buffer_load_dwordx4 v[64:67], v107, s[{XS}:{XS+3}], 0 offen
    buffer_load_dwordx4 v[68:71], v107, s[{XS}:{XS+3}], 0 offen offset:1024
    buffer_load_dwordx4 v[128:131], v106, s[{XS}:{XS+3}], s40 offen
    buffer_load_dwordx4 v[132:135], v106, s[{XS}:{XS+3}], s40 offen offset:64
    buffer_load_dwordx4 v[136:139], v106, s[{XS}:{XS+3}], s41 offen""")
    srd(WS, 26, 1 << 28)
    A(f"""s_lshl_b32 s46, s76, 15
    s_lshl_b32 s73, s76, 8
    s_add_u32 s73, s73, {MISC}
    v_lshl_add_u32 v1, v0, 2, s73
    v_mov_b32 v2, {MISC}
    v_and_b32 v113, 15, v0
    v_and_b32 v114, 7, v0
    v_lshlrev_b32 v114, 1, v114
    v_lshlrev_b32 v115, 8, v113
    s_add_u32 s73, s46, {3*8192}
    v_add_u32 v115, s73, v115""")
    for jj in range(4):
        A(f"v_add_u32 v116, {4*jj}, v104\nv_xor_b32 v116, v116, v114\nv_lshl_add_u32 v{4+jj}, v116, 4, v115")
    A(f"""v_lshrrev_b32 v116, 2, v0
    v_and_b32 v117, 7, v116
    v_and_b32 v118, 3, v0
    v_lshlrev_b32 v118, 3, v118
    v_lshl_add_u32 v116, v116, 8, v118
    v_add_u32 v116, s46, v116""")
    for b in range(8):
        A(f"v_xor_b32 v119, {b}, v117\nv_lshl_add_u32 v{8+b}, v119, 5, v116")
    A(f"""v_bfe_u32 v119, v0, 2, 2
    v_lshl_add_u32 v122, v104, 3, v119
    v_lshl_add_u32 v122, v122, 7, v118
    v_add_u32 v122, s46, v122
    v_and_b32 v123, 1, v104
    v_lshl_add_u32 v123, v123, 3, v119
    v_mul_u32_u24 v123, 448, v123
    v_lshrrev_b32 v119, 5, v0
    v_lshl_add_u32 v123, v119, 13, v123
    s_add_u32 s73, s46, 8192
    v_add3_u32 v123, v123, v118, s73""")
    stamp(17, 167)
    A("s_waitcnt vmcnt(3)")
    stamp(18, 167)
    for i in range(8):
        A(f"v_lshlrev_b32 v{72+2*i}, 16, v{64+i}\nv_and_b32 v{73+2*i}, 0xffff0000, v{64+i}")
    A("v_add_f32 v64, v72, v73\nv_add_f32 v65, v74, v75")
    for i in range(2, 8):
        A(f"v_add_f32 v{64+(i&1)}, v{64+(i&1)}, v{72+2*i}\nv_add_f32 v{64+(i&1)}, v{64+(i&1)}, v{73+2*i}") if False else None
    for i in range(4, 16):
        A(f"v_add_f32 v{64+(i&1)}, v{64+(i&1)}, v{72+i}")
    A("v_add_f32 v64, v64, v65")
    allred("v_add_f32", 64, 65)
    A("v_mul_f32 v64, 0x3a800000, v64")
    for i in range(16):
        A(f"v_sub_f32 v{72+i}, v{72+i}, v64")
    A("v_mul_f32 v66, v72, v72\nv_mul_f32 v67, v73, v73")
    for i in range(2, 16):
        A(f"v_fmac_f32 v{66+(i&1)}, v{72+i}, v{72+i}")
    A("v_add_f32 v66, v66, v67")
    allred("v_add_f32", 66, 67)
    A("v_mul_f32 v66, 0x3a800000, v66")
    rnd(64); rnd(66)
    A(f"v_add_f32 v66, {EPS:#x}, v66")
    rnd(66)
    A("v_sqrt_f32 v66, v66")
    rnd(66)
    A("v_rcp_f32 v67, v66\ns_waitcnt vmcnt(0)")
    for i in range(12):
        x = 128 + i
        A(f"""v_lshlrev_b32 v72, 16, v{x}
        v_and_b32 v73, 0xffff0000, v{x}
        v_sub_f32 v72, v72, v64
        v_sub_f32 v73, v73, v64
        v_cvt_pk_bf16_f32 v73, v72, v73
        v_lshlrev_b32 v72, 16, v73
        v_and_b32 v73, 0xffff0000, v73
        v_mul_f32 v74, v72, v67
        v_mul_f32 v75, v73, v67
        v_fma_f32 v72, -v74, v66, v72
        v_fma_f32 v73, -v75, v66, v73
        v_fmac_f32 v74, v72, v67
        v_fmac_f32 v75, v73, v67
        v_cvt_pk_bf16_f32 v{x}, v74, v75""")
    stamp(1, 167)

    def release(val):
        A(f"v_mov_b32 v3, {val}\nds_write_b32 v1, v3 offset:{F_CONS}")

    def cnt_add(off):
        A(f"s_mov_b64 exec, 1\nds_add_u32 v2, v124 offset:{off}\ns_mov_b64 exec, -1")

    def cnt_last(off, skip):
        A(f"s_mov_b64 exec, 1\nds_add_rtn_u32 v3, v2, v124 offset:{off}\ns_waitcnt lgkmcnt(0)")
        A(f"v_readfirstlane_b32 s61, v3\ns_cmp_eq_u32 s61, 3\ns_cbranch_scc0 {skip}")

    def tr_mfma(addr, nblk, blkstep, second, dreg, breg, frag0=64, acc=False, addr_per_blk=False, extra_off=0, rel=None):
        def rd(b):
            a = addr + b if addr_per_blk else addr
            o = extra_off + (0 if addr_per_blk else b * blkstep)
            f = frag0 + 4 * (b % 8)
            A(f"ds_read_b64_tr_b16 v[{f}:{f+1}], v{a} offset:{o}")
            A(f"ds_read_b64_tr_b16 v[{f+2}:{f+3}], v{a} offset:{o+second}")
        issued = min(7, nblk)
        for b in range(issued): rd(b)
        for b in range(nblk):
            A(f"s_waitcnt lgkmcnt({2*(issued-b-1)})")
            if rel is not None and b == nblk - 1: release(rel)
            f = frag0 + 4 * (b % 8)
            d = dreg(b)
            A(f"v_mfma_f32_16x16x32_bf16 v[{d}:{d+3}], v[{f}:{f+3}], v[{breg}:{breg+3}], {'v[%d:%d]' % (d, d+3) if acc else '0'}")
            if issued < nblk:
                rd(issued); issued += 1

    A("v_mov_b32 v124, 1")
    spin(1, F_LAND, 1, 3)
    stamp(2, 167)
    tr_mfma(122, 4, 32, 512, lambda b: 32 + 4*b, 128, frag0=64)
    tr_mfma(122, 4, 32, 512, lambda b: 32 + 4*b, 132, frag0=80, acc=True, extra_off=4096, rel=1)
    A(f"""s_lshl_b32 s73, s76, 8
    s_add_u32 s73, s73, {MISC + QRED}
    v_add_u32 v112, s73, v106""")
    execmask(*N0)
    for b in range(4):
        A(f"ds_write_b128 v112, v[{32+4*b}:{35+4*b}] offset:{b*64}")
    cnt_add(C_A)
    tags_setup()
    A(f"v_mov_b32 v166, {TAGM:#x}")
    stamp(3, 167)
    spin(1, F_LAND, 3, 3)
    stamp(4, 167)
    gu_d = lambda b: 32 + 4*b if b < 8 else 96 + 4*(b - 8)
    tr_mfma(123, 14, 32, 1792, gu_d, 136, rel=3)
    A(f"""v_lshrrev_b32 v125, 4, v0
    v_lshlrev_b32 v125, 4, v125
    s_mul_i32 s73, s76, 896
    s_add_u32 s73, s73, {MISC + HRED}
    v_add_u32 v126, s73, v125""")
    execmask(*N0)
    for b in range(14):
        d = gu_d(b)
        A(f"ds_write_b128 v126, v[{d}:{d+3}] offset:{b*64}")
    cnt_add(C_H)
    stamp(5, 167)
    A("v_mov_b32 v120, 0xff800000\nv_mov_b32 v121, 0")
    A(f"s_mov_b32 s49, 4\ns_mov_b32 s50, {LOG2E:#x}\ns_mov_b32 s51, {SCALE:#x}")

    def v_reads(f0, off=0):
        for b in range(7):
            A(f"ds_read_b64_tr_b16 v[{f0+4*b}:{f0+1+4*b}], v{8+b} offset:{off}\nds_read_b64_tr_b16 v[{f0+2+4*b}:{f0+3+4*b}], v{8+b} offset:{off+4096}")
        A("s_waitcnt lgkmcnt(4)")
        A(f"ds_read_b64_tr_b16 v[{f0+28}:{f0+29}], v15 offset:{off}\nds_read_b64_tr_b16 v[{f0+30}:{f0+31}], v15 offset:{off+4096}")

    A("L_cloop:")
    spin(1, F_LAND, "s49", 3)
    for jj in range(4):
        for sub in range(2):
            f = 64 + 4*(2*jj + sub)
            A(f"ds_read_b128 v[{f}:{f+3}], v{4+jj} offset:{sub*4096}")
    A("s_waitcnt lgkmcnt(0)")
    release("s49")
    for jj in range(4):
        A(f"v_xor_b32 v{4+jj}, 0x4000, v{4+jj}")
    A("s_add_u32 s49, s49, 1\ns_cmp_eq_u32 s49, 19\ns_cbranch_scc1 L_c_qk")
    spin(1, F_LAND, "s49", 3)
    v_reads(128)
    A("s_waitcnt lgkmcnt(0)")
    release("s49")
    for b in range(8):
        A(f"v_xor_b32 v{8+b}, 0x4000, v{8+b}")
    A("s_add_u32 s49, s49, 1\ns_cmp_eq_u32 s49, 6\ns_cbranch_scc1 L_c_getq")
    A("L_c_qk:")
    for jj in range(4):
        for sub in range(2):
            k = 2*jj + sub
            f = 64 + 4*k; d = 96 + 4*sub
            A(f"v_mfma_f32_16x16x32_bf16 v[{d}:{d+3}], v[{f}:{f+3}], v[{16+4*jj}:{19+4*jj}], {'0' if jj == 0 else 'v[%d:%d]' % (d, d+3)}")
    for rep in range(2):
        for i in range(4):
            A(f"v_cvt_pk_bf16_f32 v{104+i}, v{96+2*i}, v{97+2*i}")
        for i in range(4):
            A(f"v_lshlrev_b32 v{96+2*i}, 16, v{104+i}\nv_and_b32 v{97+2*i}, 0xffff0000, v{104+i}")
        if rep == 0:
            for i in range(8):
                A(f"v_mul_f32 v{96+i}, s51, v{96+i}")
    A("""v_max3_f32 v108, v96, v97, v98
    v_max3_f32 v109, v99, v100, v101
    v_max3_f32 v108, v108, v102, v103
    v_max3_f32 v108, v108, v109, v120""")
    xrow("v_max_f32", 108, 109)
    A("""v_sub_f32 v110, v120, v108
    v_mul_f32 v109, s50, v108
    v_mul_f32 v110, s50, v110
    v_cmp_neq_f32 vcc, v120, v108
    v_exp_f32 v110, v110
    v_mov_b32 v120, v108""")
    for i in range(8):
        A(f"v_fma_f32 v{96+i}, v{96+i}, s50, -v109")
    for i in range(8):
        A(f"v_exp_f32 v{96+i}, v{96+i}")
    A("v_mul_f32 v121, v121, v110")
    for i in range(4):
        A(f"v_cvt_pk_bf16_f32 v{104+i}, v{96+2*i}, v{97+2*i}")
    A("""v_add_f32 v96, v96, v97
    v_add_f32 v98, v98, v99
    v_add_f32 v100, v100, v101
    v_add_f32 v102, v102, v103
    v_add_f32 v96, v96, v98
    v_add_f32 v100, v100, v102
    v_add_f32 v96, v96, v100
    v_add_f32 v121, v121, v96
    s_cbranch_vccz L_c_noresc""")
    for r in range(32):
        A(f"v_mul_f32 v{32+r}, v{32+r}, v110")
    A("L_c_noresc:")
    A("s_cmp_eq_u32 s49, 19\ns_cbranch_scc1 L_c_last")
    for b in range(8):
        A(f"v_mfma_f32_16x16x32_bf16 v[{32+4*b}:{35+4*b}], v[{128+4*b}:{131+4*b}], v[104:107], v[{32+4*b}:{35+4*b}]")
    A("s_branch L_cloop")
    A("L_c_getq:")
    A(f"""s_lshl_b32 s47, s64, 2
    s_add_u32 s47, s47, s76
    s_lshl_b32 s47, s47, 10
    s_add_u32 s47, s47, {QF}
    v_lshlrev_b32 v126, 4, v0""")
    A(f"""s_lshl_b32 s73, s76, 9
    s_add_u32 s73, s73, {MISC + QBUF}
    v_lshl_add_u32 v112, v0, 3, s73
    v_and_b32 v113, 7, v0
    v_lshl_add_u32 v113, v113, 8, v125
    v_add_u32 v113, {MISC + QBUF}, v113""")
    spin(1, F_LAND, 6, 3)
    stamp(6, 167)
    for r in range(32):
        A(f"v_mov_b32 v{32+r}, 0")
    poll([f"buffer_load_dwordx4 v[96:99], v126, s[{WS}:{WS+3}], s47 offen sc1"], range(96, 100), 114, words=True, slp=6)
    A("v_mov_b32 v97, v98\nds_write_b64 v112, v[96:97]")
    cnt_add(C_Q)
    spin(2, C_Q, 4, 3)
    for jj in range(4):
        A(f"ds_read_b128 v[{16+4*jj}:{19+4*jj}], v113 offset:{jj*64}")
    A("s_waitcnt lgkmcnt(0)")
    stamp(7, 167)
    A("s_branch L_c_qk")
    A("L_c_last:")
    stamp(8, 167)
    xrow("v_add_f32", 121, 109)
    A(f"""s_lshl_b32 s73, s76, 6
    s_add_u32 s73, s73, {MISC + MLX}
    v_lshl_add_u32 v112, v0, 3, s73
    s_mov_b32 exec_lo, 0xff
    s_mov_b32 exec_hi, 0
    ds_write_b64 v112, v[120:121]""")
    cnt_add(C_ML)
    A(f"""v_lshrrev_b32 v113, 5, v0
    s_lshl_b32 s73, s76, 1
    v_add_u32 v113, s73, v113
    v_lshlrev_b32 v112, 3, v113
    v_add_u32 v112, {MISC + MLX}, v112""")
    spin(2, C_ML, 4, 3)
    for k in range(4):
        A(f"ds_read_b64 v[{96+2*k}:{97+2*k}], v112 offset:{k*64}")
    A(f"""s_lshl_b32 s47, s64, 9
    s_add_u32 s47, s47, s65
    s_lshl_b32 s47, s47, 4
    s_add_u32 s47, s47, {ML}
    v_lshlrev_b32 v114, 10, v113
    s_waitcnt lgkmcnt(0)
    v_max3_f32 v164, v96, v98, v100
    v_max_f32 v164, v164, v102""")
    for k in range(4):
        A(f"v_sub_f32 v{160+k}, v{96+2*k}, v164\nv_mul_f32 v{160+k}, s50, v{160+k}")
    for k in range(4):
        A(f"v_exp_f32 v{160+k}, v{160+k}")
    A("""v_mul_f32 v165, v160, v97
    v_fmac_f32 v165, v161, v99
    v_fmac_f32 v165, v162, v101
    v_fmac_f32 v165, v163, v103
    v_mov_b32 v96, v164
    v_mov_b32 v97, v165
    v_mov_b32 v98, 0
    v_mov_b32 v99, 0""")
    tag(96, 166)
    A("s_mov_b32 exec_lo, 1\ns_mov_b32 exec_hi, 1")
    A(f"buffer_store_dwordx4 v[96:99], v114, s[{WS}:{WS+3}], s47 offen sc1")
    execmask(*FULL)
    A(f"""v_and_b32 v115, 7, v0
    v_mul_u32_u24 v115, 528, v115
    s_add_u32 s73, s46, 8192
    v_add3_u32 v115, v115, v125, s73
    v_and_b32 v117, 31, v0
    v_mul_u32_u24 v116, 528, v113
    v_lshl_add_u32 v116, v117, 4, v116
    v_add_u32 v116, 8192, v116
    v_add_u32 v118, 0x10000, v116
    v_lshrrev_b32 v119, 3, v117
    v_lshl_add_u32 v119, v113, 2, v119
    v_and_b32 v117, 7, v0
    v_lshlrev_b32 v117, 4, v117
    v_lshl_add_u32 v117, v119, 13, v117
    s_lshl_b32 s47, s64, 11
    s_add_u32 s47, s47, s65
    s_lshl_b32 s47, s47, 7
    s_add_u32 s47, s47, {OP}""")
    spin(1, F_LAND, 19, 3)
    stamp(9, 167)
    tr_mfma(8, 8, 0, 4096, lambda b: 32 + 4*b, 104, acc=True, addr_per_blk=True)
    execmask(*NLT8)
    for b in range(8):
        A(f"ds_write_b128 v115, v[{32+4*b}:{35+4*b}] offset:{b*64}")
    cnt_add(C_O)
    spin(2, C_O, 4, 3)
    A("""ds_read_b128 v[64:67], v116
    ds_read_b128 v[68:71], v116 offset:32768
    ds_read_b128 v[72:75], v118
    ds_read_b128 v[76:79], v118 offset:32768
    s_waitcnt lgkmcnt(3)""")
    for r in range(4): A(f"v_mul_f32 v{64+r}, v{64+r}, v160")
    for k in range(1, 4):
        A(f"s_waitcnt lgkmcnt({3-k})")
        for r in range(4): A(f"v_fmac_f32 v{64+r}, v{64+4*k+r}, v{160+k}")
    tag(64, 166)
    A(f"buffer_store_dwordx4 v[64:67], v117, s[{WS}:{WS+3}], s47 offen sc1")
    stamp(10, 167)

    def out_stores(base):
        A(f"""s_lshl_b32 s47, s66, 1
        s_add_u32 s47, s47, s67
        s_lshl_b32 s47, s47, 2
        s_add_u32 s47, s47, s76
        s_lshl_b32 s47, s47, 9
        s_add_u32 s47, s47, {base}""")
    def out_stores2():
        execmask(*N0)
        for b in range(8):
            d = 32 + 4*b
            tag(d, 166)
            A(f"buffer_store_dwordx4 v[{d}:{d+3}], v125, s[{WS}:{WS+3}], s47 offen offset:{64*b} sc1")
        execmask(*FULL)

    A(f"""v_add_u32 v119, {MISC + HBUF}, v125
    s_lshl_b32 s48, s66, 13
    s_lshl_b32 s73, s76, 5
    s_add_u32 s48, s48, s73
    s_add_u32 s48, s48, {OP}
    v_lshlrev_b32 v112, 7, v0
    v_lshrrev_b32 v113, 5, v0
    v_bfe_u32 v114, v0, 4, 1
    v_lshl_add_u32 v113, v114, 1, v113
    s_and_b32 s73, s76, 1
    s_lshl_b32 s73, s73, 5
    s_lshr_b32 s74, s76, 1
    s_lshl_b32 s74, s74, 3
    s_add_u32 s73, s73, s74
    s_add_u32 s73, s73, {MISC + OBUF}
    v_lshl_add_u32 v113, v113, 1, s73
    v_add_u32 v114, {MISC + OBUF}, v125
    v_lshlrev_b32 v115, 2, v0
    v_add_u32 v115, {MISC + WBUF}, v115""")
    out_stores(FI)
    spin(2, C_HR, 1, 3)
    A("ds_read_b128 v[104:107], v119")
    spin(1, F_LAND, 20, 3)
    stamp(11, 167)
    tr_mfma(8, 8, 0, 4096, lambda b: 32 + 4*b, 104, addr_per_blk=True, extra_off=8192)
    out_stores2()
    stamp(12, 167)
    for b in range(8):
        A(f"v_xor_b32 v{8+b}, 0x4000, v{8+b}")
    out_stores(SI)
    spin(2, C_W, 1, 3)
    old = [f"buffer_load_dwordx4 v[96:99], v112, s[{WS}:{WS+3}], s48 offen sc1",
           f"buffer_load_dwordx4 v[100:103], v112, s[{WS}:{WS+3}], s48 offen offset:16 sc1"]
    for t in old: A(t)
    A("ds_read_b32 v128, v115")
    stamp(13, 167)
    spin(1, F_LAND, 21, 3)
    stamp(15, 167)
    v_reads(64)
    poll(old, range(96, 104), 130, first_issued=0)
    stamp(14, 167)
    A("s_waitcnt lgkmcnt(0)")
    for r in range(8): A(f"v_mul_f32 v{96+r}, v{96+r}, v128")
    for i in range(4): A(f"v_permlane32_swap_b32 v{96+2*i}, v{97+2*i}")
    for i in range(4): A(f"v_add_f32 v{96+2*i}, v{96+2*i}, v{97+2*i}")
    A("v_permlane16_swap_b32 v96, v98\nv_permlane16_swap_b32 v100, v102\nv_add_f32 v96, v96, v98\nv_add_f32 v100, v100, v102")
    for m in ("row_ror:8", "row_ror:4", "row_ror:2", "row_ror:1"):
        A(f"v_add_f32_dpp v96, v96, v96 {m} row_mask:0xf bank_mask:0xf\nv_add_f32_dpp v100, v100, v100 {m} row_mask:0xf bank_mask:0xf")
    A("v_cvt_pk_bf16_f32 v96, v96, v100")
    execmask(*N0)
    A("ds_write_b16 v113, v96\nds_write_b16_d16_hi v113, v96 offset:16")
    cnt_add(C_OB)
    spin(2, C_OB, 4, 3)
    A("ds_read_b128 v[104:107], v114\ns_waitcnt lgkmcnt(0)")
    for b in range(8):
        A(f"v_mfma_f32_16x16x32_bf16 v[{32+4*b}:{35+4*b}], v[{64+4*b}:{67+4*b}], v[104:107], 0")
    out_stores2()
    cnt_add(C_PS)
    stamp(16, 167)
    stamp_flush(167, WS)
    A("s_endpgm")

    A("L_P:")
    OUT = 40
    stamp(0, 60)
    A(f"""v_lshlrev_b32 v1, 4, v0
    v_mov_b32 v2, {MISC}
    v_mov_b32 v4, 0""")
    srd(WS, 26, 1 << 28); srd(XS, 4, 2048); srd(OUT, 22, 2048)
    if dbgst: srd(DB, 24, 256)
    A(f"""v_lshrrev_b32 v8, 5, v0
    v_bfe_u32 v9, v0, 4, 1
    v_lshl_add_u32 v8, v9, 1, v8
    v_lshlrev_b32 v8, 1, v8
    s_and_b32 s44, s2, 7
    s_lshl_b32 s44, s44, 5
    s_lshr_b32 s73, s2, 3
    s_or_b32 s44, s44, s73
    s_lshl_b32 s51, s44, 4
    s_lshl_b32 s44, s44, 3
    buffer_load_ushort v9, v8, s[{XS}:{XS+3}], s44 offen
    v_mov_b32 v10, 1""")
    A(f"""s_lshl_b32 s47, s64, 4
    s_add_u32 s47, s47, s68
    s_lshl_b32 s47, s47, 4
    s_add_u32 s47, s47, s69
    s_lshl_b32 s47, s47, 7
    s_add_u32 s49, s47, 16
    v_lshrrev_b32 v5, 2, v0
    v_and_b32 v6, 3, v0
    v_lshlrev_b32 v6, 5, v6
    v_lshl_or_b32 v5, v5, 9, v6
    v_add_u32 v13, {MISC + QRED}, v1
    v_add_u32 v11, {MISC + HRED}, v1
    s_lshl_b32 s48, s72, 3
    s_add_u32 s48, s48, s71
    s_mul_i32 s48, s48, 28672
    s_mul_i32 s73, s70, 896
    s_add_u32 s48, s48, s73
    s_add_u32 s48, s48, {HP}
    s_add_u32 s50, s48, 14336""")
    spin(2, C_A, 4, 3)
    tags_setup()

    def sum4_store(va, step, so, so2, vo):
        for k in range(4):
            A(f"ds_read_b128 v[{16+4*k}:{19+4*k}], v{va} offset:{k*step}")
        A("s_waitcnt lgkmcnt(0)")
        for r in range(4):
            A(f"v_add_f32 v{16+r}, v{16+r}, v{20+r}\nv_add_f32 v{24+r}, v{24+r}, v{28+r}")
        for r in range(4):
            A(f"v_add_f32 v{32+2*r}, v{16+r}, v{24+r}\nv_mov_b32 v{33+2*r}, s84")
        A(f"buffer_store_dwordx4 v[32:35], v{vo}, s[{WS}:{WS+3}], {so} offen sc1")
        A(f"buffer_store_dwordx4 v[36:39], v{vo}, s[{WS}:{WS+3}], {so2} offen sc1")
    A("s_mov_b32 exec_lo, 0xffff\ns_mov_b32 exec_hi, 0")
    sum4_store(13, 256, "s47", "s49", 5)
    stamp(1, 60)
    spin(2, F_LAND, 3, 3)
    A(f"""s_lshl_b32 s47, s2, 9
    s_lshl_b32 s49, s2, 6
    s_add_u32 s49, s49, {QF}
    s_mov_b32 exec_lo, -1
    s_mov_b32 exec_hi, 0""")
    poll([f"buffer_load_dwordx4 v[16:19], v1, s[{WS}:{WS+3}], s47 offen offset:{QP} sc1"], range(16, 20), 20, words=True, slp=6)
    for r in (16, 18): A(f"v_add_f32_dpp v{r}, v{r}, v{r} row_ror:8 row_mask:0xf bank_mask:0xf")
    A("""v_mov_b32 v17, v16
    v_mov_b32 v19, v18
    v_permlane16_swap_b32 v16, v17
    v_permlane16_swap_b32 v18, v19
    v_add_f32 v16, v16, v17
    v_add_f32 v18, v18, v19
    v_cvt_pk_bf16_f32 v16, v16, v18
    v_mov_b32 v17, s84
    v_lshlrev_b32 v18, 3, v0
    s_mov_b32 exec_lo, 0xff
    s_mov_b32 exec_hi, 0""")
    A(f"buffer_store_dwordx2 v[16:17], v18, s[{WS}:{WS+3}], s49 offen sc1")
    stamp(9, 60)
    A("s_lshr_b64 exec, -1, 8")
    spin(2, C_H, 4, 3)
    sum4_store(11, 896, "s48", "s50", 1)
    A("s_mov_b64 exec, -1")
    stamp(2, 60)
    spin(2, C_Q, 4, 3)
    stamp(3, 60)
    A(f"""v_lshrrev_b32 v11, 3, v0
    v_mul_u32_u24 v11, {2*28672}, v11
    v_and_b32 v12, 7, v0
    v_lshl_add_u32 v11, v12, 4, v11
    s_mul_i32 s45, s66, 112
    s_add_u32 s45, s45, {HP}
    s_add_u32 s46, s45, 14336
    s_add_u32 s47, s45, 28672
    s_add_u32 s48, s45, 43008
    s_mov_b32 exec_lo, 0x7f7f7f7f
    s_mov_b32 exec_hi, 0x7f7f7f7f""")
    poll([f"buffer_load_dwordx4 v[{32+8*k+4*h}:{35+8*k+4*h}], v11, s[{WS}:{WS+3}], s{45+2*k+h} offen sc1"
          for k in range(2) for h in range(2)], range(32, 48), 24, slp=16, words=True)
    for r in range(4): A(f"v_add_f32 v{16+r}, v{32+2*r}, v{40+2*r}")
    for r in range(4): A(f"v_add_f32_dpp v{16+r}, v{16+r}, v{16+r} row_ror:8 row_mask:0xf bank_mask:0xf")
    for r in range(4): A(f"v_mov_b32 v{20+r}, v{16+r}")
    for r in range(4): A(f"v_permlane16_swap_b32 v{16+r}, v{20+r}")
    for r in range(4): A(f"v_add_f32 v{16+r}, v{16+r}, v{20+r}")
    for r in range(4): rnd(16 + r)
    for r in range(4): A(f"v_mov_b32 v{20+r}, v{16+r}")
    for r in range(4): A(f"v_permlane32_swap_b32 v{16+r}, v{20+r}")
    for r in range(4):
        silu(16 + r, 24, 25); rnd(16 + r)
        A(f"v_mul_f32 v{16+r}, v{16+r}, v{20+r}")
    A(f"""v_cvt_pk_bf16_f32 v16, v16, v17
    v_cvt_pk_bf16_f32 v17, v18, v19
    v_cmp_eq_u32 vcc, 7, v12
    v_cndmask_b32 v16, v16, v4, vcc
    v_cndmask_b32 v17, v17, v4, vcc
    v_and_b32 v13, 3, v0
    v_lshlrev_b32 v13, 4, v13
    v_lshrrev_b32 v12, 2, v12
    v_lshl_add_u32 v13, v12, 3, v13
    v_add_u32 v13, {MISC + HBUF}, v13
    s_mov_b32 exec_lo, 0xff
    s_mov_b32 exec_hi, 0
    ds_write_b64 v13, v[16:17]
    ds_write_b32 v2, v10 offset:{C_HR}
    s_mov_b64 exec, -1
    s_add_u32 s46, s51, {SI}
    s_add_u32 s45, s51, {FI}
    v_lshlrev_b32 v6, 12, v0
    v_add_u32 v7, 0x40000, v6""")
    stamp(4, 60)

    def inbox(so):
        poll([f"buffer_load_dwordx4 v[16:19], v6, s[{WS}:{WS+3}], {so} offen sc1",
              f"buffer_load_dwordx4 v[20:23], v7, s[{WS}:{WS+3}], {so} offen sc1"], range(16, 24), 24)
        for r in range(4): A(f"v_add_f32 v{16+r}, v{16+r}, v{20+r}")
        A("""v_permlane32_swap_b32 v16, v17
        v_permlane32_swap_b32 v18, v19
        v_add_f32 v16, v16, v17
        v_add_f32 v18, v18, v19
        v_permlane16_swap_b32 v16, v18
        v_add_f32 v16, v16, v18""")
        for m in ("row_ror:8", "row_ror:4", "row_ror:2", "row_ror:1"):
            A(f"v_add_f32_dpp v16, v16, v16 {m} row_mask:0xf bank_mask:0xf")
        rnd(16)

    A(f"""s_lshr_b32 s47, s66, 2
    s_lshl_b32 s47, s47, 10
    s_add_u32 s47, s47, {ML}
    s_mov_b32 s50, {LOG2E:#x}
    v_lshlrev_b32 v13, 2, v0
    v_add_u32 v13, {MISC + WBUF}, v13""")
    if not lonly: controller(DB)
    spin(2, C_ML, 4, 3)
    if touch: A(f"buffer_load_ushort v15, v8, s[{OUT}:{OUT+3}], s44 offen")
    poll([f"buffer_load_dwordx4 v[16:19], v1, s[{WS}:{WS+3}], s47 offen sc1"], range(16, 20), 20, slp=sleep_ml)
    A("v_mov_b32 v18, v16")
    allred("v_max_f32", 18, 19)
    A("v_sub_f32 v16, v16, v18\nv_mul_f32 v16, s50, v16\nv_exp_f32 v16, v16\nv_mul_f32 v17, v17, v16")
    allred("v_add_f32", 17, 19)
    A(f"""v_rcp_f32 v18, v17
    v_fma_f32 v19, -v17, v18, 1.0
    v_fmac_f32 v18, v19, v18
    v_mul_f32 v16, v16, v18
    ds_write_b32 v13, v16
    s_mov_b64 exec, 1
    ds_write_b32 v2, v10 offset:{C_W}
    s_mov_b64 exec, -1""")
    stamp(11, 60)
    spin(2, C_OB, 4, 3)
    stamp(5, 60)
    inbox("s45")
    silu(16, 24, 25); rnd(16)
    A("v_mov_b32 v14, v16\nv_lshlrev_b32 v9, 16, v9")
    stamp(6, 60)
    spin(2, C_PS, 4, 3)
    if sdelay: A(f"s_sleep {sdelay}")
    stamp(7, 60)
    inbox("s46")
    A("v_mul_f32 v16, v16, v14")
    rnd(16)
    A("v_add_f32 v16, v16, v9\nv_cvt_pk_bf16_f32 v16, v16, v16")
    execmask(*N0)
    A(f"buffer_store_short v16, v8, s[{OUT}:{OUT+3}], s44 offen sc1")
    A(f"""s_cmp_lg_u32 s2, 0
    s_cbranch_scc1 L_p_noep
    s_mov_b64 exec, 1
    v_mov_b32 v16, s84
    s_mov_b32 s45, {EP}
    buffer_store_dword v16, v4, s[{WS}:{WS+3}], s45 offen sc1
    L_p_noep:""")
    if floor:
        A(f"L_floor:\ns_memrealtime s[62:63]\ns_waitcnt lgkmcnt(0)\ns_sub_u32 s62, s62, s90\ns_cmp_lt_u32 s62, {floor}\ns_cbranch_scc1 L_floor")
    stamp(8, 60)
    if stamps or dbgst: A("v_writelane_b32 v60, s90, 10")
    if dbgst:
        A("s_mov_b64 exec, 1")
        for slot, k, inv in ((1, 10, 1), (2, 10, 0), (3, 1, 0), (5, 2, 1), (6, 2, 0), (7, 4, 0), (9, 5, 1), (10, 5, 0), (11, 7, 1), (12, 7, 0), (13, 8, 1), (14, 8, 0), (15, 0, 0)):
            A(f"v_readlane_b32 s62, v60, {k}")
            if inv: A("s_not_b32 s62, s62")
            A(f"v_mov_b32 v12, s62\nbuffer_atomic_umax v12, v4, s[{DB}:{DB+3}], 0 offen offset:{4*slot}")
    stamp_flush(60, WS)
    A("L_end:\ns_endpgm")

    bad = A.verify_edges()
    assert not bad, bad
    nv = 168 if stamps else 168
    txt = HEAD + f"; @launch grid=(256,1,1) block=(576,1,1) lds={LDS_BYTES}\n"
    txt += f'.amdgcn_target "amdgcn-amd-amdhsa--gfx950"\n.text\n.globl {KN}\n.p2align 8\n.type {KN},@function\n'
    txt += A.text()
    txt += f""".section .rodata,"a"
.p2align 6
.amdhsa_kernel {KN}
  .amdhsa_next_free_vgpr {nv}
  .amdhsa_next_free_sgpr 96
  .amdhsa_accum_offset {nv}
  .amdhsa_group_segment_fixed_size 0
  .amdhsa_kernarg_size 96
  .amdhsa_user_sgpr_count 2
  .amdhsa_user_sgpr_kernarg_segment_ptr 1
  .amdhsa_system_sgpr_workgroup_id_x 1
  .amdhsa_float_denorm_mode_32 3
.end_amdhsa_kernel
"""
    return txt


if __name__ == "__main__":
    kw = eval("dict(%s)" % (sys.argv[2] if len(sys.argv) > 2 else ""))
    open(sys.argv[1], "w").write(gen(**kw))
```

```python
import re

TRANS = ("v_exp_f32", "v_log_f32", "v_rcp_f32", "v_rsq_f32", "v_sqrt_f32", "v_sin_f32", "v_cos_f32")
NO_DST_S = ("s_cmp", "s_cbranch", "s_waitcnt", "s_nop", "s_barrier", "s_sleep", "s_setprio", "s_endpgm",
            "s_branch", "s_bitcmp")
REG = re.compile(r"(?<![\w.])(-?|abs\()?([vsa])(\d+|\[(\d+):(\d+)\])(?![\w])|\b(vcc|exec_lo|exec_hi|exec|m0|vcc_lo|vcc_hi)\b")


def regs_of(tok):
    out = []
    for m in REG.finditer(tok):
        if m.group(6):
            n = m.group(6)
            if n.startswith("vcc"):
                out.append(("s", "vcc"))
            elif n.startswith("exec"):
                out.append(("s", "exec"))
            else:
                out.append(("s", n))
        else:
            cls = m.group(2)
            if m.group(4) is not None:
                out += [(cls, i) for i in range(int(m.group(4)), int(m.group(5)) + 1)]
            else:
                out.append((cls, int(m.group(3))))
    return out


class I:
    def __init__(self, text):
        self.text = text
        self.label = None
        t = text.split(";")[0].strip()
        self.ws = 1
        self.kind = "other"
        self.w = set(); self.r = set(); self.rA = set(); self.rC = set(); self.data = set()
        self.mn = ""
        self.target = None
        if not t:
            self.kind = "none"; self.ws = 0; return
        if t.endswith(":"):
            self.kind = "label"; self.label = t[:-1]; self.ws = 0; return
        if t.startswith("."):
            self.kind = "dir"; self.ws = 0; return
        p = t.split(None, 1)
        mn = p[0]; self.mn = mn
        rest = p[1] if len(p) > 1 else ""
        rest_nomod = re.sub(r"\b(quad_perm|op_sel|op_sel_hi|neg_lo|neg_hi):\[[^\]]*\]", "", rest)
        ops = [o.strip() for o in rest_nomod.split(",")] if rest_nomod else []
        R = lambda lst: set(x for o in lst for x in regs_of(o))
        self.dpp = bool(re.search(r"\b(quad_perm|row_shr|row_shl|row_ror|row_mirror|row_half_mirror|row_bcast|wave_shr|wave_ror)", rest))
        if mn == "s_nop":
            self.kind = "nop"; self.ws = int(ops[0], 0) + 1
        elif mn.startswith("v_mfma"):
            self.kind = "mfma"
            self.w = R(ops[:1]); self.rA = R(ops[1:3]); self.rC = R(ops[3:4]); self.r = self.rA | self.rC
            assert "16x16x32" in mn or "16x16x16" in mn, "pass count table only for 4-pass MFMA"
        elif mn.startswith("v_"):
            self.kind = "valu"
            self.trans = mn.replace("_e32", "").replace("_e64", "") in TRANS
            if mn.startswith("v_permlane"):
                self.w = R(ops[:2]); self.r = R(ops[:2])
            elif re.match(r"v_(add|sub|subrev)_co_|v_(addc|subb)_co_|v_div_scale|v_mad_u64", mn):
                self.w = R(ops[:2]); self.r = R(ops[2:])
            elif re.match(r"v_(fmac|mac|dot2c|writelane|pk_fmac)", mn):
                self.w = R(ops[:1]); self.r = R(ops)
            elif mn == "v_nop":
                pass
            else:
                self.w = R(ops[:1]); self.r = R(ops[1:])
            assert not mn.startswith("v_cmpx") and not mn.startswith("v_dot")
        elif mn.startswith("ds_"):
            self.kind = "ds"
            if mn.startswith("ds_read") or "_rtn" in mn or "permute" in mn or "swizzle" in mn:
                self.w = R(ops[:1]); self.r = R(ops[1:])
            else:
                self.r = R(ops)
        elif mn.startswith("buffer_") or mn.startswith("global_"):
            self.kind = "vmem"
            self.lds = bool(re.search(r"\blds\b", rest)) or "_lds_" in mn
            if mn.startswith("buffer_load") and not self.lds:
                self.w = R(ops[:1]); self.r = R(ops[1:])
            elif mn.startswith("buffer_atomic") and re.search(r"\bsc0\b", rest):
                self.w = R(ops[:1]); self.r = R(ops)
            elif mn.startswith("buffer_"):
                self.r = R(ops)
                if re.search(r"store_dwordx[34]", mn):
                    self.data = R(ops[:1])
            else:
                raise ValueError("unsupported " + mn)
            if self.lds:
                self.r.add(("s", "m0"))
        elif mn.startswith("s_"):
            self.kind = "salu"
            if mn.startswith("s_load") or mn.startswith("s_memrealtime") or mn.startswith("s_memtime"):
                self.kind = "smem"
                self.w = R(ops[:1]); self.r = R(ops[1:])
            elif any(mn.startswith(x) for x in NO_DST_S):
                self.r = R(ops)
                if mn.startswith("s_cbranch") or mn == "s_branch":
                    self.target = ops[0]
            else:
                self.w = R(ops[:1]); self.r = R(ops[1:])
        else:
            raise ValueError("cannot parse: " + text)


def need(p, c):
    n = 0
    vw = set(x for x in p.w if x[0] != "s")
    sw = set(x for x in p.w if x[0] == "s")
    if p.kind == "valu":
        if vw & c.r:
            if c.kind == "valu" and c.mn.startswith(("v_readlane", "v_readfirstlane")): n = max(n, 1)
            if c.kind == "valu" and (c.dpp or c.mn.startswith("v_permlane")): n = max(n, 2)
            if c.kind == "mfma": n = max(n, 2)
            if p.trans and c.kind == "valu" and not c.trans: n = max(n, 1)
            if p.trans and c.kind in ("ds", "vmem"): n = max(n, 1)
        if sw & c.r:
            if c.kind == "valu":
                n = max(n, 4 if c.mn.startswith(("v_readlane", "v_writelane")) else 2)
            if c.kind == "vmem": n = max(n, 5)
    if p.kind == "mfma":
        if c.kind == "mfma":
            if p.w & c.rA: n = max(n, 8)
            if p.w & c.rC and p.w != c.rC: n = max(n, 6)
            if p.w & c.w and not (p.w & c.rC): n = max(n, 8)
        elif c.kind in ("valu", "ds", "vmem"):
            if p.w & (c.r | c.w): n = max(n, 8)
        if c.kind == "valu" and p.rC & c.w: n = max(n, 3)
    if p.kind == "salu" and ("s", "m0") in p.w and c.kind == "vmem" and c.lds: n = max(n, 1)
    if p.kind == "vmem" and p.data and (p.data & c.w):
        n = max(n, 2 if c.kind in ("valu", "mfma") else 1)
    return n


def size_of(c):
    if c.kind in ("label", "dir", "none"): return 0
    if c.kind in ("mfma", "ds", "vmem", "smem"): return 8
    t = c.text.split(";")[0]
    lit = False
    for m in re.finditer(r"(?<![\w\[:])(-?0x[0-9a-fA-F]+|-?\d+)(?![\w\]:.])", t.split(None, 1)[1] if " " in t.strip() else ""):
        v = int(m.group(1), 0)
        if not -16 <= v <= 64: lit = True
    if c.kind == "salu" or c.kind == "nop":
        if c.mn.startswith(("s_cbranch", "s_branch", "s_waitcnt", "s_sleep", "s_nop", "s_setprio")): return 4
        return 8 if lit else 4
    if c.dpp or lit: return 8
    if re.match(r"v_(mov|add|sub|subrev|mul|max|min|and|or|xor|lshlrev|lshrrev|exp|rcp|sqrt|fmac|cndmask|readfirstlane|permlane|cmp)_", c.mn) \
            and not re.match(r"v_(add3|max3|or3|mul_lo)", c.mn): return 4
    return 8


class Asm:
    def __init__(self):
        self.ins = []
        self.uid = 0
        self.pads = 0
        self.hop = None
        self.nhop = 0

    def hops_on(self, spacing):
        self.hop = [spacing, spacing]

    def hops_off(self):
        self.hop = None

    def hops_close(self, target):
        for i in self.ins:
            if i.target == f"L_hop{self.nhop}":
                i.text = f"s_cbranch_execz {target}"; i.target = target

    def lab(self, base):
        self.uid += 1
        return f"L{base}_{self.uid}"

    def __call__(self, text):
        for line in text.split("\n"):
            line = line.strip()
            if not line:
                continue
            c = I(line)
            if self.hop is not None and c.kind not in ("label", "dir", "none"):
                if self.hop[1] >= self.hop[0]:
                    self.ins.append(I(f"L_hop{self.nhop}:"))
                    self.nhop += 1
                    self.ins.append(I(f"s_cbranch_execz L_hop{self.nhop}"))
                    self.hop[1] = 4
                self.hop[1] += size_of(c)
            if c.kind not in ("label", "dir", "none", "nop"):
                d = 0; pad = 0
                for p in reversed(self.ins):
                    if d >= 10: break
                    if p.mn in ("s_branch", "s_endpgm"): break
                    if p.kind not in ("label", "dir", "none"):
                        pad = max(pad, need(p, c) - d)
                    d += p.ws
                if pad > 0:
                    self.ins.append(I(f"s_nop {pad-1}"))
                    self.pads += 1
            self.ins.append(c)

    def verify_edges(self):
        pos = {i.label: k for k, i in enumerate(self.ins) if i.kind == "label"}
        bad = []
        for k, b in enumerate(self.ins):
            if b.target is None or b.mn == "s_cbranch_execz": continue
            t = pos[b.target]
            df = 0
            for c in self.ins[t:]:
                if df >= 10: break
                if c.kind not in ("label", "dir", "none", "nop"):
                    d = df
                    for p in reversed(self.ins[:k + 1]):
                        if d >= 10: break
                        if p is not b and p.mn in ("s_branch", "s_endpgm"): break
                        if p.kind not in ("label", "dir", "none") and p is not b and need(p, c) > d:
                            bad.append((p.text, c.text, need(p, c), d))
                        d += p.ws
                df += c.ws
                if c.mn in ("s_branch", "s_endpgm"): break
        return bad

    def text(self):
        out = []
        for i in self.ins:
            out.append(i.text if i.kind in ("label", "dir") else "    " + i.text)
        return "\n".join(out) + "\n"
```

```python
import sys
sys.path.insert(0, "work")
from asmlib import Asm

KN = "recurrent_scan__gqa_block_cached__swiglu_ffn__decode_kernel"
HEAD = open("recurrent_scan__gqa_block_cached__swiglu_ffn__decode.s.ref").read().split("; Override launch")[0] \
    if __import__("os").path.exists("recurrent_scan__gqa_block_cached__swiglu_ffn__decode.s.ref") else ""

QP, HP, ML, EP, PG, QF, FI, SI, OP = 0x0, 0x20000, 0x90000, 0x98000, 0x99000, 0x9C000, 0xA0000, 0x120000, 0x1A0000
HP2 = True
W8 = True
TAGM = 0x3FF
STAMP_OFF = 128 << 20
MISC = 131072
F_LAND, F_CONS = 0, 1024
C_A, C_W, C_H, C_D, C_Q, C_ML, C_O, C_OB, C_HR, C_PF, C_PS = [2048 + 4 * i for i in range(11)]
QRED, QBUF, MLX, HBUF, OBUF, WBUF, HRED = 3072, 4096, 6144, 6400, 6464, 6656, 8192
LDS_BYTES = MISC + 12288
LOG2E = 0x3FB8AA3B
SCALE = 0x3DB504F3
EPS = 0x3727C5AC


def gen(D=5, Dend=8, stamps=False, sleep_poll=0, budget=1 << 20, dbgst=False, touch=True, kvs=8, lonly=0, spin_sleep=0, sleep_ml=12, sdelay=0, ctl=None, u0=3, step=2, pst='', pld='sc1', floor=0, tq1=3, tq2=6, th=11, skip='', Dend1=None, n1=7, wsoff=0, pre='', warm=0, trim=True, prio=True, ftrig='ps', odelay=0):
    A = Asm()
    BUD = "s60"

    def stamp(k, vreg):
        if stamps is True or (stamps == 'min' and vreg == 60 and k == 8) or (dbgst and vreg == 60):
            A(f"s_memrealtime s[62:63]\ns_waitcnt lgkmcnt(0)\nv_writelane_b32 v{vreg}, s62, {k}")

    def stamp_flush(vreg, srd):
        if stamps is True or (stamps and vreg == 60):
            A(f"""s_mov_b64 exec, -1
            s_mul_i32 s62, s2, 9
            s_add_u32 s62, s62, s3
            s_lshl_b32 s62, s62, 8
            s_add_u32 s62, s62, {STAMP_OFF - wsoff}
            v_lshlrev_b32 v0, 2, v0
            buffer_store_dword v{vreg}, v0, s[{srd}:{srd+3}], s62 offen""")

    def spin(vaddr, off, needv, vt, st="s61", pre=False, also=()):
        l0, l1, l2 = A.lab("sp"), A.lab("sp"), A.lab("sp")
        if pre:
            A(f"s_branch {l2}") if False else None
        A(f"{l0}:")
        A(f"ds_read_b32 v{vt}, v{vaddr} offset:{off}")
        for t in also: A(t)
        A(f"s_waitcnt lgkmcnt(0)")
        A(f"v_readfirstlane_b32 {st}, v{vt}")
        A(f"s_cmp_ge_i32 {st}, {needv}")
        A(f"s_cbranch_scc1 {l1}")
        if spin_sleep: A(f"s_sleep {spin_sleep}")
        A(f"s_sub_u32 {BUD}, {BUD}, 1")
        A(f"s_cbranch_scc0 {l0}")
        A(f"s_mov_b32 {BUD}, 0")
        A(f"{l1}:")

    def srd(base, ptr, size):
        A(f"s_mov_b32 s{base}, s{ptr}\ns_mov_b32 s{base+1}, s{ptr+1}\ns_mov_b32 s{base+2}, {size}\ns_mov_b32 s{base+3}, 0x20000")

    def execmask(lo, hi):
        if lo == 0xFFFFFFFF and hi == 0xFFFFFFFF:
            A("s_mov_b64 exec, -1")
        elif hi == 0 and lo <= 64:
            A(f"s_mov_b64 exec, {lo}")
        else:
            A(f"s_mov_b32 exec_lo, {lo:#x}\ns_mov_b32 exec_hi, {hi:#x}")
    FULL = (0xFFFFFFFF, 0xFFFFFFFF)
    N0 = (0x00010001, 0x00010001)
    NLT8 = (0x00FF00FF, 0x00FF00FF)

    def poll(loads, regs, vt, first_issued=None, slp=None, words=False, cnt=None):
        l0, l1, l2 = A.lab("pl"), A.lab("pl"), A.lab("pl")
        if cnt and stamps is True: A("s_mov_b32 s85, 0")
        if first_issued is not None: A(f"s_waitcnt vmcnt({first_issued})\ns_branch {l2}")
        A(f"{l0}:")
        for t in loads: A(t)
        A("s_waitcnt vmcnt(0)")
        A(f"{l2}:")
        if cnt and stamps is True: A("s_add_u32 s85, s85, 1")
        rs = list(regs)
        if words: rs = rs[1::2]
        for k, r in enumerate(rs):
            A(f"v_xor_b32 v{r}, s{84 if words else 80 + (k & 3)}, v{r}")
        if len(rs) == 2: A(f"v_or_b32 v{vt}, v{rs[0]}, v{rs[1]}")
        else: A(f"v_or3_b32 v{vt}, v{rs[0]}, v{rs[1]}, v{rs[2]}")
        k = 3
        while k < len(rs):
            if k + 1 < len(rs):
                A(f"v_or3_b32 v{vt}, v{vt}, v{rs[k]}, v{rs[k+1]}"); k += 2
            else:
                A(f"v_or_b32 v{vt}, v{vt}, v{rs[k]}"); k += 1
        if not words: A(f"v_and_b32 v{vt}, {TAGM:#x}, v{vt}")
        A(f"v_cmp_ne_u32 vcc, 0, v{vt}")
        A(f"s_cbranch_vccz {l1}")
        A("s_mov_b64 exec, vcc")
        slp = sleep_poll if slp is None else slp
        if slp: A(f"s_sleep {slp}")
        A(f"s_sub_u32 {BUD}, {BUD}, 16")
        A(f"s_cbranch_scc0 {l0}")
        A(f"s_mov_b32 {BUD}, 0")
        A(f"{l1}:")
        A("s_mov_b64 exec, -1")
        if cnt and stamps is True: A(f"v_writelane_b32 v{cnt[0]}, s85, {cnt[1]}")

    def tag(r0, vm):
        for k in range(4):
            A(f"v_bfi_b32 v{r0+k}, v{vm}, s{80+k}, v{r0+k}")

    def tags_setup():
        A(f"s_add_u32 s84, s79, 1\ns_and_b32 s80, s84, {TAGM:#x}")
        for k in range(1, 4):
            A(f"s_add_u32 s{80+k}, s80, {256*k}\ns_and_b32 s{80+k}, s{80+k}, {TAGM:#x}")

    def controller(DBs):
        if not ctl: return
        levels = list(dict.fromkeys([D] + [d for d in ctl[0::2] if d != D]))
        A(f"""s_mov_b32 s52, {4 + 2*u0}
        s_and_b32 s53, s2, 7
        s_lshl_b32 s53, s53, 7
        s_add_u32 s53, s53, {PG}
        s_lshr_b32 s55, s2, 3
        s_lshl_b32 s55, s55, 2
        s_add_u32 s55, s55, s53
        s_lshl_b32 s56, s84, 8
        s_mov_b32 exec_lo, -1
        s_mov_b32 exec_hi, 0
        v_lshlrev_b32 v11, 2, v0
        L_ctl:""")
        spin(2, F_LAND, "s52", 3)
        A(f"""buffer_load_dword v12, v11, s[28:31], s53 offen {pld}
        s_add_u32 s57, s56, s52
        v_mov_b32 v15, s57
        s_mov_b32 exec_lo, 1
        buffer_store_dword v15, v4, s[28:31], s55 offen {pst}
        s_mov_b32 exec_lo, -1
        s_waitcnt vmcnt(1)
        v_subrev_u32 v12, s57, v12
        v_cmp_gt_u32 vcc, 32, v12
        s_bcnt1_i32_b32 s61, vcc_lo
        s_mov_b32 s54, {levels.index(ctl[0])}""")
        for t, d in zip(ctl[1::2], ctl[2::2]):
            A(f"s_cmp_ge_u32 s61, {t}\ns_cselect_b32 s54, {levels.index(d)}, s54")
        A(f"v_mov_b32 v12, s54\nds_write_b32 v2, v12 offset:{C_D}")
        A(f"s_add_u32 s52, s52, {step}\ns_cmp_le_u32 s52, 17\ns_cbranch_scc1 L_ctl\ns_mov_b64 exec, -1")

    def allred(op, v, t):
        for m in ("quad_perm:[1,0,3,2]", "quad_perm:[2,3,0,1]", "row_half_mirror", "row_mirror"):
            A(f"{op}_dpp v{v}, v{v}, v{v} {m} row_mask:0xf bank_mask:0xf")
        xrow(op, v, t)

    def xrow(op, v, t):
        A(f"v_mov_b32 v{t}, v{v}\nv_permlane16_swap_b32 v{v}, v{t}\n{op} v{v}, v{v}, v{t}")
        A(f"v_mov_b32 v{t}, v{v}\nv_permlane32_swap_b32 v{v}, v{t}\n{op} v{v}, v{v}, v{t}")

    def rnd(v, t=None):
        A(f"v_cvt_pk_bf16_f32 v{v}, v{v}, v{v}\nv_and_b32 v{v}, 0xffff0000, v{v}")

    def silu(v, t0, t1):
        A(f"""v_mul_f32 v{t0}, 0xbfb8aa3b, v{v}
        v_exp_f32 v{t0}, v{t0}
        v_add_f32 v{t0}, 1.0, v{t0}
        v_rcp_f32 v{t1}, v{t0}
        v_mul_f32 v{v}, v{v}, v{t1}""")

    A(f"{KN}:")
    if stamps or dbgst or floor: A("s_memrealtime s[90:91]")
    A("s_cmp_ge_u32 s2, 256\ns_cbranch_scc1 L_end")
    A("s_load_dwordx16 s[4:19], s[0:1], 0\ns_load_dwordx8 s[20:27], s[0:1], 64")
    A(f"v_lshlrev_b32 v2, 2, v0\nv_add_u32 v2, {MISC}, v2\nv_mov_b32 v3, 0\nds_write_b32 v2, v3")
    A("v_lshrrev_b32 v1, 6, v0\nv_and_b32 v0, 63, v0\nv_readfirstlane_b32 s3, v1")
    A(f"s_mov_b32 {BUD}, {budget}")
    A("""s_lshr_b32 s64, s2, 6
    s_and_b32 s65, s2, 63
    s_lshr_b32 s68, s65, 3
    s_and_b32 s72, s2, 1
    s_lshl_b32 s73, s72, 3
    s_or_b32 s68, s68, s73
    s_bfe_u32 s69, s2, 0x20001
    s_waitcnt lgkmcnt(0)
    s_barrier""")
    if wsoff: A(f"s_add_u32 s26, s26, {wsoff}\ns_addc_u32 s27, s27, 0")
    A("""s_cmp_ge_u32 s3, 4
    s_cbranch_scc1 L_notL""")

    def more_idx():
        A("""s_lshr_b32 s66, s2, 4
        s_lshl_b32 s66, s66, 3
        s_and_b32 s73, s2, 7
        s_or_b32 s66, s66, s73
        s_bfe_u32 s67, s2, 0x10003
        s_bfe_u32 s70, s2, 0x40003
        s_lshr_b32 s71, s2, 7
        s_lshl_b32 s71, s71, 2
        s_or_b32 s71, s71, s69""")

    SWQ, SGU, SK, SV, SDN, SWO = 28, 32, 36, 40, 44, 48
    A("s_setprio 3")
    stamp(0, 20)
    A("""v_lshrrev_b32 v2, 3, v0
    v_lshlrev_b32 v2, 13, v2
    v_and_b32 v3, 7, v0
    v_lshl_or_b32 v2, v3, 4, v2
    s_lshl_b32 s52, s69, 2
    s_add_u32 s52, s52, s3
    s_lshl_b32 s52, s52, 19
    s_lshl_b32 s73, s64, 11
    s_add_u32 s52, s52, s73
    s_lshl_b32 s73, s68, 7
    s_add_u32 s52, s52, s73
    s_lshl_b32 s57, s3, 15""")
    srd(SWQ, 10, 1 << 23)
    st = dict(issued=0, notified=0)
    ends = []

    def notify(val):
        A(f"v_mov_b32 v9, {val}\nds_write_b32 v8, v9 offset:{F_LAND}")

    def pace(Dt, first_ok=0):
        P = st["issued"]
        if P >= Dt:
            A(f"s_waitcnt vmcnt({Dt-1})")
            while st["notified"] < len(ends) and ends[st["notified"]][0] <= P - Dt:
                notify(ends[st["notified"]][1]); st["notified"] += 1
                if ends[st["notified"]-1][1] >= 19: stamp(4 + ends[st["notified"]-1][1] - 19, 20)

    def l_setup_rest():
        more_idx()
        A("""s_cmp_eq_u32 s72, 0
        s_cselect_b32 s32, s16, s18
        s_cselect_b32 s33, s17, s19
        s_mov_b32 s34, 7340032
        s_mov_b32 s35, 0x20000""")
        srd(SK, 6, 1 << 26); srd(SDN, 20, 7340032); srd(SWO, 12, 1 << 23)
        A(f"""s_lshl_b32 s53, s71, 2
        s_add_u32 s53, s53, s3
        s_mul_i32 s53, s53, {32*7168}
        s_mul_i32 s73, s70, 448
        s_add_u32 s53, s53, s73
        s_lshl_b32 s54, s65, 2
        s_add_u32 s54, s54, s3
        s_lshr_b32 s73, s54, {kvs}
        s_lshl_b32 s73, s73, {kvs + 3}
        s_and_b32 s54, s54, {(1 << kvs) - 1}
        s_add_u32 s54, s54, s73
        s_lshl_b32 s54, s54, 13
        s_lshl_b32 s73, s64, 24
        s_add_u32 s54, s54, s73
        s_lshl_b32 s73, s67, 2
        s_add_u32 s73, s73, s3
        s_lshl_b32 s73, s73, 8
        s_mul_i32 s55, s66, {28*2048}
        s_add_u32 s55, s55, s73
        s_lshl_b32 s56, s66, 16
        s_add_u32 s56, s56, s73
        v_lshlrev_b32 v3, 4, v0
        v_add_u32 v4, 6720, v3
        v_cmp_gt_u32 vcc, 28, v0
        v_cndmask_b32 v3, v4, v3, vcc
        v_lshrrev_b32 v10, 4, v0
        v_and_b32 v11, 15, v0
        v_lshlrev_b32 v12, 1, v10
        v_xor_b32 v12, v11, v12
        v_xor_b32 v13, 8, v12
        v_lshlrev_b32 v12, 4, v12
        v_lshlrev_b32 v13, 4, v13
        v_lshl_or_b32 v4, v10, 8, v12
        v_lshl_or_b32 v5, v10, 8, v13
        v_lshl_or_b32 v6, v10, 11, v12
        v_lshl_or_b32 v7, v10, 11, v13
        s_lshl_b32 s73, s3, 8
        s_add_u32 s73, s73, {MISC}
        v_lshl_add_u32 v8, v0, 2, s73""")

    for i in range(8):
        pace(D)
        A(f"s_add_u32 m0, s57, {i*1024}")
        A(f"buffer_load_dwordx4 v2, s[{SWQ}:{SWQ+3}], s52 offen nt lds")
        A(f"s_add_u32 s52, s52, 65536")
        st["issued"] += 1
        if i == D - 1:
            l_setup_rest()
            stamp(1, 20)
    ends.append((7, 1))
    A("s_lshr_b64 exec, -1, 8")
    for t in (1, 2):
        for i in range(8):
            pace(D)
            A(f"s_add_u32 m0, s57, {t*8192 + i*896}")
            A(f"buffer_load_dwordx4 v3, s[{SGU}:{SGU+3}], s53 offen nt lds")
            A(f"s_add_u32 s53, s53, 14336")
            st["issued"] += 1
        ends.append((st["issued"] - 1, t + 1))
    A("s_mov_b64 exec, -1")
    assert st["notified"] == 2 and D <= 8
    stamp(2, 20)
    levels = [D] + ([d for d in ctl[0::2] if d != D] if ctl else [])
    levels = list(dict.fromkeys(levels))
    A(f"s_mov_b32 s58, 3\ns_add_u32 s59, s57, {3*8192}\nv_mov_b32 v11, {MISC}\nds_read_b32 v10, v8 offset:{F_CONS}\nds_read_b32 v12, v11 offset:{C_D}")
    A("L_lloop:")
    A("s_waitcnt lgkmcnt(0)")
    if stamps is True: A("s_add_u32 m0, s58, 8\nv_writelane_b32 v20, s62, m0")
    A("v_readfirstlane_b32 s61, v10\nv_readfirstlane_b32 s77, v12\ns_sub_u32 s75, s58, 3\ns_cmp_ge_i32 s61, s75\ns_cbranch_scc1 L_lok")
    spin(8, F_CONS, "s75", 10)
    A("L_lok:\ns_mov_b32 m0, s59\ns_add_u32 s74, s54, 4096")
    for k in range(1, len(levels)):
        A(f"s_cmp_eq_u32 s77, {k}\ns_cbranch_scc1 L_lb{k}")
    for k, Dk in enumerate(levels):
        A(f"L_lb{k}:")
        for i in range(8):
            A(f"s_waitcnt vmcnt({Dk-1})")
            if i == Dk - 1: notify("s58")
            if i == 4: A("s_add_u32 m0, s59, 4096")
            A(f"buffer_load_dwordx4 v{4+(i&1)}, s[{SK}:{SK+3}], {'s54' if i < 4 else 's74'} offen offset:{(i&3)*1024} nt lds")
        if k < len(levels) - 1: A("s_branch L_lnext")
    A("L_lnext:")
    if stamps is True: A("s_memrealtime s[62:63]")
    A(f"""ds_read_b32 v10, v8 offset:{F_CONS}
    ds_read_b32 v12, v11 offset:{C_D}
    s_add_u32 s58, s58, 1
    s_and_b32 s59, s58, 3
    s_lshl_b32 s59, s59, 13
    s_add_u32 s59, s59, s57
    s_bitcmp1_b32 s58, 0
    s_cselect_b32 s{SK}, s6, s8
    s_cselect_b32 s{SK+1}, s7, s9
    s_cselect_b32 s73, {8192 << kvs}, 0
    s_add_u32 s54, s54, s73
    s_cmp_lt_u32 s58, 19
    s_cbranch_scc1 L_lloop""")
    stamp(3, 20)
    if warm: A.hops_on(warm)
    st["issued"] = 1000; st["notified"] = 0
    ends[:] = [(999, 19)]
    for t, n, sr, so in ((19, 7, SDN, 55), (20, 8, SWO, 56)):
        ok = A.lab("ok")
        A("s_waitcnt lgkmcnt(0)")
        A(f"v_readfirstlane_b32 s61, v10\ns_cmp_ge_i32 s61, {t-3}\ns_cbranch_scc1 {ok}")
        spin(8, F_CONS, t - 3, 10)
        A(f"{ok}:")
        for i in range(n):
            pace(Dend1 if (Dend1 and st["issued"] - 1000 < n1) else Dend)
            A(f"s_add_u32 m0, s57, {(t&3)*8192 + i*1024}")
            A(f"buffer_load_dwordx4 v{6+(i&1)}, s[{sr}:{sr+3}], s{so} offen nt lds")
            A(f"s_add_u32 s{so}, s{so}, 8192")
            st["issued"] += 1
        ends.append((st["issued"] - 1, t + 1))
        if t == 19: A(f"ds_read_b32 v10, v8 offset:{F_CONS}")
    while st["notified"] < len(ends):
        e, val = ends[st["notified"]]
        A(f"s_waitcnt vmcnt({st['issued'] - 1 - e})")
        notify(val); st["notified"] += 1
        stamp(4 + val - 19, 20)
    if stamps is True:
        srd(28, 26, (1 << 28) - wsoff)
        stamp_flush(20, 28)
    A.hops_off()
    A("s_endpgm")

    A("L_notL:")
    A(f"s_load_dword s79, s[26:27], {EP:#x}")
    more_idx()
    if lonly:
        A("s_cmp_ge_u32 s3, 8\ns_cbranch_scc1 L_Px")
        if lonly == 1:
            A(f"s_sub_u32 s76, s3, 4\ns_lshl_b32 s73, s76, 8\ns_add_u32 s73, s73, {MISC}\nv_lshl_add_u32 v1, v0, 2, s73\nv_mov_b32 v3, 100\nds_write_b32 v1, v3 offset:{F_CONS}\ns_endpgm")
        else:
            A(f"s_sub_u32 s76, s3, 4\ns_lshl_b32 s73, s76, 8\ns_add_u32 s73, s73, {MISC}\nv_lshl_add_u32 v1, v0, 2, s73\ns_mov_b32 s49, 1\nL_xl:")
            spin(1, F_LAND, "s49", 3)
            A(f"v_mov_b32 v3, s49\nds_write_b32 v1, v3 offset:{F_CONS}\ns_add_u32 s49, s49, 1\ns_cmp_lt_u32 s49, 22\ns_cbranch_scc1 L_xl\ns_endpgm")
        A("L_Px:")
        srd(28, 26, (1 << 28) - wsoff); srd(36, 24, 256)
        A(f"v_mov_b32 v2, {MISC}\nv_mov_b32 v4, 0\ns_waitcnt lgkmcnt(0)")
        tags_setup()
        controller(36)
        A(f"s_cmp_lg_u32 s2, 0\ns_cbranch_scc1 L_px2\ns_mov_b64 exec, 1\nv_mov_b32 v16, s84\ns_mov_b32 s45, {EP}\nbuffer_store_dword v16, v4, s[28:31], s45 offen sc1\nL_px2:")
        stamp(8, 60)
        A("v_writelane_b32 v60, s90, 10")
        stamp_flush(60, 28)
        A("s_endpgm")
    A("s_cmp_ge_u32 s3, 8\ns_cbranch_scc1 L_P")
    WS, XS, DB = 28, 32, 36
    if prio: A("s_setprio 2")
    stamp(0, 167)
    A(f"""s_sub_u32 s76, s3, 4
    v_lshrrev_b32 v104, 4, v0
    s_lshl_b32 s40, s69, 2
    s_add_u32 s40, s40, s76
    s_lshl_b32 s40, s40, 7
    s_lshl_b32 s41, s71, 2
    s_add_u32 s41, s41, s76
    s_lshl_b32 s41, s41, 6
    v_lshlrev_b32 v106, 4, v104
    v_lshlrev_b32 v107, 4, v0
""")
    srd(XS, 4, 2048)
    A(f"""buffer_load_dwordx4 v[64:67], v107, s[{XS}:{XS+3}], 0 offen
    buffer_load_dwordx4 v[68:71], v107, s[{XS}:{XS+3}], 0 offen offset:1024
    buffer_load_dwordx4 v[128:131], v106, s[{XS}:{XS+3}], s40 offen
    buffer_load_dwordx4 v[132:135], v106, s[{XS}:{XS+3}], s40 offen offset:64
    buffer_load_dwordx4 v[136:139], v106, s[{XS}:{XS+3}], s41 offen""")
    srd(WS, 26, (1 << 28) - wsoff)
    A(f"""s_lshl_b32 s46, s76, 15
    s_lshl_b32 s73, s76, 8
    s_add_u32 s73, s73, {MISC}
    v_lshl_add_u32 v1, v0, 2, s73
    v_mov_b32 v2, {MISC}
    v_and_b32 v113, 15, v0
    v_and_b32 v114, 7, v0
    v_lshlrev_b32 v114, 1, v114
    v_lshlrev_b32 v115, 8, v113
    s_add_u32 s73, s46, {3*8192}
    v_add_u32 v115, s73, v115""")
    for jj in range(4):
        A(f"v_add_u32 v116, {4*jj}, v104\nv_xor_b32 v116, v116, v114\nv_lshl_add_u32 v{4+jj}, v116, 4, v115")
    A(f"""v_lshrrev_b32 v116, 2, v0
    v_and_b32 v117, 7, v116
    v_and_b32 v118, 3, v0
    v_lshlrev_b32 v118, 3, v118
    v_lshl_add_u32 v116, v116, 8, v118
    v_add_u32 v116, s46, v116""")
    for b in range(8):
        A(f"v_xor_b32 v119, {b}, v117\nv_lshl_add_u32 v{8+b}, v119, 5, v116")
    A(f"""v_bfe_u32 v119, v0, 2, 2
    v_lshl_add_u32 v122, v104, 3, v119
    v_lshl_add_u32 v122, v122, 7, v118
    v_add_u32 v122, s46, v122
    v_and_b32 v123, 1, v104
    v_lshl_add_u32 v123, v123, 3, v119
    v_mul_u32_u24 v123, 448, v123
    v_lshrrev_b32 v119, 5, v0
    v_lshl_add_u32 v123, v119, 13, v123
    s_add_u32 s73, s46, 8192
    v_add3_u32 v123, v123, v118, s73""")
    stamp(17, 167)
    A("s_waitcnt vmcnt(3)")
    stamp(18, 167)
    for i in range(8):
        A(f"v_lshlrev_b32 v{72+2*i}, 16, v{64+i}\nv_and_b32 v{73+2*i}, 0xffff0000, v{64+i}")
    A("v_add_f32 v64, v72, v73\nv_add_f32 v65, v74, v75")
    for i in range(2, 8):
        A(f"v_add_f32 v{64+(i&1)}, v{64+(i&1)}, v{72+2*i}\nv_add_f32 v{64+(i&1)}, v{64+(i&1)}, v{73+2*i}") if False else None
    for i in range(4, 16):
        A(f"v_add_f32 v{64+(i&1)}, v{64+(i&1)}, v{72+i}")
    A("v_add_f32 v64, v64, v65")
    allred("v_add_f32", 64, 65)
    A("v_mul_f32 v64, 0x3a800000, v64")
    for i in range(16):
        A(f"v_sub_f32 v{72+i}, v{72+i}, v64")
    A("v_mul_f32 v66, v72, v72\nv_mul_f32 v67, v73, v73")
    for i in range(2, 16):
        A(f"v_fmac_f32 v{66+(i&1)}, v{72+i}, v{72+i}")
    A("v_add_f32 v66, v66, v67")
    allred("v_add_f32", 66, 67)
    A("v_mul_f32 v66, 0x3a800000, v66")
    rnd(64); rnd(66)
    A(f"v_add_f32 v66, {EPS:#x}, v66")
    rnd(66)
    A("v_sqrt_f32 v66, v66")
    rnd(66)
    A("v_rcp_f32 v67, v66\ns_waitcnt vmcnt(0)")
    for i in range(12):
        x = 128 + i
        A(f"""v_lshlrev_b32 v72, 16, v{x}
        v_and_b32 v73, 0xffff0000, v{x}
        v_sub_f32 v72, v72, v64
        v_sub_f32 v73, v73, v64
        v_cvt_pk_bf16_f32 v73, v72, v73
        v_lshlrev_b32 v72, 16, v73
        v_and_b32 v73, 0xffff0000, v73
        v_mul_f32 v74, v72, v67
        v_mul_f32 v75, v73, v67
        v_fma_f32 v72, -v74, v66, v72
        v_fma_f32 v73, -v75, v66, v73
        v_fmac_f32 v74, v72, v67
        v_fmac_f32 v75, v73, v67
        v_cvt_pk_bf16_f32 v{x}, v74, v75""")
    stamp(1, 167)

    def release(val):
        A(f"v_mov_b32 v3, {val}\nds_write_b32 v1, v3 offset:{F_CONS}")

    def cnt_add(off):
        A(f"s_mov_b64 exec, 1\nds_add_u32 v2, v124 offset:{off}\ns_mov_b64 exec, -1")

    def cnt_last(off, skip):
        A(f"s_mov_b64 exec, 1\nds_add_rtn_u32 v3, v2, v124 offset:{off}\ns_waitcnt lgkmcnt(0)")
        A(f"v_readfirstlane_b32 s61, v3\ns_cmp_eq_u32 s61, 3\ns_cbranch_scc0 {skip}")

    def tr_mfma(addr, nblk, blkstep, second, dreg, breg, frag0=64, acc=False, addr_per_blk=False, extra_off=0, rel=None):
        def rd(b):
            a = addr + b if addr_per_blk else addr
            o = extra_off + (0 if addr_per_blk else b * blkstep)
            f = frag0 + 4 * (b % 8)
            A(f"ds_read_b64_tr_b16 v[{f}:{f+1}], v{a} offset:{o}")
            A(f"ds_read_b64_tr_b16 v[{f+2}:{f+3}], v{a} offset:{o+second}")
        issued = min(7, nblk)
        for b in range(issued): rd(b)
        for b in range(nblk):
            A(f"s_waitcnt lgkmcnt({2*(issued-b-1)})")
            if rel is not None and b == nblk - 1: release(rel)
            f = frag0 + 4 * (b % 8)
            d = dreg(b)
            A(f"v_mfma_f32_16x16x32_bf16 v[{d}:{d+3}], v[{f}:{f+3}], v[{breg}:{breg+3}], {'v[%d:%d]' % (d, d+3) if acc else '0'}")
            if issued < nblk:
                rd(issued); issued += 1

    A("v_mov_b32 v124, 1")
    spin(1, F_LAND, 1, 3)
    stamp(2, 167)
    tr_mfma(122, 4, 32, 512, lambda b: 32 + 4*b, 128, frag0=64)
    tr_mfma(122, 4, 32, 512, lambda b: 32 + 4*b, 132, frag0=80, acc=True, extra_off=4096, rel=1)
    A(f"""s_lshl_b32 s73, s76, 8
    s_add_u32 s73, s73, {MISC + QRED}
    v_add_u32 v112, s73, v106""")
    execmask(*N0)
    for b in range(4):
        A(f"ds_write_b128 v112, v[{32+4*b}:{35+4*b}] offset:{b*64}")
    cnt_add(C_A)
    tags_setup()
    A(f"v_mov_b32 v166, {TAGM:#x}")
    stamp(3, 167)
    spin(1, F_LAND, 3, 3)
    stamp(4, 167)
    gu_d = lambda b: 32 + 4*b if b < 8 else 96 + 4*(b - 8)
    tr_mfma(123, 14, 32, 1792, gu_d, 136, rel=3)
    A(f"""v_lshrrev_b32 v125, 4, v0
    v_lshlrev_b32 v125, 4, v125
    s_mul_i32 s73, s76, 896
    s_add_u32 s73, s73, {MISC + HRED}
    v_add_u32 v126, s73, v125""")
    execmask(*N0)
    for b in range(14):
        d = gu_d(b)
        A(f"ds_write_b128 v126, v[{d}:{d+3}] offset:{b*64}")
    cnt_add(C_H)
    stamp(5, 167)
    A("v_mov_b32 v120, 0xff800000\nv_mov_b32 v121, 0")
    A(f"s_mov_b32 s49, 4\ns_mov_b32 s50, {LOG2E:#x}\ns_mov_b32 s51, {SCALE:#x}")

    def v_reads(f0, off=0):
        for b in range(7):
            A(f"ds_read_b64_tr_b16 v[{f0+4*b}:{f0+1+4*b}], v{8+b} offset:{off}\nds_read_b64_tr_b16 v[{f0+2+4*b}:{f0+3+4*b}], v{8+b} offset:{off+4096}")
        A("s_waitcnt lgkmcnt(4)")
        A(f"ds_read_b64_tr_b16 v[{f0+28}:{f0+29}], v15 offset:{off}\nds_read_b64_tr_b16 v[{f0+30}:{f0+31}], v15 offset:{off+4096}")

    A("L_cloop:")
    spin(1, F_LAND, "s49", 3)
    for jj in range(4):
        for sub in range(2):
            f = 64 + 4*(2*jj + sub)
            A(f"ds_read_b128 v[{f}:{f+3}], v{4+jj} offset:{sub*4096}")
    A("s_waitcnt lgkmcnt(0)")
    release("s49")
    for jj in range(4):
        A(f"v_xor_b32 v{4+jj}, 0x4000, v{4+jj}")
    A("s_add_u32 s49, s49, 1\ns_cmp_eq_u32 s49, 19\ns_cbranch_scc1 L_c_qk")
    spin(1, F_LAND, "s49", 3)
    v_reads(128)
    A("s_waitcnt lgkmcnt(0)")
    release("s49")
    for b in range(8):
        A(f"v_xor_b32 v{8+b}, 0x4000, v{8+b}")
    A("s_add_u32 s49, s49, 1\ns_cmp_eq_u32 s49, 6\ns_cbranch_scc1 L_c_getq")
    A("L_c_qk:")
    for jj in range(4):
        for sub in range(2):
            k = 2*jj + sub
            f = 64 + 4*k; d = 96 + 4*sub
            A(f"v_mfma_f32_16x16x32_bf16 v[{d}:{d+3}], v[{f}:{f+3}], v[{16+4*jj}:{19+4*jj}], {'0' if jj == 0 else 'v[%d:%d]' % (d, d+3)}")
    for rep in range(2):
        for i in range(4):
            A(f"v_cvt_pk_bf16_f32 v{104+i}, v{96+2*i}, v{97+2*i}")
        for i in range(4):
            A(f"v_lshlrev_b32 v{96+2*i}, 16, v{104+i}\nv_and_b32 v{97+2*i}, 0xffff0000, v{104+i}")
        if rep == 0:
            for i in range(8):
                A(f"v_mul_f32 v{96+i}, s51, v{96+i}")
    A("""v_max3_f32 v108, v96, v97, v98
    v_max3_f32 v109, v99, v100, v101
    v_max3_f32 v108, v108, v102, v103
    v_max3_f32 v108, v108, v109, v120""")
    xrow("v_max_f32", 108, 109)
    A("""v_sub_f32 v110, v120, v108
    v_mul_f32 v109, s50, v108
    v_mul_f32 v110, s50, v110
    v_cmp_neq_f32 vcc, v120, v108
    v_exp_f32 v110, v110
    v_mov_b32 v120, v108""")
    for i in range(8):
        A(f"v_fma_f32 v{96+i}, v{96+i}, s50, -v109")
    for i in range(8):
        A(f"v_exp_f32 v{96+i}, v{96+i}")
    A("v_mul_f32 v121, v121, v110")
    for i in range(4):
        A(f"v_cvt_pk_bf16_f32 v{104+i}, v{96+2*i}, v{97+2*i}")
    A("""v_add_f32 v96, v96, v97
    v_add_f32 v98, v98, v99
    v_add_f32 v100, v100, v101
    v_add_f32 v102, v102, v103
    v_add_f32 v96, v96, v98
    v_add_f32 v100, v100, v102
    v_add_f32 v96, v96, v100
    v_add_f32 v121, v121, v96
    s_cbranch_vccz L_c_noresc""")
    for r in range(32):
        A(f"v_mul_f32 v{32+r}, v{32+r}, v110")
    A("L_c_noresc:")
    A("s_cmp_eq_u32 s49, 19\ns_cbranch_scc1 L_c_last")
    for b in range(8):
        A(f"v_mfma_f32_16x16x32_bf16 v[{32+4*b}:{35+4*b}], v[{128+4*b}:{131+4*b}], v[104:107], v[{32+4*b}:{35+4*b}]")
    A("s_branch L_cloop")
    A("L_c_getq:")
    A(f"""s_lshl_b32 s47, s64, 2
    s_add_u32 s47, s47, s76
    s_lshl_b32 s47, s47, 10
    s_add_u32 s47, s47, {QF}
    v_lshlrev_b32 v126, 4, v0""")
    A(f"""s_lshl_b32 s73, s76, 9
    s_add_u32 s73, s73, {MISC + QBUF}
    v_lshl_add_u32 v112, v0, 3, s73
    v_and_b32 v113, 7, v0
    v_lshl_add_u32 v113, v113, 8, v125
    v_add_u32 v113, {MISC + QBUF}, v113""")
    spin(1, F_LAND, tq2, 3)
    stamp(6, 167)
    for r in range(32):
        A(f"v_mov_b32 v{32+r}, 0")
    if 'q' not in skip: poll([f"buffer_load_dwordx4 v[96:99], v126, s[{WS}:{WS+3}], s47 offen sc1"], range(96, 100), 114, words=True, slp=6)
    A("v_mov_b32 v97, v98\nds_write_b64 v112, v[96:97]")
    if pre:
        A(f"""s_xor_b32 s73, s80, 0x155
        v_mov_b32 v100, s73
        v_mov_b32 v101, s73
        v_mov_b32 v102, s73
        v_mov_b32 v103, s73
        v_lshrrev_b32 v114, 3, v0
        v_and_b32 v115, 7, v0
        v_lshlrev_b32 v115, 4, v115
        v_lshl_or_b32 v114, v114, 13, v115
        s_lshl_b32 s47, s64, 2
        s_add_u32 s47, s47, s76
        s_lshl_b32 s47, s47, 9
        s_add_u32 s47, s47, s65
        s_lshl_b32 s47, s47, 7
        s_add_u32 s47, s47, {OP}
        s_lshl_b32 s48, s66, 1
        s_add_u32 s48, s48, s67
        s_lshl_b32 s48, s48, 2
        s_add_u32 s48, s48, s76
        s_lshl_b32 s48, s48, 9
        s_add_u32 s73, s48, {SI}
        s_add_u32 s48, s48, {FI}""")
        if 'o' in pre: A(f"buffer_store_dwordx4 v[100:103], v114, s[{WS}:{WS+3}], s47 offen sc1")
        A("s_mov_b32 exec_hi, 0")
        if 's' in pre: A(f"buffer_store_dwordx4 v[100:103], v126, s[{WS}:{WS+3}], s73 offen sc1")
        if 'f' in pre: A(f"buffer_store_dwordx4 v[100:103], v126, s[{WS}:{WS+3}], s48 offen sc1")
        A("s_mov_b64 exec, -1")
    cnt_add(C_Q)
    spin(2, C_Q, 4, 3)
    for jj in range(4):
        A(f"ds_read_b128 v[{16+4*jj}:{19+4*jj}], v113 offset:{jj*64}")
    A("s_waitcnt lgkmcnt(0)")
    stamp(7, 167)
    A("s_branch L_c_qk")
    A("L_c_last:")
    if warm: A.hops_on(warm)
    if pre: A("s_waitcnt vmcnt(0)")
    stamp(8, 167)
    xrow("v_add_f32", 121, 109)
    A(f"""s_lshl_b32 s73, s76, 6
    s_add_u32 s73, s73, {MISC + MLX}
    v_lshl_add_u32 v112, v0, 3, s73
    s_mov_b32 exec_lo, 0xff
    s_mov_b32 exec_hi, 0
    ds_write_b64 v112, v[120:121]""")
    cnt_add(C_ML)
    A(f"""v_lshrrev_b32 v113, 5, v0
    s_lshl_b32 s73, s76, 1
    v_add_u32 v113, s73, v113
    v_lshlrev_b32 v112, 3, v113
    v_add_u32 v112, {MISC + MLX}, v112""")
    spin(2, C_ML, 4, 3)
    for k in range(4):
        A(f"ds_read_b64 v[{96+2*k}:{97+2*k}], v112 offset:{k*64}")
    A(f"""s_lshl_b32 s47, s64, 9
    s_add_u32 s47, s47, s65
    s_lshl_b32 s47, s47, 4
    s_add_u32 s47, s47, {ML}
    v_lshlrev_b32 v114, 10, v113
    s_waitcnt lgkmcnt(0)
    v_max3_f32 v164, v96, v98, v100
    v_max_f32 v164, v164, v102""")
    for k in range(4):
        A(f"v_sub_f32 v{160+k}, v{96+2*k}, v164\nv_mul_f32 v{160+k}, s50, v{160+k}")
    for k in range(4):
        A(f"v_exp_f32 v{160+k}, v{160+k}")
    A("""v_mul_f32 v165, v160, v97
    v_fmac_f32 v165, v161, v99
    v_fmac_f32 v165, v162, v101
    v_fmac_f32 v165, v163, v103
    v_mov_b32 v96, v164
    v_mov_b32 v97, v165
    v_mov_b32 v98, 0
    v_mov_b32 v99, 0""")
    tag(96, 166)
    A("s_mov_b32 exec_lo, 1\ns_mov_b32 exec_hi, 1")
    A(f"buffer_store_dwordx4 v[96:99], v114, s[{WS}:{WS+3}], s47 offen sc1")
    execmask(*FULL)
    A(f"""v_and_b32 v115, 7, v0
    v_mul_u32_u24 v115, 528, v115
    s_add_u32 s73, s46, 8192
    v_add3_u32 v115, v115, v125, s73
    v_and_b32 v117, 31, v0
    v_mul_u32_u24 v116, 528, v113
    v_lshl_add_u32 v116, v117, 4, v116
    v_add_u32 v116, 8192, v116
    v_add_u32 v118, 0x10000, v116
    v_lshrrev_b32 v119, 3, v117
    v_lshl_add_u32 v119, v113, 2, v119
    v_and_b32 v117, 7, v0
    v_lshlrev_b32 v117, 4, v117
    v_lshl_add_u32 v117, v119, 13, v117
    s_lshl_b32 s47, s64, 11
    s_add_u32 s47, s47, s65
    s_lshl_b32 s47, s47, 7
    s_add_u32 s47, s47, {OP}""")
    spin(1, F_LAND, 19, 3)
    stamp(9, 167)
    if trim:
        q = []
        def rd7(b):
            A(f"ds_read_b64_tr_b16 v[{64+4*b}:{65+4*b}], v{8+b}\nds_read_b64_tr_b16 v[{66+4*b}:{67+4*b}], v{8+b} offset:4096")
            q.extend([("r", b), ("r", b)])
        def wr7(b):
            A(f"ds_write_b128 v115, v[{32+4*b}:{35+4*b}] offset:{b*64}"); q.append(("w", b))
        for b in range(7): rd7(b)
        for b in range(8):
            last = max(k for k, e in enumerate(q) if e == ("r", b))
            A(f"s_waitcnt lgkmcnt({len(q) - 1 - last})")
            A(f"v_mfma_f32_16x16x32_bf16 v[{32+4*b}:{35+4*b}], v[{64+4*b}:{67+4*b}], v[104:107], v[{32+4*b}:{35+4*b}]")
            if b == 0: rd7(7)
            if b >= 4: wr7(b - 4)
        for b in range(4, 8): wr7(b)
        cnt_add(C_O)
        spin(2, C_O, 4, 3, also=("ds_read_b128 v[64:67], v116", "ds_read_b128 v[68:71], v116 offset:32768",
                                 "ds_read_b128 v[72:75], v118", "ds_read_b128 v[76:79], v118 offset:32768"))
    else:
        tr_mfma(8, 8, 0, 4096, lambda b: 32 + 4*b, 104, acc=True, addr_per_blk=True)
        execmask(*NLT8)
        for b in range(8):
            A(f"ds_write_b128 v115, v[{32+4*b}:{35+4*b}] offset:{b*64}")
        cnt_add(C_O)
        spin(2, C_O, 4, 3)
        A("""ds_read_b128 v[64:67], v116
        ds_read_b128 v[68:71], v116 offset:32768
        ds_read_b128 v[72:75], v118
        ds_read_b128 v[76:79], v118 offset:32768
        s_waitcnt lgkmcnt(0)""")
    for r in range(4): A(f"v_mul_f32 v{64+r}, v{64+r}, v160")
    for k in range(1, 4):
        for r in range(4): A(f"v_fmac_f32 v{64+r}, v{64+4*k+r}, v{160+k}")
    tag(64, 166)
    A(f"buffer_store_dwordx4 v[64:67], v117, s[{WS}:{WS+3}], s47 offen sc1")
    stamp(10, 167)

    def out_stores(base):
        A(f"""s_lshl_b32 s47, s66, 1
        s_add_u32 s47, s47, s67
        s_lshl_b32 s47, s47, 2
        s_add_u32 s47, s47, s76
        s_lshl_b32 s47, s47, 9
        s_add_u32 s47, s47, {base}""")
    def out_stores2():
        execmask(*N0)
        for b in range(8):
            d = 32 + 4*b
            tag(d, 166)
            A(f"buffer_store_dwordx4 v[{d}:{d+3}], v125, s[{WS}:{WS+3}], s47 offen offset:{64*b} sc1")
        execmask(*FULL)

    A(f"""v_add_u32 v119, {MISC + HBUF}, v125
    s_lshl_b32 s48, s66, 13
    s_lshl_b32 s73, s76, 5
    s_add_u32 s48, s48, s73
    s_add_u32 s48, s48, {OP}
    v_lshlrev_b32 v112, 7, v0
    v_lshrrev_b32 v113, 5, v0
    v_bfe_u32 v114, v0, 4, 1
    v_lshl_add_u32 v113, v114, 1, v113
    s_and_b32 s73, s76, 1
    s_lshl_b32 s73, s73, 5
    s_lshr_b32 s74, s76, 1
    s_lshl_b32 s74, s74, 3
    s_add_u32 s73, s73, s74
    s_add_u32 s73, s73, {MISC + OBUF}
    v_lshl_add_u32 v113, v113, 1, s73
    v_add_u32 v114, {MISC + OBUF}, v125
    v_lshlrev_b32 v115, 2, v0
    v_add_u32 v115, {MISC + WBUF}, v115""")
    out_stores(FI)
    spin(2, C_HR, 1, 3)
    A("ds_read_b128 v[104:107], v119")
    spin(1, F_LAND, 20, 3)
    stamp(11, 167)
    tr_mfma(8, 8, 0, 4096, lambda b: 32 + 4*b, 104, addr_per_blk=True, extra_off=8192)
    out_stores2()
    stamp(12, 167)
    for b in range(8):
        A(f"v_xor_b32 v{8+b}, 0x4000, v{8+b}")
    out_stores(SI)
    spin(2, C_W, 1, 3)
    if odelay: A(f"s_sleep {odelay}")
    old = [f"buffer_load_dwordx4 v[96:99], v112, s[{WS}:{WS+3}], s48 offen sc1",
           f"buffer_load_dwordx4 v[100:103], v112, s[{WS}:{WS+3}], s48 offen offset:16 sc1"]
    for t in old: A(t)
    A("ds_read_b32 v128, v115")
    stamp(13, 167)
    spin(1, F_LAND, 21, 3)
    stamp(15, 167)
    v_reads(64)
    poll(old, range(96, 104), 130, first_issued=0, cnt=(167, 30))
    stamp(14, 167)
    A("s_waitcnt lgkmcnt(0)")
    for r in range(8): A(f"v_mul_f32 v{96+r}, v{96+r}, v128")
    for i in range(4): A(f"v_permlane32_swap_b32 v{96+2*i}, v{97+2*i}")
    for i in range(4): A(f"v_add_f32 v{96+2*i}, v{96+2*i}, v{97+2*i}")
    A("v_permlane16_swap_b32 v96, v98\nv_permlane16_swap_b32 v100, v102\nv_add_f32 v96, v96, v98\nv_add_f32 v100, v100, v102")
    for m in ("row_ror:8", "row_ror:4", "row_ror:2", "row_ror:1"):
        A(f"v_add_f32_dpp v96, v96, v96 {m} row_mask:0xf bank_mask:0xf\nv_add_f32_dpp v100, v100, v100 {m} row_mask:0xf bank_mask:0xf")
    A("v_cvt_pk_bf16_f32 v96, v96, v100")
    execmask(*N0)
    A("ds_write_b16 v113, v96\nds_write_b16_d16_hi v113, v96 offset:16")
    cnt_add(C_OB)
    spin(2, C_OB, 4, 3, also=("ds_read_b128 v[104:107], v114",))
    execmask(*N0)
    for b in range(11):
        if b < 8: A(f"v_mfma_f32_16x16x32_bf16 v[{32+4*b}:{35+4*b}], v[{64+4*b}:{67+4*b}], v[104:107], 0")
        if b >= 3:
            d = 32 + 4*(b - 3)
            tag(d, 166)
            A(f"buffer_store_dwordx4 v[{d}:{d+3}], v125, s[{WS}:{WS+3}], s47 offen offset:{64*(b-3)} sc1")
    cnt_add(C_PS)
    stamp(16, 167)
    stamp_flush(167, WS)
    A.hops_off()
    A("s_endpgm")

    A("L_P:")
    OUT = 40
    stamp(0, 60)
    A(f"""v_lshlrev_b32 v1, 4, v0
    v_mov_b32 v2, {MISC}
    v_mov_b32 v4, 0""")
    srd(WS, 26, (1 << 28) - wsoff); srd(XS, 4, 2048); srd(OUT, 22, 2048)
    if dbgst: srd(DB, 24, 256)
    A(f"""v_lshrrev_b32 v8, 5, v0
    v_bfe_u32 v9, v0, 4, 1
    v_lshl_add_u32 v8, v9, 1, v8
    v_lshlrev_b32 v8, 1, v8
    s_and_b32 s44, s2, 7
    s_lshl_b32 s44, s44, 5
    s_lshr_b32 s73, s2, 3
    s_or_b32 s44, s44, s73
    s_lshl_b32 s51, s44, 4
    s_lshl_b32 s44, s44, 3
    buffer_load_ushort v9, v8, s[{XS}:{XS+3}], s44 offen
    v_mov_b32 v10, 1""")
    A(f"""s_lshl_b32 s47, s64, 4
    s_add_u32 s47, s47, s68
    s_lshl_b32 s47, s47, 4
    s_add_u32 s47, s47, s69
    s_lshl_b32 s47, s47, 7
    v_lshrrev_b32 v5, 3, v0
    v_and_b32 v12, 7, v0
    v_lshlrev_b32 v6, 4, v12
    v_lshl_or_b32 v7, v5, 11, v6
    v_lshl_or_b32 v6, v5, 9, v6
    v_lshlrev_b32 v13, 3, v0
    v_add_u32 v13, {MISC + QRED}, v13
    v_mul_u32_u24 v11, 7, v5
    v_add_u32 v11, v11, v12
    v_lshlrev_b32 v11, 4, v11
    v_add_u32 v11, {MISC + HRED}, v11
    v_mov_b32 v5, {TAGM:#x}
    s_lshl_b32 s48, s70, 7
    s_lshl_b32 s73, s72, 3
    s_add_u32 s48, s48, s73
    s_add_u32 s48, s48, s71
    s_lshl_b32 s48, s48, 7
    s_add_u32 s48, s48, {HP}""")
    spin(2, C_A, 4, 3)
    tags_setup()

    def h_part():
        A("s_mov_b64 exec, -1")
        spin(2, C_H, 4, 3)
        for k in range(4):
            A(f"ds_read_b128 v[{16+4*k}:{19+4*k}], v11 offset:{k*896}")
        A("s_waitcnt lgkmcnt(0)")
        for r in range(4):
            A(f"v_add_f32 v{16+r}, v{16+r}, v{20+r}\nv_add_f32 v{24+r}, v{24+r}, v{28+r}")
        for r in range(4):
            A(f"v_add_f32 v{16+r}, v{16+r}, v{24+r}")
        for r in range(4):
            A(f"v_add_u32 v{16+r}, {(TAGM+1)//2}, v{16+r}")
        tag(16, 5)
        if 's' in skip: A("s_mov_b64 exec, 1")
        A(f"buffer_store_dwordx4 v[16:19], v7, s[{WS}:{WS+3}], s48 offen sc1")
        stamp(2, 60)
    A("s_mov_b32 exec_lo, -1\ns_mov_b32 exec_hi, 0")
    for k in range(4):
        A(f"ds_read_b64 v[{16+2*k}:{17+2*k}], v13 offset:{k*256}")
    A(f"""v_mov_b32 v25, s84
    v_mov_b32 v27, s84
    s_waitcnt lgkmcnt(0)
    v_add_f32 v16, v16, v18
    v_add_f32 v17, v17, v19
    v_add_f32 v20, v20, v22
    v_add_f32 v21, v21, v23
    v_add_f32 v24, v16, v20
    v_add_f32 v26, v17, v21
    buffer_store_dwordx4 v[24:27], v6, s[{WS}:{WS+3}], s47 offen offset:{QP} sc1""")
    stamp(1, 60)
    if tq1 > 3:
        h_part()
    spin(2, F_LAND, tq1, 3)
    A(f"""s_lshl_b32 s47, s2, 9
    s_lshl_b32 s49, s2, 6
    s_add_u32 s49, s49, {QF}
    s_mov_b32 exec_lo, -1
    s_mov_b32 exec_hi, 0""")
    if 'p' in skip: A("s_mov_b64 exec, -1")
    else: poll([f"buffer_load_dwordx4 v[16:19], v1, s[{WS}:{WS+3}], s47 offen offset:{QP} sc1"], range(16, 20), 20, words=True, slp=6)
    for r in (16, 18): A(f"v_add_f32_dpp v{r}, v{r}, v{r} row_ror:8 row_mask:0xf bank_mask:0xf")
    A("""v_mov_b32 v17, v16
    v_mov_b32 v19, v18
    v_permlane16_swap_b32 v16, v17
    v_permlane16_swap_b32 v18, v19
    v_add_f32 v16, v16, v17
    v_add_f32 v18, v18, v19
    v_cvt_pk_bf16_f32 v16, v16, v18
    v_mov_b32 v17, s84
    v_lshlrev_b32 v18, 3, v0
    s_mov_b32 exec_lo, 0xff
    s_mov_b32 exec_hi, 0""")
    A(f"buffer_store_dwordx2 v[16:17], v18, s[{WS}:{WS+3}], s49 offen sc1")
    stamp(9, 60)
    if tq1 <= 3: h_part()
    A("s_mov_b64 exec, -1")
    if th: spin(2, F_LAND, th, 3)
    else: spin(2, C_Q, 4, 3)
    stamp(3, 60)
    A(f"s_lshl_b32 s45, s66, 11\ns_add_u32 s45, s45, {HP}\nv_and_b32 v12, 7, v0")
    if 'h' not in skip:
        poll([f"buffer_load_dwordx4 v[16:19], v1, s[{WS}:{WS+3}], s45 offen sc1",
              f"buffer_load_dwordx4 v[20:23], v1, s[{WS}:{WS+3}], s45 offen offset:1024 sc1"], range(16, 24), 24, slp=16)
    for r in range(4): A(f"v_permlane32_swap_b32 v{16+r}, v{20+r}")
    for r in range(4): A(f"v_add_f32 v{16+r}, v{16+r}, v{20+r}")
    for r in range(4): A(f"v_add_f32_dpp v{16+r}, v{16+r}, v{16+r} row_ror:8 row_mask:0xf bank_mask:0xf")
    for r in range(4): A(f"v_mov_b32 v{20+r}, v{16+r}")
    for r in range(4): A(f"v_permlane16_swap_b32 v{16+r}, v{20+r}")
    for r in range(4): A(f"v_add_f32 v{16+r}, v{16+r}, v{20+r}")
    for r in range(4): rnd(16 + r)
    for r in range(4): A(f"v_mov_b32 v{20+r}, v{16+r}")
    for r in range(4): A(f"v_permlane32_swap_b32 v{16+r}, v{20+r}")
    for r in range(4):
        silu(16 + r, 24, 25); rnd(16 + r)
        A(f"v_mul_f32 v{16+r}, v{16+r}, v{20+r}")
    A(f"""v_cvt_pk_bf16_f32 v16, v16, v17
    v_cvt_pk_bf16_f32 v17, v18, v19
    v_cmp_eq_u32 vcc, 7, v12
    v_cndmask_b32 v16, v16, v4, vcc
    v_cndmask_b32 v17, v17, v4, vcc
    v_and_b32 v13, 3, v0
    v_lshlrev_b32 v13, 4, v13
    v_lshrrev_b32 v12, 2, v12
    v_lshl_add_u32 v13, v12, 3, v13
    v_add_u32 v13, {MISC + HBUF}, v13
    s_mov_b32 exec_lo, 0xff
    s_mov_b32 exec_hi, 0
    ds_write_b64 v13, v[16:17]
    ds_write_b32 v2, v10 offset:{C_HR}
    s_mov_b64 exec, -1
    s_add_u32 s46, s51, {SI}
    s_add_u32 s45, s51, {FI}
    v_lshlrev_b32 v6, 12, v0
    v_add_u32 v7, 0x40000, v6""")
    stamp(4, 60)

    def inbox(so, k):
        poll([f"buffer_load_dwordx4 v[16:19], v6, s[{WS}:{WS+3}], {so} offen sc1",
              f"buffer_load_dwordx4 v[20:23], v7, s[{WS}:{WS+3}], {so} offen sc1"], range(16, 24), 24, cnt=(60, k))
        for r in range(4): A(f"v_add_f32 v{16+r}, v{16+r}, v{20+r}")
        A("""v_permlane32_swap_b32 v16, v17
        v_permlane32_swap_b32 v18, v19
        v_add_f32 v16, v16, v17
        v_add_f32 v18, v18, v19
        v_permlane16_swap_b32 v16, v18
        v_add_f32 v16, v16, v18""")
        for m in ("row_ror:8", "row_ror:4", "row_ror:2", "row_ror:1"):
            A(f"v_add_f32_dpp v16, v16, v16 {m} row_mask:0xf bank_mask:0xf")
        rnd(16)

    A(f"""s_lshr_b32 s47, s66, 2
    s_lshl_b32 s47, s47, 10
    s_add_u32 s47, s47, {ML}
    s_mov_b32 s50, {LOG2E:#x}
    v_lshlrev_b32 v13, 2, v0
    v_add_u32 v13, {MISC + WBUF}, v13""")
    if not lonly: controller(DB)
    if warm:
        A("s_mov_b64 exec, 0\ns_branch L_hop0\nL_warmed:\ns_mov_b64 exec, -1")
        srd(WS, 26, (1 << 28) - wsoff); srd(OUT, 22, 2048)
        if dbgst: srd(DB, 24, 256)
        A.hops_on(warm)
    spin(2, C_ML, 4, 3)
    if touch: A(f"buffer_load_ushort v15, v8, s[{OUT}:{OUT+3}], s44 offen")
    poll([f"buffer_load_dwordx4 v[16:19], v1, s[{WS}:{WS+3}], s47 offen sc1"], range(16, 20), 20, slp=sleep_ml, cnt=(60, 30))
    A("v_mov_b32 v18, v16")
    allred("v_max_f32", 18, 19)
    A("v_sub_f32 v16, v16, v18\nv_mul_f32 v16, s50, v16\nv_exp_f32 v16, v16\nv_mul_f32 v17, v17, v16")
    allred("v_add_f32", 17, 19)
    A(f"""v_rcp_f32 v18, v17
    v_fma_f32 v19, -v17, v18, 1.0
    v_fmac_f32 v18, v19, v18
    v_mul_f32 v16, v16, v18
    ds_write_b32 v13, v16
    s_mov_b64 exec, 1
    ds_write_b32 v2, v10 offset:{C_W}
    s_mov_b64 exec, -1""")
    stamp(11, 60)
    spin(2, C_OB if ftrig == 'ob' else C_PS, 4, 3)
    stamp(5, 60)
    inbox("s45", 31)
    silu(16, 24, 25); rnd(16)
    A("v_mov_b32 v14, v16\nv_lshlrev_b32 v9, 16, v9")
    stamp(6, 60)
    if ftrig == 'ob': spin(2, C_PS, 4, 3)
    if sdelay: A(f"s_sleep {sdelay}")
    stamp(7, 60)
    inbox("s46", 32)
    A("v_mul_f32 v16, v16, v14")
    rnd(16)
    A("v_add_f32 v16, v16, v9\nv_cvt_pk_bf16_f32 v16, v16, v16")
    execmask(*N0)
    A(f"buffer_store_short v16, v8, s[{OUT}:{OUT+3}], s44 offen sc1")
    A(f"""s_cmp_lg_u32 s2, 0
    s_cbranch_scc1 L_p_noep
    s_mov_b64 exec, 1
    v_mov_b32 v16, s84
    s_mov_b32 s45, {EP}
    buffer_store_dword v16, v4, s[{WS}:{WS+3}], s45 offen sc1
    L_p_noep:""")
    if floor:
        A(f"L_floor:\ns_memrealtime s[62:63]\ns_waitcnt lgkmcnt(0)\ns_sub_u32 s62, s62, s90\ns_cmp_lt_u32 s62, {floor}\ns_cbranch_scc1 L_floor")
    stamp(8, 60)
    if stamps or dbgst: A("v_writelane_b32 v60, s90, 10")
    if dbgst:
        A("s_mov_b64 exec, 1")
        for slot, k, inv in ((1, 10, 1), (2, 10, 0), (3, 1, 0), (5, 2, 1), (6, 2, 0), (7, 4, 0), (9, 5, 1), (10, 5, 0), (11, 7, 1), (12, 7, 0), (13, 8, 1), (14, 8, 0), (15, 0, 0)):
            A(f"v_readlane_b32 s62, v60, {k}")
            if inv: A("s_not_b32 s62, s62")
            A(f"v_mov_b32 v12, s62\nbuffer_atomic_umax v12, v4, s[{DB}:{DB+3}], 0 offen offset:{4*slot}")
    stamp_flush(60, WS)
    A.hops_off()
    A("L_end:\ns_endpgm")

    if warm: A.hops_close("L_warmed")
    bad = A.verify_edges()
    assert not bad, bad
    nv = 168 if stamps else 168
    txt = HEAD + f"; @launch grid=(256,1,1) block=(576,1,1) lds={LDS_BYTES}\n"
    txt += f'.amdgcn_target "amdgcn-amd-amdhsa--gfx950"\n.text\n.globl {KN}\n.p2align 8\n.type {KN},@function\n'
    txt += A.text()
    txt += f""".section .rodata,"a"
.p2align 6
.amdhsa_kernel {KN}
  .amdhsa_next_free_vgpr {nv}
  .amdhsa_next_free_sgpr 96
  .amdhsa_accum_offset {nv}
  .amdhsa_group_segment_fixed_size 0
  .amdhsa_kernarg_size 96
  .amdhsa_user_sgpr_count 2
  .amdhsa_user_sgpr_kernarg_segment_ptr 1
  .amdhsa_system_sgpr_workgroup_id_x 1
  .amdhsa_float_denorm_mode_32 3
.end_amdhsa_kernel
"""
    return txt


if __name__ == "__main__":
    kw = eval("dict(%s)" % (sys.argv[2] if len(sys.argv) > 2 else ""))
    open(sys.argv[1], "w").write(gen(**kw))
```

```python
import sys
sys.path.insert(0, "work")
from asmlib import Asm

KN = "recurrent_scan__gqa_block_cached__swiglu_ffn__decode_kernel"
HEAD = open("recurrent_scan__gqa_block_cached__swiglu_ffn__decode.s.ref").read().split("; Override launch")[0] \
    if __import__("os").path.exists("recurrent_scan__gqa_block_cached__swiglu_ffn__decode.s.ref") else ""

QP, HP, ML, EP, PG, QF, FI, SI, OP = 0x0, 0x20000, 0x90000, 0x98000, 0x99000, 0x9C000, 0xA0000, 0x120000, 0x1A0000
HP2 = True
W8 = True
TAGM = 0x3FF
STAMP_OFF = 128 << 20
MISC = 131072
F_LAND, F_CONS = 0, 1024
C_A, C_W, C_H, C_D, C_Q, C_ML, C_O, C_OB, C_HR, C_PF, C_PS = [2048 + 4 * i for i in range(11)]
QRED, QBUF, MLX, HBUF, OBUF, WBUF, HRED, SBUF = 3072, 4096, 6144, 6400, 6656, 6912, 8192, 12288
FRED, SRED = 8192, 10240
H128 = True
LDS_BYTES = MISC + 12288 + 16384
LOG2E = 0x3FB8AA3B
SCALE = 0x3DB504F3
EPS = 0x3727C5AC


def gen(D=6, Dend=12, stamps=False, sleep_poll=0, budget=1 << 20, dbgst=False, touch=True, kvs=8, lonly=0, spin_sleep=0, sleep_ml=12, sdelay=0, ctl=None, u0=3, step=2, pst='', pld='sc1', floor=0, tq1=3, tq2=6, th=11, skip='', Dend1=None, n1=7, wsoff=0, pre='', warm=0, trim=True, prio=True, ftrig='ps', odelay=0, prd='', prdpol='sc1', nt='', lst=None, lstn=1, lstw=4, otrig=21, tml=16, osleep=0, hbatch=True, wofirst=False):
    A = Asm()
    pol = lambda k: "sc1 nt" if k in nt.split() else "sc1"
    BUD = "s60"

    def stamp(k, vreg):
        if stamps is True or (stamps == 'min' and vreg == 60 and k == 8) or (dbgst and vreg == 60):
            A(f"s_memrealtime s[62:63]\ns_waitcnt lgkmcnt(0)\nv_writelane_b32 v{vreg}, s62, {k}")

    def stamp_flush(vreg, srd):
        if stamps is True or (stamps and vreg == 60):
            A(f"""s_mov_b64 exec, -1
            s_mul_i32 s62, s2, 9
            s_add_u32 s62, s62, s3
            s_lshl_b32 s62, s62, 8
            s_add_u32 s62, s62, {STAMP_OFF - wsoff}
            v_lshlrev_b32 v0, 2, v0
            buffer_store_dword v{vreg}, v0, s[{srd}:{srd+3}], s62 offen""")

    def spin(vaddr, off, needv, vt, st="s61", pre=False, also=()):
        l0, l1, l2 = A.lab("sp"), A.lab("sp"), A.lab("sp")
        if pre:
            A(f"s_branch {l2}") if False else None
        A(f"{l0}:")
        A(f"ds_read_b32 v{vt}, v{vaddr} offset:{off}")
        for t in also: A(t)
        A(f"s_waitcnt lgkmcnt(0)")
        A(f"v_readfirstlane_b32 {st}, v{vt}")
        A(f"s_cmp_ge_i32 {st}, {needv}")
        A(f"s_cbranch_scc1 {l1}")
        if spin_sleep: A(f"s_sleep {spin_sleep}")
        A(f"s_sub_u32 {BUD}, {BUD}, 1")
        A(f"s_cbranch_scc0 {l0}")
        A(f"s_mov_b32 {BUD}, 0")
        A(f"{l1}:")

    def srd(base, ptr, size):
        A(f"s_mov_b32 s{base}, s{ptr}\ns_mov_b32 s{base+1}, s{ptr+1}\ns_mov_b32 s{base+2}, {size}\ns_mov_b32 s{base+3}, 0x20000")

    def execmask(lo, hi):
        if lo == 0xFFFFFFFF and hi == 0xFFFFFFFF:
            A("s_mov_b64 exec, -1")
        elif hi == 0 and lo <= 64:
            A(f"s_mov_b64 exec, {lo}")
        else:
            A(f"s_mov_b32 exec_lo, {lo:#x}\ns_mov_b32 exec_hi, {hi:#x}")
    FULL = (0xFFFFFFFF, 0xFFFFFFFF)
    N0 = (0x00010001, 0x00010001)
    NLT8 = (0x00FF00FF, 0x00FF00FF)

    def poll(loads, regs, vt, first_issued=None, slp=None, words=False, cnt=None):
        l0, l1, l2 = A.lab("pl"), A.lab("pl"), A.lab("pl")
        if cnt and stamps is True: A("s_mov_b32 s85, 0")
        if first_issued is not None: A(f"s_waitcnt vmcnt({first_issued})\ns_branch {l2}")
        A(f"{l0}:")
        for t in loads: A(t)
        A("s_waitcnt vmcnt(0)")
        A(f"{l2}:")
        if cnt and stamps is True: A("s_add_u32 s85, s85, 1")
        rs = list(regs)
        if words: rs = rs[1::2]
        for k, r in enumerate(rs):
            A(f"v_xor_b32 v{r}, s{84 if words else 80 + (k & 3)}, v{r}")
        if len(rs) == 2: A(f"v_or_b32 v{vt}, v{rs[0]}, v{rs[1]}")
        else: A(f"v_or3_b32 v{vt}, v{rs[0]}, v{rs[1]}, v{rs[2]}")
        k = 3
        while k < len(rs):
            if k + 1 < len(rs):
                A(f"v_or3_b32 v{vt}, v{vt}, v{rs[k]}, v{rs[k+1]}"); k += 2
            else:
                A(f"v_or_b32 v{vt}, v{vt}, v{rs[k]}"); k += 1
        if not words: A(f"v_and_b32 v{vt}, {TAGM:#x}, v{vt}")
        A(f"v_cmp_ne_u32 vcc, 0, v{vt}")
        A(f"s_cbranch_vccz {l1}")
        A("s_mov_b64 exec, vcc")
        slp = sleep_poll if slp is None else slp
        if slp: A(f"s_sleep {slp}")
        A(f"s_sub_u32 {BUD}, {BUD}, 16")
        A(f"s_cbranch_scc0 {l0}")
        A(f"s_mov_b32 {BUD}, 0")
        A(f"{l1}:")
        A("s_mov_b64 exec, -1")
        if cnt and stamps is True: A(f"v_writelane_b32 v{cnt[0]}, s85, {cnt[1]}")

    def tag(r0, vm):
        for k in range(4):
            A(f"v_bfi_b32 v{r0+k}, v{vm}, s{80+k}, v{r0+k}")

    def tags_setup():
        A(f"s_add_u32 s84, s79, 1\ns_and_b32 s80, s84, {TAGM:#x}")
        for k in range(1, 4):
            A(f"s_add_u32 s{80+k}, s80, {256*k}\ns_and_b32 s{80+k}, s{80+k}, {TAGM:#x}")

    def controller(DBs):
        if not ctl: return
        levels = list(dict.fromkeys([D] + [d for d in ctl[0::2] if d != D]))
        A(f"""s_mov_b32 s52, {4 + 2*u0}
        s_and_b32 s53, s2, 7
        s_lshl_b32 s53, s53, 7
        s_add_u32 s53, s53, {PG}
        s_lshr_b32 s55, s2, 3
        s_lshl_b32 s55, s55, 2
        s_add_u32 s55, s55, s53
        s_lshl_b32 s56, s84, 8
        s_mov_b32 exec_lo, -1
        s_mov_b32 exec_hi, 0
        v_lshlrev_b32 v11, 2, v0
        L_ctl:""")
        spin(2, F_LAND, "s52", 3)
        A(f"""buffer_load_dword v12, v11, s[28:31], s53 offen {pld}
        s_add_u32 s57, s56, s52
        v_mov_b32 v15, s57
        s_mov_b32 exec_lo, 1
        buffer_store_dword v15, v4, s[28:31], s55 offen {pst}
        s_mov_b32 exec_lo, -1
        s_waitcnt vmcnt(1)
        v_subrev_u32 v12, s57, v12
        v_cmp_gt_u32 vcc, 32, v12
        s_bcnt1_i32_b32 s61, vcc_lo
        s_mov_b32 s54, {levels.index(ctl[0])}""")
        for t, d in zip(ctl[1::2], ctl[2::2]):
            A(f"s_cmp_ge_u32 s61, {t}\ns_cselect_b32 s54, {levels.index(d)}, s54")
        A(f"v_mov_b32 v12, s54\nds_write_b32 v2, v12 offset:{C_D}")
        A(f"s_add_u32 s52, s52, {step}\ns_cmp_le_u32 s52, 17\ns_cbranch_scc1 L_ctl\ns_mov_b64 exec, -1")

    def allred(op, v, t):
        for m in ("quad_perm:[1,0,3,2]", "quad_perm:[2,3,0,1]", "row_half_mirror", "row_mirror"):
            A(f"{op}_dpp v{v}, v{v}, v{v} {m} row_mask:0xf bank_mask:0xf")
        xrow(op, v, t)

    def xrow(op, v, t):
        A(f"v_mov_b32 v{t}, v{v}\nv_permlane16_swap_b32 v{v}, v{t}\n{op} v{v}, v{v}, v{t}")
        A(f"v_mov_b32 v{t}, v{v}\nv_permlane32_swap_b32 v{v}, v{t}\n{op} v{v}, v{v}, v{t}")

    def rnd(v, t=None):
        A(f"v_cvt_pk_bf16_f32 v{v}, v{v}, v{v}\nv_and_b32 v{v}, 0xffff0000, v{v}")

    def silu(v, t0, t1):
        A(f"""v_mul_f32 v{t0}, 0xbfb8aa3b, v{v}
        v_exp_f32 v{t0}, v{t0}
        v_add_f32 v{t0}, 1.0, v{t0}
        v_rcp_f32 v{t1}, v{t0}
        v_mul_f32 v{v}, v{v}, v{t1}""")

    A(f"{KN}:")
    if stamps or dbgst or floor: A("s_memrealtime s[90:91]")
    A("s_cmp_ge_u32 s2, 256\ns_cbranch_scc1 L_end")
    A("s_load_dwordx16 s[4:19], s[0:1], 0\ns_load_dwordx8 s[20:27], s[0:1], 64")
    A(f"v_lshlrev_b32 v2, 2, v0\nv_add_u32 v2, {MISC}, v2\nv_mov_b32 v3, 0\nds_write_b32 v2, v3")
    A("v_lshrrev_b32 v1, 6, v0\nv_and_b32 v0, 63, v0\nv_readfirstlane_b32 s3, v1")
    A(f"s_mov_b32 {BUD}, {budget}")
    A("""s_lshr_b32 s64, s2, 6
    s_and_b32 s65, s2, 63
    s_lshr_b32 s68, s65, 3
    s_and_b32 s72, s2, 1
    s_lshl_b32 s73, s72, 3
    s_or_b32 s68, s68, s73
    s_bfe_u32 s69, s2, 0x20001
    s_waitcnt lgkmcnt(0)
    s_barrier""")
    if wsoff: A(f"s_add_u32 s26, s26, {wsoff}\ns_addc_u32 s27, s27, 0")
    A("""s_cmp_ge_u32 s3, 4
    s_cbranch_scc1 L_notL""")

    def more_idx():
        A("""s_lshl_b32 s66, s64, 3
        s_and_b32 s73, s2, 7
        s_or_b32 s66, s66, s73
        s_bfe_u32 s67, s2, 0x30003
        s_bfe_u32 s70, s2, 0x40003
        s_lshr_b32 s71, s2, 7
        s_lshl_b32 s71, s71, 2
        s_or_b32 s71, s71, s69""")

    SWQ, SGU, SK, SV, SDN, SWO = 28, 32, 36, 40, 44, 48
    A("s_setprio 3")
    stamp(0, 20)
    A("""v_lshrrev_b32 v2, 3, v0
    v_lshlrev_b32 v2, 13, v2
    v_and_b32 v3, 7, v0
    v_lshl_or_b32 v2, v3, 4, v2
    s_lshl_b32 s52, s69, 2
    s_add_u32 s52, s52, s3
    s_lshl_b32 s52, s52, 19
    s_lshl_b32 s73, s64, 11
    s_add_u32 s52, s52, s73
    s_lshl_b32 s73, s68, 7
    s_add_u32 s52, s52, s73
    s_lshl_b32 s57, s3, 15""")
    srd(SWQ, 10, 1 << 23)
    st = dict(issued=0, notified=0)
    ends = []

    def notify(val):
        A(f"v_mov_b32 v9, {val}\nds_write_b32 v8, v9 offset:{F_LAND}")

    def pace(Dt, first_ok=0):
        P = st["issued"]
        if P >= Dt:
            A(f"s_waitcnt vmcnt({Dt-1})")
            while st["notified"] < len(ends) and ends[st["notified"]][0] <= P - Dt:
                notify(ends[st["notified"]][1]); st["notified"] += 1
                if ends[st["notified"]-1][1] >= 19: stamp(4 + ends[st["notified"]-1][1] - 19, 20)

    def l_setup_rest():
        more_idx()
        A("""s_cmp_eq_u32 s72, 0
        s_cselect_b32 s32, s16, s18
        s_cselect_b32 s33, s17, s19
        s_mov_b32 s34, 7340032
        s_mov_b32 s35, 0x20000""")
        srd(SK, 6, 1 << 26); srd(SDN, 20, 7340032); srd(SWO, 12, 1 << 23)
        A(f"""s_lshl_b32 s53, s71, 2
        s_add_u32 s53, s53, s3
        s_mul_i32 s53, s53, {32*7168}
        s_mul_i32 s73, s70, 448
        s_add_u32 s53, s53, s73
        s_lshl_b32 s54, s65, 2
        s_add_u32 s54, s54, s3
        s_lshr_b32 s73, s54, {kvs}
        s_lshl_b32 s73, s73, {kvs + 3}
        s_and_b32 s54, s54, {(1 << kvs) - 1}
        s_add_u32 s54, s54, s73
        s_lshl_b32 s54, s54, 13
        s_lshl_b32 s73, s64, 24
        s_add_u32 s54, s54, s73
        s_lshl_b32 s56, s66, 2
        s_add_u32 s56, s56, s3
        s_lshl_b32 s73, s67, 8
        s_mul_i32 s55, s56, {28*2048}
        s_add_u32 s55, s55, s73
        s_lshl_b32 s56, s56, 16
        s_add_u32 s56, s56, s73
        v_lshlrev_b32 v3, 4, v0
        v_add_u32 v4, 6720, v3
        v_cmp_gt_u32 vcc, 28, v0
        v_cndmask_b32 v3, v4, v3, vcc
        v_lshrrev_b32 v10, 4, v0
        v_and_b32 v11, 15, v0
        v_lshlrev_b32 v12, 1, v10
        v_xor_b32 v12, v11, v12
        v_xor_b32 v13, 8, v12
        v_lshlrev_b32 v12, 4, v12
        v_lshlrev_b32 v13, 4, v13
        v_lshl_or_b32 v4, v10, 8, v12
        v_lshl_or_b32 v5, v10, 8, v13
        v_lshl_or_b32 v6, v10, 11, v12
        v_lshl_or_b32 v7, v10, 11, v13
        s_lshl_b32 s73, s3, 8
        s_add_u32 s73, s73, {MISC}
        v_lshl_add_u32 v8, v0, 2, s73""")

    for i in range(8):
        pace(D)
        A(f"s_add_u32 m0, s57, {i*1024}")
        A(f"buffer_load_dwordx4 v2, s[{SWQ}:{SWQ+3}], s52 offen nt lds")
        A(f"s_add_u32 s52, s52, 65536")
        st["issued"] += 1
        if i == D - 1:
            l_setup_rest()
            stamp(1, 20)
    ends.append((7, 1))
    A("s_lshr_b64 exec, -1, 8")
    for t in (1, 2):
        for i in range(8):
            pace(D)
            A(f"s_add_u32 m0, s57, {t*8192 + i*896}")
            A(f"buffer_load_dwordx4 v3, s[{SGU}:{SGU+3}], s53 offen nt lds")
            A(f"s_add_u32 s53, s53, 14336")
            st["issued"] += 1
        ends.append((st["issued"] - 1, t + 1))
    A("s_mov_b64 exec, -1")
    assert st["notified"] == 2 and D <= 8
    stamp(2, 20)
    levels = [D] + ([d for d in ctl[0::2] if d != D] if ctl else [])
    levels = list(dict.fromkeys(levels))
    A(f"s_mov_b32 s58, 3\ns_add_u32 s59, s57, {3*8192}\nv_mov_b32 v11, {MISC}\nds_read_b32 v10, v8 offset:{F_CONS}\nds_read_b32 v12, v11 offset:{C_D}")
    A("L_lloop:")
    A("s_waitcnt lgkmcnt(0)")
    if stamps is True: A("s_add_u32 m0, s58, 8\nv_writelane_b32 v20, s62, m0")
    A("v_readfirstlane_b32 s61, v10\nv_readfirstlane_b32 s77, v12\ns_sub_u32 s75, s58, 3\ns_cmp_ge_i32 s61, s75\ns_cbranch_scc1 L_lok")
    spin(8, F_CONS, "s75", 10)
    A("L_lok:\ns_mov_b32 m0, s59\ns_add_u32 s74, s54, 4096")
    for k in range(1, len(levels)):
        A(f"s_cmp_eq_u32 s77, {k}\ns_cbranch_scc1 L_lb{k}")
    for k, Dk in enumerate(levels):
        A(f"L_lb{k}:")
        for i in range(8):
            A(f"s_waitcnt vmcnt({Dk-1})")
            if i == Dk - 1: notify("s58")
            if i == 4: A("s_add_u32 m0, s59, 4096")
            A(f"buffer_load_dwordx4 v{4+(i&1)}, s[{SK}:{SK+3}], {'s54' if i < 4 else 's74'} offen offset:{(i&3)*1024} nt lds")
        if k < len(levels) - 1: A("s_branch L_lnext")
    A("L_lnext:")
    if stamps is True: A("s_memrealtime s[62:63]")
    A(f"""ds_read_b32 v10, v8 offset:{F_CONS}
    ds_read_b32 v12, v11 offset:{C_D}
    s_add_u32 s58, s58, 1
    s_and_b32 s59, s58, 3
    s_lshl_b32 s59, s59, 13
    s_add_u32 s59, s59, s57
    s_cmp_eq_u32 s58, 11
    s_cselect_b32 s{SK}, s8, s{SK}
    s_cselect_b32 s{SK+1}, s9, s{SK+1}
    s_cselect_b32 s73, {8 * (8192 << kvs)}, 0
    s_sub_u32 s54, s54, s73
    s_add_u32 s54, s54, {8192 << kvs}
    s_cmp_lt_u32 s58, 19
    s_cbranch_scc1 L_lloop""")
    stamp(3, 20)
    if warm: A.hops_on(warm)
    st["issued"] = 1000; st["notified"] = 0
    ends[:] = [(999, 19)]
    for t, n, sr, so in (((19, 8, SWO, 56), (20, 7, SDN, 55)) if wofirst else ((19, 7, SDN, 55), (20, 8, SWO, 56))):
        ok = A.lab("ok")
        A("s_waitcnt lgkmcnt(0)")
        A(f"v_readfirstlane_b32 s61, v10\ns_cmp_ge_i32 s61, {t-3}\ns_cbranch_scc1 {ok}")
        spin(8, F_CONS, t - 3, 10)
        A(f"{ok}:")
        for i in range(n):
            pace(Dend1 if (Dend1 and st["issued"] - 1000 < n1) else Dend)
            A(f"s_add_u32 m0, s57, {(t&3)*8192 + i*1024}")
            A(f"buffer_load_dwordx4 v{6+(i&1)}, s[{sr}:{sr+3}], s{so} offen nt lds")
            A(f"s_add_u32 s{so}, s{so}, 8192")
            st["issued"] += 1
        ends.append((st["issued"] - 1, t + 1))
        if t == 19: A(f"ds_read_b32 v10, v8 offset:{F_CONS}")
    while st["notified"] < len(ends):
        e, val = ends[st["notified"]]
        A(f"s_waitcnt vmcnt({st['issued'] - 1 - e})")
        notify(val); st["notified"] += 1
        stamp(4 + val - 19, 20)
    if stamps is True:
        srd(28, 26, (1 << 28) - wsoff)
        stamp_flush(20, 28)
    A.hops_off()
    A("s_endpgm")

    A("L_notL:")
    A(f"s_load_dword s79, s[26:27], {EP:#x}")
    more_idx()
    if lonly:
        A("s_cmp_ge_u32 s3, 8\ns_cbranch_scc1 L_Px")
        if lonly == 1:
            A(f"s_sub_u32 s76, s3, 4\ns_lshl_b32 s73, s76, 8\ns_add_u32 s73, s73, {MISC}\nv_lshl_add_u32 v1, v0, 2, s73\nv_mov_b32 v3, 100\nds_write_b32 v1, v3 offset:{F_CONS}\ns_endpgm")
        else:
            A(f"s_sub_u32 s76, s3, 4\ns_lshl_b32 s73, s76, 8\ns_add_u32 s73, s73, {MISC}\nv_lshl_add_u32 v1, v0, 2, s73\ns_mov_b32 s49, 1\nL_xl:")
            spin(1, F_LAND, "s49", 3)
            A(f"v_mov_b32 v3, s49\nds_write_b32 v1, v3 offset:{F_CONS}\ns_add_u32 s49, s49, 1")
            if lst is not None:
                A("s_cmp_lg_u32 s49, 20\ns_cbranch_scc1 L_xn")
                srd(28, 26, 1 << 28)
                A(f"""v_lshrrev_b32 v114, 3, v0
                v_and_b32 v115, 7, v0
                v_lshlrev_b32 v115, 4, v115
                v_lshl_or_b32 v114, v114, 13, v115
                s_lshl_b32 s47, s64, 2
                s_add_u32 s47, s47, s76
                s_lshl_b32 s47, s47, 9
                s_add_u32 s47, s47, s65
                s_lshl_b32 s47, s47, 7
                s_add_u32 s47, s47, {OP}""")
                if lstn == 0: A(f"v_lshlrev_b32 v114, 4, v0\ns_lshl_b32 s47, s2, 2\ns_add_u32 s47, s47, s76\ns_lshl_b32 s47, s47, 10\ns_add_u32 s47, s47, {OP}")
                if lstw == 4: A(f"buffer_store_dwordx4 v[100:103], v114, s[28:31], s47 offen {lst}")
                else: A(f"s_mov_b32 exec_hi, 0\nbuffer_store_dwordx4 v[100:103], v114, s[28:31], s47 offen {lst}\ns_mov_b64 exec, -1")
                A("L_xn:")
            A("s_cmp_lt_u32 s49, 22\ns_cbranch_scc1 L_xl\ns_endpgm")
        A("L_Px:")
        srd(28, 26, (1 << 28) - wsoff); srd(36, 24, 256)
        A(f"v_mov_b32 v2, {MISC}\nv_mov_b32 v4, 0\ns_waitcnt lgkmcnt(0)")
        tags_setup()
        controller(36)
        A(f"s_cmp_lg_u32 s2, 0\ns_cbranch_scc1 L_px2\ns_mov_b64 exec, 1\nv_mov_b32 v16, s84\ns_mov_b32 s45, {EP}\nbuffer_store_dword v16, v4, s[28:31], s45 offen sc1\nL_px2:")
        stamp(8, 60)
        A("v_writelane_b32 v60, s90, 10")
        stamp_flush(60, 28)
        A("s_endpgm")
    A("s_cmp_ge_u32 s3, 8\ns_cbranch_scc1 L_P")
    WS, XS, DB = 28, 32, 36
    if prio: A("s_setprio 2")
    stamp(0, 167)
    A(f"""s_sub_u32 s76, s3, 4
    v_lshrrev_b32 v104, 4, v0
    s_lshl_b32 s40, s69, 2
    s_add_u32 s40, s40, s76
    s_lshl_b32 s40, s40, 7
    s_lshl_b32 s41, s71, 2
    s_add_u32 s41, s41, s76
    s_lshl_b32 s41, s41, 6
    v_lshlrev_b32 v106, 4, v104
    v_lshlrev_b32 v107, 4, v0
""")
    srd(XS, 4, 2048)
    A(f"""buffer_load_dwordx4 v[64:67], v107, s[{XS}:{XS+3}], 0 offen
    buffer_load_dwordx4 v[68:71], v107, s[{XS}:{XS+3}], 0 offen offset:1024
    buffer_load_dwordx4 v[128:131], v106, s[{XS}:{XS+3}], s40 offen
    buffer_load_dwordx4 v[132:135], v106, s[{XS}:{XS+3}], s40 offen offset:64
    buffer_load_dwordx4 v[136:139], v106, s[{XS}:{XS+3}], s41 offen""")
    srd(WS, 26, (1 << 28) - wsoff)
    A(f"""s_lshl_b32 s46, s76, 15
    s_lshl_b32 s73, s76, 8
    s_add_u32 s73, s73, {MISC}
    v_lshl_add_u32 v1, v0, 2, s73
    v_mov_b32 v2, {MISC}
    v_and_b32 v113, 15, v0
    v_and_b32 v114, 7, v0
    v_lshlrev_b32 v114, 1, v114
    v_lshlrev_b32 v115, 8, v113
    s_add_u32 s73, s46, {3*8192}
    v_add_u32 v115, s73, v115""")
    for jj in range(4):
        A(f"v_add_u32 v116, {4*jj}, v104\nv_xor_b32 v116, v116, v114\nv_lshl_add_u32 v{4+jj}, v116, 4, v115")
    A(f"""v_lshrrev_b32 v116, 2, v0
    v_and_b32 v117, 7, v116
    v_and_b32 v118, 3, v0
    v_lshlrev_b32 v118, 3, v118
    v_lshl_add_u32 v116, v116, 8, v118
    v_add_u32 v116, s73, v116""")
    for b in range(8):
        A(f"v_xor_b32 v119, {b}, v117\nv_lshl_add_u32 v{8+b}, v119, 5, v116")
    A(f"""v_bfe_u32 v119, v0, 2, 2
    v_lshl_add_u32 v122, v104, 3, v119
    v_lshl_add_u32 v122, v122, 7, v118
    v_add_u32 v122, s46, v122
    v_and_b32 v123, 1, v104
    v_lshl_add_u32 v123, v123, 3, v119
    v_mul_u32_u24 v123, 448, v123
    v_lshrrev_b32 v119, 5, v0
    v_lshl_add_u32 v123, v119, 13, v123
    s_add_u32 s73, s46, 8192
    v_add3_u32 v123, v123, v118, s73""")
    stamp(17, 167)
    A("s_waitcnt vmcnt(3)")
    stamp(18, 167)
    for i in range(8):
        A(f"v_lshlrev_b32 v{72+2*i}, 16, v{64+i}\nv_and_b32 v{73+2*i}, 0xffff0000, v{64+i}")
    A("v_add_f32 v64, v72, v73\nv_add_f32 v65, v74, v75")
    for i in range(2, 8):
        A(f"v_add_f32 v{64+(i&1)}, v{64+(i&1)}, v{72+2*i}\nv_add_f32 v{64+(i&1)}, v{64+(i&1)}, v{73+2*i}") if False else None
    for i in range(4, 16):
        A(f"v_add_f32 v{64+(i&1)}, v{64+(i&1)}, v{72+i}")
    A("v_add_f32 v64, v64, v65")
    allred("v_add_f32", 64, 65)
    A("v_mul_f32 v64, 0x3a800000, v64")
    for i in range(16):
        A(f"v_sub_f32 v{72+i}, v{72+i}, v64")
    A("v_mul_f32 v66, v72, v72\nv_mul_f32 v67, v73, v73")
    for i in range(2, 16):
        A(f"v_fmac_f32 v{66+(i&1)}, v{72+i}, v{72+i}")
    A("v_add_f32 v66, v66, v67")
    allred("v_add_f32", 66, 67)
    A("v_mul_f32 v66, 0x3a800000, v66")
    rnd(64); rnd(66)
    A(f"v_add_f32 v66, {EPS:#x}, v66")
    rnd(66)
    A("v_sqrt_f32 v66, v66")
    rnd(66)
    A("v_rcp_f32 v67, v66\ns_waitcnt vmcnt(0)")
    for i in range(12):
        x = 128 + i
        A(f"""v_lshlrev_b32 v72, 16, v{x}
        v_and_b32 v73, 0xffff0000, v{x}
        v_sub_f32 v72, v72, v64
        v_sub_f32 v73, v73, v64
        v_cvt_pk_bf16_f32 v73, v72, v73
        v_lshlrev_b32 v72, 16, v73
        v_and_b32 v73, 0xffff0000, v73
        v_mul_f32 v74, v72, v67
        v_mul_f32 v75, v73, v67
        v_fma_f32 v72, -v74, v66, v72
        v_fma_f32 v73, -v75, v66, v73
        v_fmac_f32 v74, v72, v67
        v_fmac_f32 v75, v73, v67
        v_cvt_pk_bf16_f32 v{x}, v74, v75""")
    stamp(1, 167)

    def release(val):
        A(f"v_mov_b32 v3, {val}\nds_write_b32 v1, v3 offset:{F_CONS}")

    def cnt_add(off):
        A(f"s_mov_b64 exec, 1\nds_add_u32 v2, v124 offset:{off}\ns_mov_b64 exec, -1")

    def cnt_last(off, skip):
        A(f"s_mov_b64 exec, 1\nds_add_rtn_u32 v3, v2, v124 offset:{off}\ns_waitcnt lgkmcnt(0)")
        A(f"v_readfirstlane_b32 s61, v3\ns_cmp_eq_u32 s61, 3\ns_cbranch_scc0 {skip}")

    def tr_mfma(addr, nblk, blkstep, second, dreg, breg, frag0=64, acc=False, addr_per_blk=False, extra_off=0, rel=None):
        def rd(b):
            a = addr + b if addr_per_blk else addr
            o = extra_off + (0 if addr_per_blk else b * blkstep)
            f = frag0 + 4 * (b % 8)
            A(f"ds_read_b64_tr_b16 v[{f}:{f+1}], v{a} offset:{o}")
            A(f"ds_read_b64_tr_b16 v[{f+2}:{f+3}], v{a} offset:{o+second}")
        issued = min(7, nblk)
        for b in range(issued): rd(b)
        for b in range(nblk):
            A(f"s_waitcnt lgkmcnt({2*(issued-b-1)})")
            if rel is not None and b == nblk - 1: release(rel)
            f = frag0 + 4 * (b % 8)
            d = dreg(b)
            A(f"v_mfma_f32_16x16x32_bf16 v[{d}:{d+3}], v[{f}:{f+3}], v[{breg}:{breg+3}], {'v[%d:%d]' % (d, d+3) if acc else '0'}")
            if issued < nblk:
                rd(issued); issued += 1

    A("v_mov_b32 v124, 1")
    spin(1, F_LAND, 1, 3)
    stamp(2, 167)
    tr_mfma(122, 4, 32, 512, lambda b: 32 + 4*b, 128, frag0=64)
    tr_mfma(122, 4, 32, 512, lambda b: 32 + 4*b, 132, frag0=80, acc=True, extra_off=4096, rel=1)
    A(f"""s_lshl_b32 s73, s76, 8
    s_add_u32 s73, s73, {MISC + QRED}
    v_add_u32 v112, s73, v106""")
    execmask(*N0)
    for b in range(4):
        A(f"ds_write_b128 v112, v[{32+4*b}:{35+4*b}] offset:{b*64}")
    cnt_add(C_A)
    tags_setup()
    A(f"v_mov_b32 v166, {TAGM:#x}")
    stamp(3, 167)
    spin(1, F_LAND, 3, 3)
    stamp(4, 167)
    gu_d = lambda b: 32 + 4*b if b < 8 else 96 + 4*(b - 8)
    tr_mfma(123, 14, 32, 1792, gu_d, 136, rel=3)
    A(f"""v_lshrrev_b32 v125, 4, v0
    v_lshlrev_b32 v125, 4, v125
    s_mul_i32 s73, s76, 896
    s_add_u32 s73, s73, {MISC + HRED}
    v_add_u32 v126, s73, v125""")
    execmask(*N0)
    for b in range(14):
        d = gu_d(b)
        A(f"ds_write_b128 v126, v[{d}:{d+3}] offset:{b*64}")
    cnt_add(C_H)
    stamp(5, 167)
    A("v_mov_b32 v120, 0xff800000\nv_mov_b32 v121, 0")
    A(f"s_mov_b32 s49, 4\ns_mov_b32 s50, {LOG2E:#x}\ns_mov_b32 s51, {SCALE:#x}")

    def v_reads(f0, off=0):
        for b in range(7):
            A(f"ds_read_b64_tr_b16 v[{f0+4*b}:{f0+1+4*b}], v{8+b} offset:{off}\nds_read_b64_tr_b16 v[{f0+2+4*b}:{f0+3+4*b}], v{8+b} offset:{off+4096}")
        A("s_waitcnt lgkmcnt(4)")
        A(f"ds_read_b64_tr_b16 v[{f0+28}:{f0+29}], v15 offset:{off}\nds_read_b64_tr_b16 v[{f0+30}:{f0+31}], v15 offset:{off+4096}")

    def k_reads(f0):
        spin(1, F_LAND, "s49", 3)
        for jj in range(4):
            for sub in range(2):
                f = f0 + 4*(2*jj + sub)
                A(f"ds_read_b128 v[{f}:{f+3}], v{4+jj} offset:{sub*4096}")
        A("s_waitcnt lgkmcnt(0)")
        release("s49")
        for jj in range(4):
            A(f"v_xor_b32 v{4+jj}, s52, v{4+jj}")
        A("s_xor_b32 s52, s52, 0x4000\ns_add_u32 s49, s49, 1")
    A(f"""s_mov_b32 s52, 0x6000
    s_lshl_b32 s73, s76, 12
    s_add_u32 s73, s73, {MISC + SBUF}
    v_and_b32 v127, 7, v0
    v_lshlrev_b32 v127, 4, v127
    v_lshl_add_u32 v127, v125, 3, v127
    v_add_u32 v127, s73, v127""")
    k_reads(64)
    k_reads(128)
    A(f"""s_lshl_b32 s47, s64, 2
    s_add_u32 s47, s47, s76
    s_lshl_b32 s47, s47, 10
    s_add_u32 s47, s47, {QF}
    v_lshlrev_b32 v126, 4, v0
    s_lshl_b32 s73, s76, 9
    s_add_u32 s73, s73, {MISC + QBUF}
    v_lshl_add_u32 v112, v0, 3, s73
    v_and_b32 v113, 7, v0
    v_lshl_add_u32 v113, v113, 8, v125
    v_add_u32 v113, {MISC + QBUF}, v113""")
    spin(1, F_LAND, tq2, 3)
    stamp(6, 167)
    for r in range(32):
        A(f"v_mov_b32 v{32+r}, 0")
    if 'q' not in skip: poll([f"buffer_load_dwordx4 v[96:99], v126, s[{WS}:{WS+3}], s47 offen {pol('qfld')}"], range(96, 100), 114, words=True, slp=6)
    A("v_mov_b32 v97, v98\nds_write_b64 v112, v[96:97]")
    cnt_add(C_Q)
    spin(2, C_Q, 4, 3, also=[f"ds_read_b128 v[{16+4*jj}:{19+4*jj}], v113 offset:{jj*64}" for jj in range(4)])
    stamp(7, 167)
    A("s_mov_b32 s53, 0")
    A("L_c_qk:")
    for jj in range(4):
        for sub in range(2):
            k = 2*jj + sub
            f = 64 + 4*k; d = 96 + 4*sub
            A(f"v_mfma_f32_16x16x32_bf16 v[{d}:{d+3}], v[{f}:{f+3}], v[{16+4*jj}:{19+4*jj}], {'0' if jj == 0 else 'v[%d:%d]' % (d, d+3)}")
    for rep in range(2):
        for i in range(4):
            A(f"v_cvt_pk_bf16_f32 v{104+i}, v{96+2*i}, v{97+2*i}")
        if rep == 1: A("ds_write_b128 v127, v[104:107]\nv_add_u32 v127, 512, v127")
        for i in range(4):
            A(f"v_lshlrev_b32 v{96+2*i}, 16, v{104+i}\nv_and_b32 v{97+2*i}, 0xffff0000, v{104+i}")
        if rep == 0:
            for i in range(8):
                A(f"v_mul_f32 v{96+i}, s51, v{96+i}")
    A("""v_max3_f32 v120, v120, v96, v97
    v_max3_f32 v109, v98, v99, v100
    v_max3_f32 v120, v120, v101, v102
    v_max3_f32 v120, v120, v109, v103
    s_add_u32 s53, s53, 1
    s_cmp_eq_u32 s53, 1
    s_cbranch_scc1 L_c_second
    s_cmp_eq_u32 s53, 8
    s_cbranch_scc1 L_c_kdone""")
    k_reads(64)
    A("s_branch L_c_qk")
    A("L_c_second:")
    for r in range(32):
        A(f"v_mov_b32 v{64+r}, v{128+r}")
    A("s_branch L_c_qk")
    A("L_c_kdone:")
    xrow("v_max_f32", 120, 109)
    A("v_mul_f32 v110, s50, v120\nv_subrev_u32 v127, 4096, v127\ns_mov_b32 s52, 0x6000")
    A("L_c_exp:")
    A("ds_read_b128 v[104:107], v127\ns_waitcnt lgkmcnt(0)")
    for i in range(4):
        A(f"v_lshlrev_b32 v{96+2*i}, 16, v{104+i}\nv_and_b32 v{97+2*i}, 0xffff0000, v{104+i}")
    for i in range(8):
        A(f"v_fma_f32 v{96+i}, v{96+i}, s50, -v110")
    for i in range(8):
        A(f"v_exp_f32 v{96+i}, v{96+i}")
    for i in range(4):
        A(f"v_cvt_pk_bf16_f32 v{104+i}, v{96+2*i}, v{97+2*i}")
    A("""v_add_f32 v96, v96, v97
    v_add_f32 v98, v98, v99
    v_add_f32 v100, v100, v101
    v_add_f32 v102, v102, v103
    v_add_f32 v96, v96, v98
    v_add_f32 v100, v100, v102
    v_add_f32 v96, v96, v100
    v_add_f32 v121, v121, v96
    ds_write_b128 v127, v[104:107]
    v_add_u32 v127, 512, v127
    s_sub_u32 s53, s53, 1
    s_cmp_lg_u32 s53, 0
    s_cbranch_scc1 L_c_exp
    v_subrev_u32 v127, 4096, v127""")
    stamp(8, 167)
    xrow("v_add_f32", 121, 109)
    A(f"""s_lshl_b32 s73, s76, 6
    s_add_u32 s73, s73, {MISC + MLX}
    v_lshl_add_u32 v112, v0, 3, s73
    s_mov_b32 exec_lo, 0xff
    s_mov_b32 exec_hi, 0
    ds_write_b64 v112, v[120:121]""")
    cnt_add(C_ML)
    A(f"""v_lshrrev_b32 v113, 5, v0
    s_lshl_b32 s73, s76, 1
    v_add_u32 v113, s73, v113
    v_lshlrev_b32 v112, 3, v113
    v_add_u32 v112, {MISC + MLX}, v112""")
    spin(2, C_ML, 4, 3)
    for k in range(4):
        A(f"ds_read_b64 v[{96+2*k}:{97+2*k}], v112 offset:{k*64}")
    A(f"""s_lshl_b32 s47, s64, 9
    s_add_u32 s47, s47, s65
    s_lshl_b32 s47, s47, 4
    s_add_u32 s47, s47, {ML}
    v_lshlrev_b32 v114, 10, v113
    s_waitcnt lgkmcnt(0)
    v_max3_f32 v164, v96, v98, v100
    v_max_f32 v164, v164, v102""")
    for k in range(4):
        A(f"v_sub_f32 v{160+k}, v{96+2*k}, v164\nv_mul_f32 v{160+k}, s50, v{160+k}")
    for k in range(4):
        A(f"v_exp_f32 v{160+k}, v{160+k}")
    A("""v_mul_f32 v165, v160, v97
    v_fmac_f32 v165, v161, v99
    v_fmac_f32 v165, v162, v101
    v_fmac_f32 v165, v163, v103
    v_mov_b32 v96, v164
    v_mov_b32 v97, v165
    v_mov_b32 v98, 0
    v_mov_b32 v99, 0""")
    tag(96, 166)
    A("s_mov_b32 exec_lo, 1\ns_mov_b32 exec_hi, 1")
    A(f"buffer_store_dwordx4 v[96:99], v114, s[{WS}:{WS+3}], s47 offen {pol('mst')}")
    execmask(*FULL)
    A("L_cloop:")
    A("ds_read_b128 v[104:107], v127\nv_add_u32 v127, 512, v127\ns_cmp_eq_u32 s49, 19\ns_cbranch_scc1 L_c_last")
    spin(1, F_LAND, "s49", 3)
    tr_mfma(8, 8, 0, 4096, lambda b: 32 + 4*b, 104, acc=True, addr_per_blk=True, rel="s49")
    for b in range(8):
        A(f"v_xor_b32 v{8+b}, s52, v{8+b}")
    A("s_xor_b32 s52, s52, 0x4000\ns_add_u32 s49, s49, 1\ns_branch L_cloop")
    A("L_c_last:")
    if warm: A.hops_on(warm)
    A("v_lshrrev_b32 v113, 5, v0\ns_lshl_b32 s73, s76, 1\nv_add_u32 v113, s73, v113")
    A(f"""v_and_b32 v115, 7, v0
    v_mul_u32_u24 v115, 528, v115
    s_add_u32 s73, s46, 8192
    v_add3_u32 v115, v115, v125, s73
    v_and_b32 v117, 31, v0
    v_mul_u32_u24 v116, 528, v113
    v_lshl_add_u32 v116, v117, 4, v116
    v_add_u32 v116, 8192, v116
    v_add_u32 v118, 0x10000, v116
    v_lshrrev_b32 v119, 3, v117
    v_lshl_add_u32 v119, v113, 2, v119
    v_and_b32 v117, 7, v0
    v_lshlrev_b32 v117, 4, v117
    v_lshl_add_u32 v117, v119, 13, v117
    s_lshl_b32 s47, s64, 11
    s_add_u32 s47, s47, s65
    s_lshl_b32 s47, s47, 7
    s_add_u32 s47, s47, {OP}""")
    spin(1, F_LAND, 19, 3)
    stamp(9, 167)
    if trim:
        q = []
        def rd7(b):
            A(f"ds_read_b64_tr_b16 v[{64+4*b}:{65+4*b}], v{8+b}\nds_read_b64_tr_b16 v[{66+4*b}:{67+4*b}], v{8+b} offset:4096")
            q.extend([("r", b), ("r", b)])
        def wr7(b):
            A(f"ds_write_b128 v115, v[{32+4*b}:{35+4*b}] offset:{b*64}"); q.append(("w", b))
        for b in range(7): rd7(b)
        for b in range(8):
            last = max(k for k, e in enumerate(q) if e == ("r", b))
            A(f"s_waitcnt lgkmcnt({len(q) - 1 - last})")
            A(f"v_mfma_f32_16x16x32_bf16 v[{32+4*b}:{35+4*b}], v[{64+4*b}:{67+4*b}], v[104:107], v[{32+4*b}:{35+4*b}]")
            if b == 0: rd7(7)
            if b >= 4: wr7(b - 4)
        for b in range(4, 8): wr7(b)
        cnt_add(C_O)
        spin(2, C_O, 4, 3, also=("ds_read_b128 v[64:67], v116", "ds_read_b128 v[68:71], v116 offset:32768",
                                 "ds_read_b128 v[72:75], v118", "ds_read_b128 v[76:79], v118 offset:32768"))
    else:
        tr_mfma(8, 8, 0, 4096, lambda b: 32 + 4*b, 104, acc=True, addr_per_blk=True)
        execmask(*NLT8)
        for b in range(8):
            A(f"ds_write_b128 v115, v[{32+4*b}:{35+4*b}] offset:{b*64}")
        cnt_add(C_O)
        spin(2, C_O, 4, 3)
        A("""ds_read_b128 v[64:67], v116
        ds_read_b128 v[68:71], v116 offset:32768
        ds_read_b128 v[72:75], v118
        ds_read_b128 v[76:79], v118 offset:32768
        s_waitcnt lgkmcnt(0)""")
    for r in range(4): A(f"v_mul_f32 v{64+r}, v{64+r}, v160")
    for k in range(1, 4):
        for r in range(4): A(f"v_fmac_f32 v{64+r}, v{64+4*k+r}, v{160+k}")
    tag(64, 166)
    if 'W' not in skip: A(f"buffer_store_dwordx4 v[64:67], v117, s[{WS}:{WS+3}], s47 offen {pol('ost')}")
    stamp(10, 167)

    def gemv_out(red, cnt, pre_read, off=8192):
        q = []
        def rd(b):
            A(f"ds_read_b64_tr_b16 v[{64+4*b}:{65+4*b}], v{8+b} offset:{off}\nds_read_b64_tr_b16 v[{66+4*b}:{67+4*b}], v{8+b} offset:{off+4096}")
            q.extend([b, b])
        if not pre_read:
            for b in range(7): rd(b)
        else:
            execmask(*N0)
        for b in range(12):
            if b < 8:
                if not pre_read: A(f"s_waitcnt lgkmcnt({len(q) - 1 - max(k for k, e in enumerate(q) if e == b)})")
                A(f"v_mfma_f32_16x16x32_bf16 v[{32+4*b}:{35+4*b}], v[{64+4*b}:{67+4*b}], v[104:107], 0")
                if b == 0 and not pre_read:
                    rd(7); execmask(*N0)
            if b >= 4:
                A(f"ds_write_b128 v119, v[{32+4*(b-4)}:{35+4*(b-4)}] offset:{red - FRED + 64*(b-4)}"); q.append(None)
        cnt_add(cnt)

    A(f"""s_lshl_b32 s73, s76, 6
    s_add_u32 s74, s73, {MISC + HBUF}
    v_add_u32 v118, s74, v125
    s_add_u32 s74, s73, {MISC + OBUF}
    v_add_u32 v114, s74, v125
    v_lshrrev_b32 v113, 5, v0
    v_bfe_u32 v115, v0, 4, 1
    v_lshl_add_u32 v113, v115, 1, v113
    v_bfe_u32 v115, v0, 2, 1
    v_lshl_add_u32 v113, v115, 2, v113
    v_and_b32 v115, 3, v0
    v_lshl_add_u32 v113, v115, 3, v113
    v_lshl_add_u32 v113, v113, 1, s74
    v_lshrrev_b32 v115, 3, v0
    v_lshlrev_b32 v115, 5, v115
    v_add_u32 v115, {MISC + WBUF}, v115
    s_lshl_b32 s73, s76, 9
    s_add_u32 s73, s73, {MISC + FRED}
    v_add_u32 v119, s73, v125
    s_lshl_b32 s47, s66, 2
    s_add_u32 s47, s47, s76
    s_lshl_b32 s47, s47, 13
    s_add_u32 s47, s47, {OP}
    s_add_u32 s48, s47, 4096""")
    spin(2, C_HR, 1, 3, also=("ds_read_b128 v[104:107], v118",))
    old = [f"buffer_load_dwordx4 v[{128+4*i}:{131+4*i}], v126, s[{WS}:{WS+3}], s{47+(i>>2)} offen offset:{1024*(i&3)} {pol('old')}" for i in range(8)]
    if 'O' in skip: old = []
    getw = lambda: spin(2, C_W, 1, 3, also=("ds_read_b128 v[96:99], v115", "ds_read_b128 v[100:103], v115 offset:16"))
    def flip():
        for b in range(8): A(f"v_xor_b32 v{8+b}, 0x4000, v{8+b}")
    if wofirst:
        getw(); flip()
        spin(1, F_LAND, 20, 3)
        if otrig == 20:
            for t in old: A(t)
        stamp(13, 167)
        spin(1, F_LAND, 21, 3)
        if otrig == 21:
            for t in old: A(t)
        stamp(11, 167)
        gemv_out(FRED, C_PF, False, off=0)
        stamp(12, 167)
        flip()
        v_reads(64, 8192)
        stamp(15, 167)
    else:
        spin(1, F_LAND, 20, 3)
        stamp(11, 167)
        gemv_out(FRED, C_PF, False)
        stamp(12, 167)
        flip(); getw()
        if otrig == 20:
            for t in old: A(t)
        stamp(13, 167)
        spin(1, F_LAND, 21, 3)
        if otrig == 21:
            for t in old: A(t)
        stamp(15, 167)
        v_reads(64)
    if 'O' not in skip: poll(old, range(128, 160), 108, first_issued=0, cnt=(167, 30), slp=osleep)
    stamp(14, 167)
    for r in range(4): A(f"v_mul_f32 v{128+r}, v{128+r}, v96")
    for i in range(1, 8):
        for r in range(4): A(f"v_fmac_f32 v{128+r}, v{128+4*i+r}, v{96+i}")
    A("""v_permlane32_swap_b32 v128, v129
    v_permlane32_swap_b32 v130, v131
    v_add_f32 v128, v128, v129
    v_add_f32 v130, v130, v131
    v_permlane16_swap_b32 v128, v130
    v_add_f32 v128, v128, v130
    v_add_f32_dpp v128, v128, v128 row_ror:8 row_mask:0xf bank_mask:0xf
    v_cvt_pk_bf16_f32 v128, v128, v128
    ds_write_b16 v113, v128
    ds_read_b128 v[104:107], v114
    s_waitcnt lgkmcnt(0)""")
    gemv_out(SRED, C_PS, True)
    stamp(16, 167)
    stamp_flush(167, WS)
    A.hops_off()
    A("s_endpgm")

    A("L_P:")
    OUT = 40
    stamp(0, 60)
    A(f"""v_lshlrev_b32 v1, 4, v0
    v_mov_b32 v2, {MISC}
    v_mov_b32 v4, 0""")
    srd(WS, 26, (1 << 28) - wsoff); srd(XS, 4, 2048); srd(OUT, 22, 2048)
    if dbgst: srd(DB, 24, 256)
    A(f"""v_lshrrev_b32 v8, 5, v0
    v_bfe_u32 v9, v0, 4, 1
    v_lshl_add_u32 v8, v9, 1, v8
    v_lshlrev_b32 v8, 1, v8
    s_and_b32 s44, s2, 7
    s_lshl_b32 s44, s44, 5
    s_lshr_b32 s73, s2, 3
    s_or_b32 s44, s44, s73
    s_lshl_b32 s51, s44, 4
    s_lshl_b32 s44, s44, 3
    buffer_load_ushort v9, v8, s[{XS}:{XS+3}], s44 offen
    v_mov_b32 v10, 1""")
    A(f"""s_lshl_b32 s47, s64, 4
    s_add_u32 s47, s47, s68
    s_lshl_b32 s47, s47, 4
    s_add_u32 s47, s47, s69
    s_lshl_b32 s47, s47, 7
    v_lshrrev_b32 v5, 3, v0
    v_and_b32 v12, 7, v0
    v_lshlrev_b32 v6, 4, v12
    v_lshl_or_b32 v7, v5, 11, v6
    v_lshl_or_b32 v6, v5, 9, v6
    v_lshlrev_b32 v13, 3, v0
    v_add_u32 v13, {MISC + QRED}, v13
    v_mul_u32_u24 v11, 7, v5
    v_add_u32 v11, v11, v12
    v_lshlrev_b32 v11, 4, v11
    v_add_u32 v11, {MISC + HRED}, v11
    v_mov_b32 v5, {TAGM:#x}
    s_lshl_b32 s48, s70, 7
    s_lshl_b32 s73, s72, 3
    s_add_u32 s48, s48, s73
    s_add_u32 s48, s48, s71
    s_lshl_b32 s48, s48, 7
    s_add_u32 s48, s48, {HP}""")
    spin(2, C_A, 4, 3)
    tags_setup()

    def h_part():
        A("s_mov_b64 exec, -1")
        spin(2, C_H, 4, 3)
        for k in range(4):
            A(f"ds_read_b128 v[{16+4*k}:{19+4*k}], v11 offset:{k*896}")
        A("s_waitcnt lgkmcnt(0)")
        for r in range(4):
            A(f"v_add_f32 v{16+r}, v{16+r}, v{20+r}\nv_add_f32 v{24+r}, v{24+r}, v{28+r}")
        for r in range(4):
            A(f"v_add_f32 v{16+r}, v{16+r}, v{24+r}")
        for r in range(4):
            A(f"v_add_u32 v{16+r}, {(TAGM+1)//2}, v{16+r}")
        tag(16, 5)
        if 's' in skip: A("s_mov_b64 exec, 1")
        A(f"buffer_store_dwordx4 v[16:19], v7, s[{WS}:{WS+3}], s48 offen {pol('hst')}")
        stamp(2, 60)
    A("s_mov_b32 exec_lo, -1\ns_mov_b32 exec_hi, 0")
    for k in range(4):
        A(f"ds_read_b64 v[{16+2*k}:{17+2*k}], v13 offset:{k*256}")
    A(f"""v_mov_b32 v25, s84
    v_mov_b32 v27, s84
    s_waitcnt lgkmcnt(0)
    v_add_f32 v16, v16, v18
    v_add_f32 v17, v17, v19
    v_add_f32 v20, v20, v22
    v_add_f32 v21, v21, v23
    v_add_f32 v24, v16, v20
    v_add_f32 v26, v17, v21
    buffer_store_dwordx4 v[24:27], v6, s[{WS}:{WS+3}], s47 offen offset:{QP} {pol('qst')}""")
    stamp(1, 60)
    if tq1 > 3:
        h_part()
    spin(2, F_LAND, tq1, 3)
    A(f"""s_lshl_b32 s47, s2, 9
    s_lshl_b32 s49, s2, 6
    s_add_u32 s49, s49, {QF}
    s_mov_b32 exec_lo, -1
    s_mov_b32 exec_hi, 0""")
    if 'p' in skip: A("s_mov_b64 exec, -1")
    else: poll([f"buffer_load_dwordx4 v[16:19], v1, s[{WS}:{WS+3}], s47 offen offset:{QP} {pol('qld')}"], range(16, 20), 20, words=True, slp=6)
    for r in (16, 18): A(f"v_add_f32_dpp v{r}, v{r}, v{r} row_ror:8 row_mask:0xf bank_mask:0xf")
    A("""v_mov_b32 v17, v16
    v_mov_b32 v19, v18
    v_permlane16_swap_b32 v16, v17
    v_permlane16_swap_b32 v18, v19
    v_add_f32 v16, v16, v17
    v_add_f32 v18, v18, v19
    v_cvt_pk_bf16_f32 v16, v16, v18
    v_mov_b32 v17, s84
    v_lshlrev_b32 v18, 3, v0
    s_mov_b32 exec_lo, 0xff
    s_mov_b32 exec_hi, 0""")
    A(f"buffer_store_dwordx2 v[16:17], v18, s[{WS}:{WS+3}], s49 offen {pol('qfst')}")
    stamp(9, 60)
    if tq1 <= 3: h_part()
    A("s_mov_b64 exec, -1")
    if th: spin(2, F_LAND, th, 3)
    else: spin(2, C_Q, 4, 3)
    stamp(3, 60)
    A(f"""s_lshl_b32 s45, s66, 13
    s_add_u32 s45, s45, {HP}
    v_and_b32 v12, 7, v0
    v_and_b32 v13, 3, v0
    v_lshlrev_b32 v13, 4, v13
    v_lshrrev_b32 v11, 2, v12
    v_lshl_add_u32 v13, v11, 3, v13
    v_add_u32 v13, {MISC + HBUF}, v13
    s_mov_b32 s46, 0""")
    if hbatch:
        A("s_add_u32 s47, s45, 4096")
        if 'h' not in skip:
            poll([f"buffer_load_dwordx4 v[{64+4*i}:{67+4*i}], v1, s[{WS}:{WS+3}], s{45 + 2*(i>>2)} offen offset:{1024*(i&3)} {pol('hld')}" for i in range(8)],
                 range(64, 96), 24, slp=16)
        A("L_p_h:")
        for r in range(8): A(f"v_mov_b32 v{16+r}, v{64+r}")
        for r in range(24): A(f"v_mov_b32 v{64+r}, v{72+r}")
    else:
        A("L_p_h:")
        if 'h' not in skip:
            poll([f"buffer_load_dwordx4 v[16:19], v1, s[{WS}:{WS+3}], s45 offen {pol('hld')}",
                  f"buffer_load_dwordx4 v[20:23], v1, s[{WS}:{WS+3}], s45 offen offset:1024 {pol('hld')}"], range(16, 24), 24, slp=16)
    for r in range(4): A(f"v_permlane32_swap_b32 v{16+r}, v{20+r}")
    for r in range(4): A(f"v_add_f32 v{16+r}, v{16+r}, v{20+r}")
    for r in range(4): A(f"v_add_f32_dpp v{16+r}, v{16+r}, v{16+r} row_ror:8 row_mask:0xf bank_mask:0xf")
    for r in range(4): A(f"v_mov_b32 v{20+r}, v{16+r}")
    for r in range(4): A(f"v_permlane16_swap_b32 v{16+r}, v{20+r}")
    for r in range(4): A(f"v_add_f32 v{16+r}, v{16+r}, v{20+r}")
    for r in range(4): rnd(16 + r)
    for r in range(4): A(f"v_mov_b32 v{20+r}, v{16+r}")
    for r in range(4): A(f"v_permlane32_swap_b32 v{16+r}, v{20+r}")
    for r in range(4):
        silu(16 + r, 24, 25); rnd(16 + r)
        A(f"v_mul_f32 v{16+r}, v{16+r}, v{20+r}")
    A(f"""v_cvt_pk_bf16_f32 v16, v16, v17
    v_cvt_pk_bf16_f32 v17, v18, v19
    v_cmp_eq_u32 vcc, 7, v12
    v_cndmask_b32 v16, v16, v4, vcc
    v_cndmask_b32 v17, v17, v4, vcc
    s_mov_b32 exec_lo, 0xff
    s_mov_b32 exec_hi, 0
    ds_write_b64 v13, v[16:17]
    s_mov_b64 exec, -1
    v_add_u32 v13, 64, v13
    s_add_u32 s45, s45, 2048
    s_add_u32 s46, s46, 1
    s_cmp_lt_u32 s46, 4
    s_cbranch_scc1 L_p_h
    ds_write_b32 v2, v10 offset:{C_HR}
    s_add_u32 s46, s51, {SI}
    s_add_u32 s45, s51, {FI}
    v_lshlrev_b32 v6, 12, v0
    v_add_u32 v7, {MISC + FRED}, v1
    s_lshl_b32 s52, s66, 3
    s_add_u32 s52, s52, s67
    s_lshl_b32 s52, s52, 9
    s_add_u32 s53, s52, {SI}
    s_add_u32 s52, s52, {FI}""")
    stamp(4, 60)

    def publish(red, cnt, so, k):
        A("s_mov_b32 exec_lo, -1\ns_mov_b32 exec_hi, 0")
        spin(2, cnt, 4, 3, also=[f"ds_read_b128 v[{16+4*j}:{19+4*j}], v7 offset:{red - FRED + 512*j}" for j in range(4)])
        for r in range(4):
            A(f"v_add_f32 v{16+r}, v{16+r}, v{20+r}\nv_add_f32 v{24+r}, v{24+r}, v{28+r}")
        for r in range(4):
            A(f"v_add_f32 v{16+r}, v{16+r}, v{24+r}")
        tag(16, 5)
        A(f"buffer_store_dwordx4 v[16:19], v1, s[{WS}:{WS+3}], {so} offen {pol(k)}")
        A("s_mov_b64 exec, -1")

    def inbox(so, k):
        for r in range(4): A(f"v_mov_b32 v{16+r}, 0")
        A("s_mov_b32 exec_hi, 0")
        if 'I' in skip: A("s_mov_b64 exec, -1")
        else: poll([f"buffer_load_dwordx4 v[16:19], v6, s[{WS}:{WS+3}], {so} offen {pol('fld' if k == 31 else 'sld')}"], range(16, 20), 24, cnt=(60, k))
        A("""v_permlane32_swap_b32 v16, v17
        v_permlane32_swap_b32 v18, v19
        v_add_f32 v16, v16, v17
        v_add_f32 v18, v18, v19
        v_permlane16_swap_b32 v16, v18
        v_add_f32 v16, v16, v18""")
        for m in ("row_ror:8", "row_ror:4", "row_ror:2", "row_ror:1"):
            A(f"v_add_f32_dpp v16, v16, v16 {m} row_mask:0xf bank_mask:0xf")
        rnd(16)

    A(f"""s_lshl_b32 s47, s66, 10
    s_add_u32 s47, s47, {ML}
    s_mov_b32 s50, {LOG2E:#x}
    v_and_b32 v13, 7, v0
    v_lshrrev_b32 v11, 3, v0
    v_lshl_add_u32 v13, v13, 3, v11
    v_lshlrev_b32 v13, 2, v13
    v_add_u32 v13, {MISC + WBUF}, v13""")
    if prd:
        A(f"s_lshl_b32 s52, s2, 12\ns_add_u32 s52, s52, {OP}\ns_lshl_b32 s53, s2, 11\ns_add_u32 s54, s53, {SI}\ns_add_u32 s53, s53, {FI}")
        if 'o' in prd:
            for k in range(4): A(f"buffer_load_dwordx4 v[16:19], v1, s[{WS}:{WS+3}], s52 offen offset:{1024*k} {prdpol}")
        if 's' in prd:
            for k in range(2): A(f"buffer_load_dwordx4 v[16:19], v1, s[{WS}:{WS+3}], s54 offen offset:{1024*k} {prdpol}")
        if 'f' in prd:
            for k in range(2): A(f"buffer_load_dwordx4 v[16:19], v1, s[{WS}:{WS+3}], s53 offen offset:{1024*k} {prdpol}")
        A("s_waitcnt vmcnt(0)")
    if not lonly: controller(DB)
    if warm:
        A("s_mov_b64 exec, 0\ns_branch L_hop0\nL_warmed:\ns_mov_b64 exec, -1")
        srd(WS, 26, (1 << 28) - wsoff); srd(OUT, 22, 2048)
        if dbgst: srd(DB, 24, 256)
        A.hops_on(warm)
    spin(2, F_LAND, tml, 3)
    if touch: A(f"buffer_load_ushort v15, v8, s[{OUT}:{OUT+3}], s44 offen")
    if 'm' not in skip: poll([f"buffer_load_dwordx4 v[16:19], v1, s[{WS}:{WS+3}], s47 offen {pol('mld')}"], range(16, 20), 20, slp=sleep_ml, cnt=(60, 30))
    A("v_mov_b32 v18, v16")
    allred("v_max_f32", 18, 19)
    A("v_sub_f32 v16, v16, v18\nv_mul_f32 v16, s50, v16\nv_exp_f32 v16, v16\nv_mul_f32 v17, v17, v16")
    allred("v_add_f32", 17, 19)
    A(f"""v_rcp_f32 v18, v17
    v_fma_f32 v19, -v17, v18, 1.0
    v_fmac_f32 v18, v19, v18
    v_mul_f32 v16, v16, v18
    ds_write_b32 v13, v16
    s_mov_b64 exec, 1
    ds_write_b32 v2, v10 offset:{C_W}
    s_mov_b64 exec, -1""")
    stamp(11, 60)
    publish(FRED, C_PF, "s52", 'fst')
    stamp(12, 60)
    publish(SRED, C_PS, "s53", 'sst')
    stamp(5, 60)
    inbox("s45", 31)
    silu(16, 24, 25); rnd(16)
    A("v_mov_b32 v14, v16\nv_lshlrev_b32 v9, 16, v9")
    stamp(6, 60)
    if sdelay: A(f"s_sleep {sdelay}")
    stamp(7, 60)
    inbox("s46", 32)
    A("v_mul_f32 v16, v16, v14")
    rnd(16)
    A("v_add_f32 v16, v16, v9\nv_cvt_pk_bf16_f32 v16, v16, v16")
    execmask(*N0)
    A(f"buffer_store_short v16, v8, s[{OUT}:{OUT+3}], s44 offen sc1")
    A(f"""s_cmp_lg_u32 s2, 0
    s_cbranch_scc1 L_p_noep
    s_mov_b64 exec, 1
    v_mov_b32 v16, s84
    s_mov_b32 s45, {EP}
    buffer_store_dword v16, v4, s[{WS}:{WS+3}], s45 offen sc1
    L_p_noep:""")
    if floor:
        A(f"L_floor:\ns_memrealtime s[62:63]\ns_waitcnt lgkmcnt(0)\ns_sub_u32 s62, s62, s90\ns_cmp_lt_u32 s62, {floor}\ns_cbranch_scc1 L_floor")
    stamp(8, 60)
    if stamps or dbgst: A("v_writelane_b32 v60, s90, 10")
    if dbgst:
        A("s_mov_b64 exec, 1")
        for slot, k, inv in ((1, 10, 1), (2, 10, 0), (3, 1, 0), (5, 2, 1), (6, 2, 0), (7, 4, 0), (9, 5, 1), (10, 5, 0), (11, 7, 1), (12, 7, 0), (13, 8, 1), (14, 8, 0), (15, 0, 0)):
            A(f"v_readlane_b32 s62, v60, {k}")
            if inv: A("s_not_b32 s62, s62")
            A(f"v_mov_b32 v12, s62\nbuffer_atomic_umax v12, v4, s[{DB}:{DB+3}], 0 offen offset:{4*slot}")
    stamp_flush(60, WS)
    A.hops_off()
    A("L_end:\ns_endpgm")

    if warm: A.hops_close("L_warmed")
    bad = A.verify_edges()
    assert not bad, bad
    nv = 168 if stamps else 168
    txt = HEAD + f"; @launch grid=(256,1,1) block=(576,1,1) lds={LDS_BYTES}\n"
    txt += f'.amdgcn_target "amdgcn-amd-amdhsa--gfx950"\n.text\n.globl {KN}\n.p2align 8\n.type {KN},@function\n'
    txt += A.text()
    txt += f""".section .rodata,"a"
.p2align 6
.amdhsa_kernel {KN}
  .amdhsa_next_free_vgpr {nv}
  .amdhsa_next_free_sgpr 96
  .amdhsa_accum_offset {nv}
  .amdhsa_group_segment_fixed_size 0
  .amdhsa_kernarg_size 96
  .amdhsa_user_sgpr_count 2
  .amdhsa_user_sgpr_kernarg_segment_ptr 1
  .amdhsa_system_sgpr_workgroup_id_x 1
  .amdhsa_float_denorm_mode_32 3
.end_amdhsa_kernel
"""
    return txt


if __name__ == "__main__":
    kw = eval("dict(%s)" % (sys.argv[2] if len(sys.argv) > 2 else ""))
    open(sys.argv[1], "w").write(gen(**kw))
```

```python
import os
import sys
sys.path.insert(0, "work")
from asmlib import Asm

KN = "recurrent_scan__gqa_block_cached__swiglu_ffn__decode_kernel"
REF = "recurrent_scan__gqa_block_cached__swiglu_ffn__decode.s.ref"
HEAD = open(REF).read().split("; Override launch")[0] if os.path.exists(REF) else ""

QP, HP, ML, EP, PG, HF, QF, FI, SI, OP = 0x0, 0x20000, 0x60000, 0x68000, 0x69000, 0x6C000, 0x70000, 0x80000, 0xA0000, 0x100000
TAGM = 0x3FF
STAMP_OFF = 128 << 20
W8 = HP2 = H128 = ML2 = True
MISC = 131072
F_LAND, F_CONS = 0, 1024
C_A, C_H, C_Q, C_ML, C_HR, C_W, C_T, C_O, C_PF, C_PS, C_G = [2048 + 4 * i for i in range(11)]
QRED, QBUF, MLX, HBUF, OBUF, WBUF, HRED, SBUF = 3072, 4096, 6144, 6400, 6656, 6912, 8192, 12288
FRED, SRED = 8192, 10240
LDS_BYTES = MISC + SBUF + 16384
LOG2E, SCALE, EPS = 0x3FB8AA3B, 0x3DB504F3, 0x3727C5AC

NOTES = """; ---------------------------------------------------------------------------------------------
; ---------------------------------------------------------------------------------------------
"""


def gen(D=6, Dend=12, rk=(16, 24, 4), tq=7, th1=9, th2=13, tml=17, budget=1 << 23, stamps=False,
        floor=0, lonly=0, touch=False, stage3=True, skip="", nt="q h qs hs qfs hfs ms", ml2=True, outpol='sc1', xnt='', omode=0, osl=0, gate=0, gthr=32, gsl=2, rfirst=True, olate=True, tq1=4, qsl=6):
    A0 = Asm()
    class Filt:
        def __call__(self, t):
            if "S" in skip: t = "\n".join(l for l in t.split("\n") if not ("buffer_store" in l and any(k in l for k in ("v[24:27], v6", "v[16:19], v7", "v[16:17], v15", "v[16:19], v13", "v[104:107], v114"))))
            if "M" in skip: t = "\n".join(l for l in t.split("\n") if not l.strip().startswith(("v_mfma", "v_exp", "v_cvt_pk", "v_fma_f32", "v_max3")))
            if "R" in skip: t = "\n".join(l for l in t.split("\n") if not l.strip().startswith(("ds_read_b64_tr", "ds_read_b128 v[6", "ds_read_b128 v[7", "ds_read_b128 v[8", "ds_read_b128 v[9")))
            return A0(t)
        def __getattr__(self, k): return getattr(A0, k)
    A = Filt() if any(c in skip for c in "SMR") else A0
    pol = lambda k: "sc1 nt" if k in nt.split() else "sc1"
    BUD = "s60"
    VS = {"L": 20, "C": 167, "P": 60}

    def stamp(k, role):
        if stamps is True or (stamps and role == "P" and k == 8) or (stamps == "L" and role == "L"):
            A(f"s_memrealtime s[62:63]\ns_waitcnt lgkmcnt(0)\nv_writelane_b32 v{VS[role]}, s62, {k}")

    def stamp_flush(role):
        if stamps is True or (stamps and role == "P") or (stamps == "L" and role == "L"):
            if role == "L": srd(28, 26, 1 << 28)
            if role == "P": A("v_writelane_b32 v60, s90, 10")
            A(f"""s_mov_b64 exec, -1
            s_mul_i32 s62, s2, 9
            s_add_u32 s62, s62, s3
            s_lshl_b32 s62, s62, 8
            s_add_u32 s62, s62, {STAMP_OFF}
            v_lshlrev_b32 v0, 2, v0
            buffer_store_dword v{VS[role]}, v0, s[28:31], s62 offen""")

    def srd(base, ptr, size):
        A(f"s_mov_b32 s{base}, s{ptr}\ns_mov_b32 s{base+1}, s{ptr+1}\ns_mov_b32 s{base+2}, {size}\ns_mov_b32 s{base+3}, 0x20000")

    def ex(lo, hi=None):
        hi = lo if hi is None else hi
        if lo == -1 and hi == -1: A("s_mov_b64 exec, -1")
        elif hi == 0 and 0 < lo <= 64: A(f"s_mov_b64 exec, {lo}")
        else: A(f"s_mov_b32 exec_lo, {lo & 0xffffffff:#x}\ns_mov_b32 exec_hi, {hi & 0xffffffff:#x}")
    N0 = 0x00010001

    def spin(vaddr, off, needv, vt, also=()):
        l0, l1 = A.lab("sp"), A.lab("sp")
        A(f"{l0}:\nds_read_b32 v{vt}, v{vaddr} offset:{off}")
        for t in also: A(t)
        A(f"""s_waitcnt lgkmcnt(0)
        v_readfirstlane_b32 s61, v{vt}
        s_cmp_ge_i32 s61, {needv}
        s_cbranch_scc1 {l1}
        s_sub_u32 {BUD}, {BUD}, 1
        s_cbranch_scc0 {l0}
        s_mov_b32 {BUD}, 0
        {l1}:""")

    def poll(loads, regs, vt, issued=False, slp=0, words=False, cnt=None):
        l0, l1, l2 = A.lab("pl"), A.lab("pl"), A.lab("pl")
        if cnt and stamps is True: A("s_mov_b32 s85, 0")
        if issued: A(f"s_branch {l2}")
        A(f"{l0}:")
        for t in loads: A(t)
        A(f"{l2}:\ns_waitcnt vmcnt(0)")
        if cnt and stamps is True: A("s_add_u32 s85, s85, 1")
        rs = list(regs)[1::2] if words else list(regs)
        for k, r in enumerate(rs):
            A(f"v_xor_b32 v{r}, s{84 if words else 80 + (k & 3)}, v{r}")
        if len(rs) == 2: A(f"v_or_b32 v{vt}, v{rs[0]}, v{rs[1]}")
        else: A(f"v_or3_b32 v{vt}, v{rs[0]}, v{rs[1]}, v{rs[2]}")
        k = 3
        while k < len(rs):
            if k + 1 < len(rs): A(f"v_or3_b32 v{vt}, v{vt}, v{rs[k]}, v{rs[k+1]}"); k += 2
            else: A(f"v_or_b32 v{vt}, v{vt}, v{rs[k]}"); k += 1
        if not words: A(f"v_and_b32 v{vt}, {TAGM:#x}, v{vt}")
        A(f"v_cmp_ne_u32 vcc, 0, v{vt}\ns_cbranch_vccz {l1}\ns_mov_b64 exec, vcc")
        if slp: A(f"s_sleep {slp}")
        A(f"s_sub_u32 {BUD}, {BUD}, 16\ns_cbranch_scc0 {l0}\ns_mov_b32 {BUD}, 0\n{l1}:\ns_mov_b64 exec, -1")
        if cnt and stamps is True: A(f"v_writelane_b32 v{VS[cnt[0]]}, s85, {cnt[1]}")

    def tag(r0, vm):
        for k in range(4): A(f"v_bfi_b32 v{r0+k}, v{vm}, s{80+k}, v{r0+k}")

    def tags_setup():
        A(f"s_add_u32 s84, s79, 1\ns_and_b32 s80, s84, {TAGM:#x}")
        for k in range(1, 4):
            A(f"s_add_u32 s{80+k}, s80, {256*k}\ns_and_b32 s{80+k}, s{80+k}, {TAGM:#x}")

    DPP = "row_mask:0xf bank_mask:0xf"

    def xrow(op, vs, ts):
        for sw in ("v_permlane16_swap_b32", "v_permlane32_swap_b32"):
            for v, t in zip(vs, ts): A(f"v_mov_b32 v{t}, v{v}")
            for v, t in zip(vs, ts): A(f"{sw} v{v}, v{t}")
            for v, t in zip(vs, ts): A(f"{op} v{v}, v{v}, v{t}")

    def allred(op, vs, ts):
        for m in ("quad_perm:[1,0,3,2]", "quad_perm:[2,3,0,1]", "row_half_mirror", "row_mirror"):
            for v in vs: A(f"{op}_dpp v{v}, v{v}, v{v} {m} {DPP}")
        xrow(op, vs, ts)

    def rnd(*vs):
        for v in vs: A(f"v_cvt_pk_bf16_f32 v{v}, v{v}, v{v}")
        for v in vs: A(f"v_and_b32 v{v}, 0xffff0000, v{v}")

    def silu(vs, ts):
        for v, t in zip(vs, ts): A(f"v_mul_f32 v{t}, 0xbfb8aa3b, v{v}")
        for v, t in zip(vs, ts): A(f"v_exp_f32 v{t}, v{t}")
        for v, t in zip(vs, ts): A(f"v_add_f32 v{t}, 1.0, v{t}")
        for v, t in zip(vs, ts): A(f"v_rcp_f32 v{t}, v{t}")
        for v, t in zip(vs, ts): A(f"v_mul_f32 v{v}, v{v}, v{t}")

    def unpack(dst, src, n):
        for i in range(n):
            A(f"v_lshlrev_b32 v{dst+2*i}, 16, v{src+i}\nv_and_b32 v{dst+2*i+1}, 0xffff0000, v{src+i}")

    def mfma(d, a, b, acc):
        A(f"v_mfma_f32_16x16x32_bf16 v[{d}:{d+3}], v[{a}:{a+3}], v[{b}:{b+3}], {'v[%d:%d]' % (d, d+3) if acc else '0'}")

    WS, XS, OUT = 28, 32, 40

    A(f"{KN}:")
    if stamps or floor: A("s_memrealtime s[90:91]")
    A(f"""s_cmp_ge_u32 s2, 256
    s_cbranch_scc1 L_end
    s_load_dwordx16 s[4:19], s[0:1], 0
    s_load_dwordx8 s[20:27], s[0:1], 64
    v_lshlrev_b32 v2, 2, v0
    v_add_u32 v2, {MISC}, v2
    v_mov_b32 v3, 0
    ds_write_b32 v2, v3
    v_lshrrev_b32 v1, 6, v0
    v_and_b32 v0, 63, v0
    v_readfirstlane_b32 s3, v1
    s_mov_b32 {BUD}, {budget}
    s_lshr_b32 s64, s2, 6
    s_and_b32 s65, s2, 63
    s_lshr_b32 s68, s65, 3
    s_and_b32 s72, s2, 1
    s_lshl_b32 s73, s72, 3
    s_or_b32 s68, s68, s73
    s_bfe_u32 s69, s2, 0x20001
    s_lshr_b32 s71, s2, 7
    s_lshl_b32 s71, s71, 2
    s_or_b32 s71, s71, s69
    s_and_b32 s76, s3, 3
    s_lshl_b32 s40, s69, 2
    s_add_u32 s40, s40, s76
    v_lshlrev_b32 v107, 4, v0
    v_and_b32 v106, 0x300, v107
    v_lshrrev_b32 v106, 4, v106
    s_waitcnt lgkmcnt(0)
    s_barrier
    s_cmp_lt_u32 s3, 4
    s_cbranch_scc1 L_L""")
    A(f"s_load_dword s79, s[26:27], {EP:#x}")
    srd(XS, 4, 2048)
    A(f"""s_cmp_eq_u32 s3, 8
    s_cbranch_scc1 L_P
    s_lshl_b32 s41, s71, 2
    s_add_u32 s41, s41, s76
    s_lshl_b32 s41, s41, 6
    s_lshl_b32 s40, s40, 7""")
    if not lonly:
        A(f"""buffer_load_dwordx4 v[64:67], v107, s[{XS}:{XS+3}], 0 offen {xnt}
        buffer_load_dwordx4 v[68:71], v107, s[{XS}:{XS+3}], 0 offen offset:1024 {xnt}
        buffer_load_dwordx4 v[128:131], v106, s[{XS}:{XS+3}], s40 offen
        buffer_load_dwordx4 v[132:135], v106, s[{XS}:{XS+3}], s40 offen offset:64
        buffer_load_dwordx4 v[136:139], v106, s[{XS}:{XS+3}], s41 offen""")
    A("s_branch L_C")

    def more_idx():
        A("""s_lshl_b32 s66, s64, 3
        s_and_b32 s73, s2, 7
        s_or_b32 s66, s66, s73
        s_bfe_u32 s67, s2, 0x30003
        s_bfe_u32 s70, s2, 0x40003""")

    SWQ, SGU, SK, SDN, SWO = 28, 32, 36, 44, 48
    A("L_L:\ns_setprio 3")
    stamp(0, "L")
    A("""v_lshrrev_b32 v2, 3, v0
    v_lshlrev_b32 v2, 13, v2
    v_and_b32 v3, 7, v0
    v_lshl_or_b32 v2, v3, 4, v2
    s_lshl_b32 s52, s40, 19
    s_lshl_b32 s73, s64, 11
    s_add_u32 s52, s52, s73
    s_lshl_b32 s73, s68, 7
    s_add_u32 s52, s52, s73
    s_lshl_b32 s57, s3, 15""")
    srd(SWQ, 10, 1 << 23)
    st = dict(issued=0, notified=0)
    ends = []

    def notify(val):
        A(f"v_mov_b32 v9, {val}\nds_write_b32 v8, v9 offset:{F_LAND}")

    def pace(Dt):
        P = st["issued"]
        if P >= Dt:
            A(f"s_waitcnt vmcnt({Dt-1})")
            while st["notified"] < len(ends) and ends[st["notified"]][0] <= P - Dt:
                val = ends[st["notified"]][1]
                notify(val); st["notified"] += 1
                if val >= 19: stamp(4 + val - 19, "L")

    def setup_gu():
        more_idx()
        A(f"""s_cmp_eq_u32 s72, 0
        s_cselect_b32 s{SGU}, s16, s18
        s_cselect_b32 s{SGU+1}, s17, s19
        s_mov_b32 s{SGU+2}, 7340032
        s_mov_b32 s{SGU+3}, 0x20000
        s_lshl_b32 s53, s71, 2
        s_add_u32 s53, s53, s3
        s_mul_i32 s53, s53, {32*7168}
        s_mul_i32 s73, s70, 448
        s_add_u32 s53, s53, s73
        v_lshlrev_b32 v3, 4, v0
        v_add_u32 v4, 6720, v3
        v_cmp_gt_u32 vcc, 28, v0
        v_cndmask_b32 v3, v4, v3, vcc
        s_lshl_b32 s73, s3, 8
        s_add_u32 s73, s73, {MISC}
        v_lshl_add_u32 v8, v0, 2, s73""")

    def setup_kv():
        srd(SK, 6, 1 << 26); srd(SDN, 20, 7340032); srd(SWO, 12, 1 << 23)
        A(f"""s_lshl_b32 s54, s65, 2
        s_add_u32 s54, s54, s3
        s_lshl_b32 s54, s54, 13
        s_lshl_b32 s73, s64, 24
        s_add_u32 s54, s54, s73
        s_lshl_b32 s56, s66, 2
        s_add_u32 s56, s56, s3
        s_lshl_b32 s73, s67, 8
        s_mul_i32 s55, s56, {28*2048}
        s_add_u32 s55, s55, s73
        s_lshl_b32 s56, s56, 16
        s_add_u32 s56, s56, s73
        v_lshrrev_b32 v10, 4, v0
        v_and_b32 v11, 15, v0
        v_lshlrev_b32 v12, 1, v10
        v_xor_b32 v12, v11, v12
        v_xor_b32 v13, 8, v12
        v_lshlrev_b32 v12, 4, v12
        v_lshlrev_b32 v13, 4, v13
        v_lshl_or_b32 v4, v10, 8, v12
        v_lshl_or_b32 v5, v10, 8, v13
        v_lshl_or_b32 v6, v10, 11, v12
        v_lshl_or_b32 v7, v10, 11, v13
        v_mov_b32 v11, {MISC}""")

    for i in range(8):
        pace(D)
        A(f"s_add_u32 m0, s57, {i*1024}\nbuffer_load_dwordx4 v2, s[{SWQ}:{SWQ+3}], s52 offen nt lds\ns_add_u32 s52, s52, 65536")
        st["issued"] += 1
        if i == D - 1:
            setup_gu(); stamp(1, "L")
        if i == 7: setup_kv()
    ends.append((7, 1))
    A("s_lshr_b64 exec, -1, 8")
    for t in (1, 2):
        for i in range(8):
            pace(D)
            A(f"s_add_u32 m0, s57, {t*8192 + i*896}\nbuffer_load_dwordx4 v3, s[{SGU}:{SGU+3}], s53 offen nt lds\ns_add_u32 s53, s53, 14336")
            st["issued"] += 1
        ends.append((st["issued"] - 1, t + 1))
    assert st["notified"] == 2 and D <= 8
    A("s_mov_b64 exec, -1")
    stamp(2, "L")
    A(f"s_mov_b32 s58, 3\ns_add_u32 s59, s57, {3*8192}\nds_read_b32 v10, v8 offset:{F_CONS}")
    A("L_lloop:\ns_waitcnt lgkmcnt(0)")
    if stamps in (True, "L"): A("s_add_u32 m0, s58, 8\ns_nop 0\nv_writelane_b32 v20, s62, m0")
    A("v_readfirstlane_b32 s61, v10\ns_sub_u32 s75, s58, 3\ns_cmp_ge_i32 s61, s75\ns_cbranch_scc1 L_lok")
    spin(8, F_CONS, "s75", 10)
    A("L_lok:\ns_mov_b32 m0, s59\ns_add_u32 s74, s54, 4096")
    for i in range(8):
        A(f"s_waitcnt vmcnt({D-1})")
        if i == D - 1: notify("s58")
        if i == 4: A("s_add_u32 m0, s59, 4096")
        A(f"buffer_load_dwordx4 v{4+(i&1)}, s[{SK}:{SK+3}], {'s54' if i < 4 else 's74'} offen offset:{(i&3)*1024} nt lds")
    if stamps in (True, "L"): A("s_memrealtime s[62:63]")
    A(f"""ds_read_b32 v10, v8 offset:{F_CONS}
    s_add_u32 s58, s58, 1
    s_and_b32 s59, s58, 3
    s_lshl_b32 s59, s59, 13
    s_add_u32 s59, s59, s57
    s_cmp_eq_u32 s58, 11
    s_cselect_b32 s{SK}, s8, s{SK}
    s_cselect_b32 s{SK+1}, s9, s{SK+1}
    s_cselect_b32 s73, {16 << 20}, 0
    s_sub_u32 s54, s54, s73
    s_add_u32 s54, s54, {2 << 20}
    s_cmp_lt_u32 s58, 19
    s_cbranch_scc1 L_lloop""")
    stamp(3, "L")

    def tail_tiles(Dt):
        st["issued"] = 1000; st["notified"] = 0
        ends[:] = [(999, 19)]
        for t, n, sr, so in ((19, 7, SDN, 55), (20, 8, SWO, 56)):
            ok = A.lab("ok")
            A(f"s_waitcnt lgkmcnt(0)\nv_readfirstlane_b32 s61, v10\ns_cmp_ge_i32 s61, {t-3}\ns_cbranch_scc1 {ok}")
            spin(8, F_CONS, t - 3, 10)
            A(f"{ok}:")
            for i in range(n):
                pace(Dt)
                A(f"s_add_u32 m0, s57, {(t&3)*8192 + i*1024}\nbuffer_load_dwordx4 v{6+(i&1)}, s[{sr}:{sr+3}], s{so} offen nt lds\ns_add_u32 s{so}, s{so}, 8192")
                st["issued"] += 1
            ends.append((st["issued"] - 1, t + 1))
            if t == 19: A(f"ds_read_b32 v10, v8 offset:{F_CONS}")
        while st["notified"] < len(ends):
            e, val = ends[st["notified"]]
            A(f"s_waitcnt vmcnt({st['issued'] - 1 - e})")
            notify(val); st["notified"] += 1
            stamp(4 + val - 19, "L")
    if rk:
        A(f"ds_read_b32 v12, v11 offset:{C_T}\ns_waitcnt lgkmcnt(0)\nv_readfirstlane_b32 s77, v12")
        for k, dk in enumerate(rk[2::2]):
            A(f"s_cmp_lg_u32 s77, {k+1}\ns_cbranch_scc1 L_lnot{k}")
            tail_tiles(dk)
            stamp_flush("L")
            A(f"s_endpgm\nL_lnot{k}:")
    tail_tiles(Dend)
    stamp_flush("L")
    A("s_endpgm")

    A("L_C:\ns_setprio 2")
    more_idx()
    srd(WS, 26, 1 << 28)
    A(f"""s_lshl_b32 s46, s76, 15
    s_lshl_b32 s73, s76, 8
    s_add_u32 s73, s73, {MISC}
    v_lshl_add_u32 v1, v0, 2, s73
    v_mov_b32 v2, {MISC}
    v_mov_b32 v124, 1
    v_mov_b32 v125, v106
    v_mov_b32 v126, v107""")
    if lonly:
        A("s_mov_b32 s49, 1\nL_xl:")
        spin(1, F_LAND, "s49", 3)
        A(f"v_mov_b32 v3, s49\nds_write_b32 v1, v3 offset:{F_CONS}\ns_add_u32 s49, s49, 1\ns_cmp_lt_u32 s49, 22\ns_cbranch_scc1 L_xl\ns_endpgm")
    stamp(0, "C")
    A(f"""v_lshrrev_b32 v104, 4, v0
    v_bfe_u32 v119, v0, 2, 2
    v_and_b32 v118, 3, v0
    v_lshlrev_b32 v118, 3, v118
    v_lshl_add_u32 v122, v104, 3, v119
    v_lshl_add_u32 v122, v122, 7, v118
    v_add_u32 v122, s46, v122
    s_lshl_b32 s73, s76, 8
    s_add_u32 s73, s73, {MISC + QRED}
    v_add_u32 v112, s73, v125""")
    stamp(17, "C")
    A("s_waitcnt vmcnt(3)")
    stamp(18, "C")
    unpack(72, 64, 8)
    A("v_readfirstlane_b32 s42, v72\nv_mov_b32 v64, s42")
    for i in range(8):
        A(f"v_pk_add_f32 v[{72+2*i}:{73+2*i}], v[{72+2*i}:{73+2*i}], v[64:65] op_sel_hi:[1,0] neg_lo:[0,1] neg_hi:[0,1]")
    A("v_pk_mul_f32 v[66:67], v[72:73], v[72:73]\nv_pk_add_f32 v[68:69], v[72:73], v[74:75]\nv_pk_fma_f32 v[66:67], v[74:75], v[74:75], v[66:67]")
    for i in range(2, 8):
        A(f"v_pk_add_f32 v[68:69], v[68:69], v[{72+2*i}:{73+2*i}]\nv_pk_fma_f32 v[66:67], v[{72+2*i}:{73+2*i}], v[{72+2*i}:{73+2*i}], v[66:67]")
    A("v_add_f32 v68, v68, v69\nv_add_f32 v66, v66, v67")
    allred("v_add_f32", (68, 66), (69, 67))
    A("""v_mul_f32 v68, 0x3a800000, v68
    v_mul_f32 v66, 0x3a800000, v66
    v_add_f32 v64, v64, v68
    v_fma_f32 v66, -v68, v68, v66
    v_max_f32 v66, 0, v66""")
    rnd(64, 66)
    A(f"v_add_f32 v66, {EPS:#x}, v66"); rnd(66)
    A("v_sqrt_f32 v66, v66"); rnd(66)
    A("v_rcp_f32 v68, v66")

    def normalise(x0, n):
        for x in range(x0, x0 + n):
            unpack(72, x, 1)
            A(f"""v_pk_add_f32 v[72:73], v[72:73], v[64:65] op_sel_hi:[1,0] neg_lo:[0,1] neg_hi:[0,1]
            v_cvt_pk_bf16_f32 v74, v72, v73""")
            unpack(72, 74, 1)
            A(f"""v_pk_mul_f32 v[74:75], v[72:73], v[68:69] op_sel_hi:[1,0]
            v_pk_fma_f32 v[72:73], v[74:75], v[66:67], v[72:73] op_sel_hi:[1,0,1] neg_lo:[1,0,0] neg_hi:[1,0,0]
            v_pk_fma_f32 v[74:75], v[72:73], v[68:69], v[74:75] op_sel_hi:[1,0,1]
            v_cvt_pk_bf16_f32 v{x}, v74, v75""")
    A("s_waitcnt vmcnt(1)")
    normalise(128, 8)
    stamp(1, "C")

    def release(val):
        A(f"v_mov_b32 v3, {val}\nds_write_b32 v1, v3 offset:{F_CONS}")

    def cnt_add(off):
        A(f"s_mov_b64 exec, 1\nds_add_u32 v2, v124 offset:{off}\ns_mov_b64 exec, -1")

    def tr_mfma(blocks, breg, acc=False, rel=None, writes=None, lag=4, mask=None, depth=7):
        q = []
        def rd(k):
            a, o, o2, f, _ = blocks[k]
            A(f"ds_read_b64_tr_b16 v[{f}:{f+1}], v{a} offset:{o}\nds_read_b64_tr_b16 v[{f+2}:{f+3}], v{a} offset:{o2}")
            q.extend([k, k])
        n = len(blocks); nxt = min(depth, n)
        for k in range(nxt): rd(k)
        masked = False
        for k in range(n + (lag if writes else 0)):
            if k < n:
                A(f"s_waitcnt lgkmcnt({len(q) - 1 - max(i for i, e in enumerate(q) if e == k)})")
                if rel is not None and k == n - 1: release(rel); q.append(None)
                b = blocks[k]
                mfma(b[4], b[3], breg(k) if callable(breg) else breg, acc(k) if callable(acc) else acc)
                if nxt < n: rd(nxt); nxt += 1
            if writes and k >= lag:
                if mask is not None and not masked:
                    assert nxt == n
                    ex(mask); masked = True
                writes(k - lag); q.append(None)

    spin(1, F_LAND, 1, 3)
    stamp(2, "C")
    tr_mfma([(122, s*4096 + 32*b, s*4096 + 32*b + 512, 76 + 4*((4*s + b) % 5), 32 + 4*b) for s in range(2) for b in range(4)],
            lambda k: 128 + 4*(k >> 2), acc=lambda k: k >= 4, rel=1, depth=4)
    ex(N0)
    for b in range(4): A(f"ds_write_b128 v112, v[{32+4*b}:{35+4*b}] offset:{b*64}")
    cnt_add(C_A)
    stamp(3, "C")
    A("s_waitcnt vmcnt(0)")
    normalise(136, 4)
    tags_setup()
    A(f"""v_mov_b32 v166, {TAGM:#x}
    v_and_b32 v123, 1, v104
    v_lshl_add_u32 v123, v123, 3, v119
    v_mul_u32_u24 v123, 448, v123
    v_lshrrev_b32 v119, 5, v0
    v_lshl_add_u32 v123, v119, 13, v123
    s_add_u32 s73, s46, 8192
    v_add3_u32 v123, v123, v118, s73
    s_mul_i32 s73, s76, 896
    s_add_u32 s73, s73, {MISC + HRED}
    v_add_u32 v122, s73, v125
    v_and_b32 v113, 15, v0
    v_and_b32 v114, 7, v0
    v_lshlrev_b32 v127, 4, v114
    v_lshlrev_b32 v114, 1, v114
    v_lshlrev_b32 v115, 8, v113
    s_add_u32 s73, s46, {3*8192}
    v_add_u32 v115, s73, v115""")
    for jj in range(4):
        A(f"v_add_u32 v116, {4*jj}, v104\nv_xor_b32 v116, v116, v114\nv_lshl_add_u32 v{4+jj}, v116, 4, v115")
    A("""v_lshrrev_b32 v116, 2, v0
    v_and_b32 v117, 7, v116
    v_lshl_add_u32 v116, v116, 8, v118
    v_add_u32 v116, s73, v116""")
    for b in range(8):
        A(f"v_xor_b32 v119, {b}, v117\nv_lshl_add_u32 v{8+b}, v119, 5, v116")
    A(f"""v_lshl_add_u32 v16, v127, 4, v125
    v_add_u32 v16, {MISC + QBUF}, v16
    v_lshl_add_u32 v127, v125, 3, v127
    s_lshl_b32 s73, s76, 12
    s_add_u32 s73, s73, {MISC + SBUF}
    v_add_u32 v127, s73, v127
    v_mov_b32 v120, 0xff800000
    v_mov_b32 v121, 0
    s_mov_b32 s49, 4
    s_mov_b32 s50, {LOG2E:#x}
    s_mov_b32 s51, {SCALE:#x}
    s_mov_b32 s52, 0x6000
    s_mov_b32 s53, 0""")
    spin(1, F_LAND, 3, 3)
    stamp(4, "C")
    gd = lambda b: 32 + 4*b if b < 8 else 96 + 4*(b - 8)
    tr_mfma([(123, 32*b, 32*b + 1792, 64 + 4*(b % 8), gd(b)) for b in range(14)], 136, rel=3)
    ex(N0)
    for b in range(14): A(f"ds_write_b128 v122, v[{gd(b)}:{gd(b)+3}] offset:{b*64}")
    cnt_add(C_H)
    stamp(5, "C")

    def k_reads(f0):
        spin(1, F_LAND, "s49", 3)
        for k in range(8): A(f"ds_read_b128 v[{f0+4*k}:{f0+3+4*k}], v{4+(k>>1)} offset:{(k&1)*4096}")
        A("s_waitcnt lgkmcnt(0)")
        release("s49")
        for jj in range(4): A(f"v_xor_b32 v{4+jj}, s52, v{4+jj}")
        A("s_xor_b32 s52, s52, 0x4000\ns_add_u32 s49, s49, 1")
    k_reads(64); k_reads(128)
    if stage3: k_reads(32)
    stamp(6, "C")
    A("v_mov_b32 v113, v16")
    spin(2, C_Q, 1, 3)
    for jj in range(4): A(f"ds_read_b128 v[{16+4*jj}:{19+4*jj}], v113 offset:{jj*64}")
    A("s_waitcnt lgkmcnt(0)")
    stamp(7, "C")
    A("L_c_qk:")
    for k in range(8): mfma(96 + 4*(k & 1), 64 + 4*k, 16 + 4*(k >> 1), k >= 2)
    for i in range(4): A(f"v_cvt_pk_bf16_f32 v{104+i}, v{96+2*i}, v{97+2*i}")
    unpack(96, 104, 4)
    for i in range(8): A(f"v_mul_f32 v{96+i}, s51, v{96+i}")
    for i in range(4): A(f"v_cvt_pk_bf16_f32 v{104+i}, v{96+2*i}, v{97+2*i}")
    A("ds_write_b128 v127, v[104:107]\nv_add_u32 v127, 512, v127")
    unpack(96, 104, 4)
    A(f"""v_max3_f32 v120, v120, v96, v97
    v_max3_f32 v109, v98, v99, v100
    v_max3_f32 v120, v120, v101, v102
    v_max3_f32 v120, v120, v109, v103
    s_add_u32 s53, s53, 1
    s_cmp_le_u32 s53, {2 if stage3 else 1}
    s_cbranch_scc1 L_c_staged
    s_cmp_eq_u32 s53, 8
    s_cbranch_scc1 L_c_kdone""")
    k_reads(64)
    A("s_branch L_c_qk\nL_c_staged:")
    for r in range(32): A(f"v_mov_b32 v{64+r}, v{128+r}")
    if stage3:
        for r in range(32): A(f"v_mov_b32 v{128+r}, v{32+r}")
    A("s_branch L_c_qk")
    A("L_c_kdone:")
    xrow("v_max_f32", (120,), (109,))
    for r in range(32): A(f"v_mov_b32 v{32+r}, 0")
    A("v_mul_f32 v110, s50, v120\nv_subrev_u32 v127, 4096, v127\ns_mov_b32 s52, 0x6000")
    A("L_c_exp:\nds_read_b128 v[104:107], v127\ns_waitcnt lgkmcnt(0)")
    unpack(96, 104, 4)
    for i in range(8): A(f"v_fma_f32 v{96+i}, v{96+i}, s50, -v110")
    for i in range(8): A(f"v_exp_f32 v{96+i}, v{96+i}")
    for i in range(4): A(f"v_cvt_pk_bf16_f32 v{104+i}, v{96+2*i}, v{97+2*i}")
    A("""v_pk_add_f32 v[96:97], v[96:97], v[98:99]
    v_pk_add_f32 v[100:101], v[100:101], v[102:103]
    ds_write_b128 v127, v[104:107]
    v_pk_add_f32 v[96:97], v[96:97], v[100:101]
    v_add_u32 v127, 512, v127
    v_add_f32 v121, v121, v96
    v_add_f32 v121, v121, v97
    s_sub_u32 s53, s53, 1
    s_cmp_lg_u32 s53, 0
    s_cbranch_scc1 L_c_exp
    v_subrev_u32 v127, 4096, v127""")
    stamp(8, "C")
    xrow("v_add_f32", (121,), (109,))
    A(f"""s_lshl_b32 s73, s76, 6
    s_add_u32 s73, s73, {MISC + MLX}
    v_lshl_add_u32 v112, v0, 3, s73""")
    ex(0xff, 0)
    A("ds_write_b64 v112, v[120:121]")
    cnt_add(C_ML)
    A(f"""v_lshrrev_b32 v113, 5, v0
    s_lshl_b32 s73, s76, 1
    v_add_u32 v113, s73, v113
    v_lshlrev_b32 v112, 3, v113
    v_add_u32 v112, {MISC + MLX}, v112
    s_lshl_b32 s47, s64, 9
    s_add_u32 s47, s47, s65
    s_lshl_b32 s47, s47, 4
    s_add_u32 s47, s47, {ML}
    v_lshlrev_b32 v114, 10, v113""")
    spin(2, C_ML, 4, 3, also=[f"ds_read_b64 v[{96+2*k}:{97+2*k}], v112 offset:{k*64}" for k in range(4)])
    A("v_max3_f32 v104, v96, v98, v100\nv_max_f32 v104, v104, v102")
    for k in range(4): A(f"v_sub_f32 v{160+k}, v{96+2*k}, v104\nv_mul_f32 v{160+k}, s50, v{160+k}")
    for k in range(4): A(f"v_exp_f32 v{160+k}, v{160+k}")
    A("""v_mov_b32 v106, 0
    v_mov_b32 v107, 0
    v_mul_f32 v105, v160, v97
    v_fmac_f32 v105, v161, v99
    v_fmac_f32 v105, v162, v101
    v_fmac_f32 v105, v163, v103""")
    if ml2:
        A(f"""s_cmp_lg_u32 s76, 0
        s_cbranch_scc1 L_c_noml
        v_lshl_add_u32 v112, v0, 3, v2
        s_lshl_b32 s47, s2, 7
        s_add_u32 s47, s47, {ML}""")
        ex(0xff, 0)
        for k in range(4): A(f"ds_read_b64 v[{96+2*k}:{97+2*k}], v112 offset:{MLX + k*64}")
        A("s_waitcnt lgkmcnt(0)\nv_max3_f32 v104, v96, v98, v100\nv_max_f32 v104, v104, v102")
        for k in range(4): A(f"v_sub_f32 v{96+2*k}, v{96+2*k}, v104\nv_mul_f32 v{96+2*k}, s50, v{96+2*k}")
        for k in range(4): A(f"v_exp_f32 v{96+2*k}, v{96+2*k}")
        A("v_mul_f32 v105, v96, v97\nv_fmac_f32 v105, v98, v99\nv_fmac_f32 v105, v100, v101\nv_fmac_f32 v105, v102, v103")
        tag(104, 166)
        A(f"buffer_store_dwordx4 v[104:107], v126, s[{WS}:{WS+3}], s47 offen {pol('ms')}\nL_c_noml:")
    else:
        tag(104, 166)
        ex(1, 1)
        A(f"buffer_store_dwordx4 v[104:107], v114, s[{WS}:{WS+3}], s47 offen sc1")
    ex(-1)
    A(f"""v_and_b32 v115, 7, v0
    v_mul_u32_u24 v115, 528, v115
    s_add_u32 s73, s46, 8192
    v_add3_u32 v115, v115, v125, s73
    v_and_b32 v117, 31, v0
    v_mul_u32_u24 v116, 528, v113
    v_lshl_add_u32 v116, v117, 4, v116
    v_add_u32 v116, 8192, v116
    v_add_u32 v118, 0x10000, v116
    v_lshrrev_b32 v119, 3, v117
    v_lshl_add_u32 v119, v113, 2, v119
    v_and_b32 v117, 7, v0
    v_lshlrev_b32 v117, 4, v117
    v_lshl_add_u32 v117, v119, 13, v117
    s_lshl_b32 s47, s64, 11
    s_add_u32 s47, s47, s65
    s_lshl_b32 s47, s47, 7
    s_add_u32 s47, s47, {OP}
    s_lshl_b32 s73, s76, 6
    s_add_u32 s74, s73, {MISC + HBUF}
    v_add_u32 v108, s74, v125
    s_add_u32 s74, s73, {MISC + OBUF}
    v_add_u32 v114, s74, v125
    v_lshrrev_b32 v113, 5, v0
    v_bfe_u32 v109, v0, 4, 1
    v_lshl_add_u32 v113, v109, 1, v113
    v_bfe_u32 v109, v0, 2, 1
    v_lshl_add_u32 v113, v109, 2, v113
    v_and_b32 v109, 3, v0
    v_lshl_add_u32 v113, v109, 3, v113
    v_lshl_add_u32 v113, v113, 1, s74
    v_lshrrev_b32 v109, 3, v0
    v_lshlrev_b32 v109, 5, v109
    v_add_u32 v109, {MISC + WBUF}, v109
    s_lshl_b32 s73, s76, 9
    s_add_u32 s73, s73, {MISC + FRED}
    v_add_u32 v119, s73, v125
    s_lshl_b32 s44, s66, 2
    s_add_u32 s44, s44, s76
    s_lshl_b32 s44, s44, 13
    s_add_u32 s44, s44, {OP}
    s_add_u32 s45, s44, 4096""")
    vblk = lambda off: [(8 + b, off, off + 4096, 64 + 4*b, 32 + 4*b) for b in range(8)]
    A("L_cloop:\nds_read_b128 v[104:107], v127\nv_add_u32 v127, 512, v127\ns_cmp_eq_u32 s49, 19\ns_cbranch_scc1 L_c_last")
    spin(1, F_LAND, "s49", 3)
    tr_mfma(vblk(0), 104, acc=True, rel="s49")
    for b in range(8): A(f"v_xor_b32 v{8+b}, s52, v{8+b}")
    A("s_xor_b32 s52, s52, 0x4000\ns_add_u32 s49, s49, 1\ns_branch L_cloop")
    A("L_c_last:")
    spin(2, C_HR, 1, 3, also=("ds_read_b128 v[16:19], v108",))
    spin(2, C_W, 1, 3, also=("ds_read_b128 v[96:99], v109", "ds_read_b128 v[100:103], v109 offset:16"))
    if olate: A(f"ds_read_b32 v3, v2 offset:{C_T}\ns_waitcnt lgkmcnt(0)\nv_readfirstlane_b32 s48, v3")
    spin(1, F_LAND, 19, 3)
    stamp(9, "C")
    tr_mfma(vblk(0), 104, acc=True, writes=lambda b: A(f"ds_write_b128 v115, v[{32+4*b}:{35+4*b}] offset:{b*64}"))
    cnt_add(C_O)
    spin(2, C_O, 4, 3, also=("ds_read_b128 v[64:67], v116", "ds_read_b128 v[68:71], v116 offset:32768",
                             "ds_read_b128 v[72:75], v118", "ds_read_b128 v[76:79], v118 offset:32768"))
    for h in range(2): A(f"v_pk_mul_f32 v[{64+2*h}:{65+2*h}], v[{64+2*h}:{65+2*h}], v[160:161] op_sel_hi:[1,0]")
    for k in range(1, 4):
        sel = "op_sel:[0,1,0] op_sel_hi:[1,1,1]" if k & 1 else "op_sel_hi:[1,0,1]"
        f = 160 + (k & 2)
        for h in range(2): A(f"v_pk_fma_f32 v[{64+2*h}:{65+2*h}], v[{64+4*k+2*h}:{65+4*k+2*h}], v[{f}:{f+1}], v[{64+2*h}:{65+2*h}] {sel}")
    tag(64, 166)
    A(f"buffer_store_dwordx4 v[64:67], v117, s[{WS}:{WS+3}], s47 offen {pol('os')}")
    stamp(10, "C")
    spin(1, F_LAND, 20, 3)
    stamp(11, "C")
    tr_mfma(vblk(8192), 16, writes=lambda b: A(f"ds_write_b128 v119, v[{32+4*b}:{35+4*b}] offset:{64*b}"), mask=N0)
    cnt_add(C_PF)
    stamp(12, "C")
    for b in range(8): A(f"v_xor_b32 v{8+b}, 0x4000, v{8+b}")
    old = [f"buffer_load_dwordx4 v[{128+4*i}:{131+4*i}], v126, s[{WS}:{WS+3}], s{44+(i>>2)} offen offset:{1024*(i&3)} {pol('o')}" for i in range(8)]
    def wo_frags():
        for b in range(8):
            if b == 7: A("s_waitcnt lgkmcnt(4)")
            A(f"ds_read_b64_tr_b16 v[{64+4*b}:{65+4*b}], v{8+b}\nds_read_b64_tr_b16 v[{66+4*b}:{67+4*b}], v{8+b} offset:4096")
    stamp(13, "C")
    if omode == 0:
        if olate:
            A("s_cmp_lg_u32 s48, 0\ns_cbranch_scc1 L_c_oe")
            for t in old: A(t)
            spin(1, F_LAND, 21, 3)
            A("s_branch L_c_oj\nL_c_oe:")
        spin(1, F_LAND, 21, 3)
        if gate: spin(2, C_G, 1, 3)
        if "O" not in skip:
            for t in old: A(t)
        if olate: A("L_c_oj:")
        stamp(15, "C")
        wo_frags()
        if "O" not in skip: poll(old, range(128, 160), 110, issued=True, cnt=("C", 30), slp=osl)
    else:
        poll(old, range(128, 160), 110, cnt=("C", 30), slp=osl)
    stamp(14, "C")
    for h in range(2): A(f"v_pk_mul_f32 v[{128+2*h}:{129+2*h}], v[{128+2*h}:{129+2*h}], v[96:97] op_sel_hi:[1,0]")
    for i in range(1, 8):
        sel = "op_sel:[0,1,0] op_sel_hi:[1,1,1]" if i & 1 else "op_sel_hi:[1,0,1]"
        f = 96 + (i & 6)
        for h in range(2): A(f"v_pk_fma_f32 v[{128+2*h}:{129+2*h}], v[{128+4*i+2*h}:{129+4*i+2*h}], v[{f}:{f+1}], v[{128+2*h}:{129+2*h}] {sel}")
    A(f"""v_permlane32_swap_b32 v128, v129
    v_permlane32_swap_b32 v130, v131
    v_add_f32 v128, v128, v129
    v_add_f32 v130, v130, v131
    v_permlane16_swap_b32 v128, v130
    v_add_f32 v128, v128, v130
    v_add_f32_dpp v128, v128, v128 row_ror:8 {DPP}
    v_cvt_pk_bf16_f32 v128, v128, v128
    ds_write_b16 v113, v128
    ds_read_b128 v[104:107], v114""")
    if omode == 0:
        ex(N0)
        A("s_waitcnt lgkmcnt(0)")
        for b in range(12):
            if b < 8: mfma(32 + 4*b, 64 + 4*b, 104, False)
            if b >= 4: A(f"ds_write_b128 v119, v[{16+4*b}:{19+4*b}] offset:{SRED - FRED + 64*(b-4)}")
    else:
        spin(1, F_LAND, 21, 3)
        stamp(15, "C")
        tr_mfma(vblk(0), 104, writes=lambda b: A(f"ds_write_b128 v119, v[{32+4*b}:{35+4*b}] offset:{SRED - FRED + 64*b}"), mask=N0)
    A(f"s_mov_b64 exec, 1\nds_add_u32 v2, v124 offset:{C_PS}")
    stamp(16, "C")
    stamp_flush("C")
    A("s_endpgm")

    A("L_P:")
    more_idx()
    srd(WS, 26, 1 << 28); srd(OUT, 22, 2048)
    stamp(0, "P")
    A(f"""v_lshlrev_b32 v1, 4, v0
    v_mov_b32 v2, {MISC}
    v_mov_b32 v4, 0
    v_mov_b32 v5, {TAGM:#x}
    v_mov_b32 v10, 1
    v_lshrrev_b32 v8, 5, v0
    v_bfe_u32 v9, v0, 4, 1
    v_lshl_add_u32 v8, v9, 1, v8
    v_lshlrev_b32 v8, 1, v8
    s_and_b32 s44, s2, 7
    s_lshl_b32 s44, s44, 5
    s_lshr_b32 s73, s2, 3
    s_or_b32 s44, s44, s73
    s_lshl_b32 s51, s44, 4
    s_lshl_b32 s44, s44, 3
    s_lshl_b32 s47, s64, 4
    s_add_u32 s47, s47, s68
    s_lshl_b32 s47, s47, 4
    s_add_u32 s47, s47, s69
    s_lshl_b32 s47, s47, 7
    v_lshrrev_b32 v14, 3, v0
    v_and_b32 v12, 7, v0
    v_lshlrev_b32 v6, 4, v12
    v_lshl_or_b32 v7, v14, 11, v6
    v_lshl_or_b32 v6, v14, 9, v6
    v_lshlrev_b32 v15, 3, v0
    v_add_u32 v13, {MISC + QRED}, v15
    v_mul_u32_u24 v11, 7, v14
    v_add_u32 v11, v11, v12
    v_lshlrev_b32 v11, 4, v11
    v_add_u32 v11, {MISC + HRED}, v11
    s_lshl_b32 s48, s70, 7
    s_lshl_b32 s73, s72, 3
    s_add_u32 s48, s48, s73
    s_add_u32 s48, s48, s71
    s_lshl_b32 s48, s48, 7
    s_add_u32 s48, s48, {HP}""")

    def rank():
        if not rk: return
        A(f"""s_and_b32 s54, s2, 7
        s_lshl_b32 s54, s54, 7
        s_add_u32 s54, s54, {PG}
        s_lshr_b32 s55, s2, 3
        s_lshl_b32 s55, s55, 2
        s_add_u32 s55, s55, s54
        v_lshlrev_b32 v36, 2, v0
        v_mov_b32 v15, s84""")
        ex(-1, 0)
        spin(2, F_LAND, rk[0], 3)
        A(f"""buffer_load_dword v12, v36, s[{WS}:{WS+3}], s54 offen sc1
        s_mov_b32 exec_lo, 1
        buffer_store_dword v15, v4, s[{WS}:{WS+3}], s55 offen
        s_mov_b32 exec_lo, -1
        s_waitcnt vmcnt(1)
        v_cmp_eq_u32 vcc, s84, v12
        s_bcnt1_i32_b32 s61, vcc_lo
        s_mov_b32 s56, 0""")
        for k, t in enumerate(rk[1::2]):
            A(f"s_cmp_lt_u32 s61, {t}\ns_cselect_b32 s56, {k+1}, s56")
        A(f"""v_mov_b32 v12, s56
        ds_write_b32 v2, v12 offset:{C_T}
        s_mov_b64 exec, -1""")

    def epoch():
        l = A.lab("noep")
        A(f"""s_cmp_lg_u32 s2, 0
        s_cbranch_scc1 {l}
        s_mov_b64 exec, 1
        v_mov_b32 v16, s84
        s_mov_b32 s45, {EP}
        buffer_store_dword v16, v4, s[{WS}:{WS+3}], s45 offen sc1
        {l}:""")
    if lonly:
        A("s_waitcnt lgkmcnt(0)"); tags_setup(); rank(); epoch(); stamp(8, "P"); stamp_flush("P"); A("s_endpgm")
    ex(-1, 0)
    spin(2, C_A, 1, 3)
    tags_setup()
    A("v_mov_b32 v25, s84\nv_mov_b32 v27, s84")
    spin(2, C_A, 4, 3, also=[f"ds_read_b64 v[{16+2*k}:{17+2*k}], v13 offset:{k*256}" for k in range(4)])
    A(f"""v_pk_add_f32 v[16:17], v[16:17], v[18:19]
    v_pk_add_f32 v[20:21], v[20:21], v[22:23]
    v_add_f32 v24, v16, v20
    v_add_f32 v26, v17, v21
    buffer_store_dwordx4 v[24:27], v6, s[{WS}:{WS+3}], s47 offen offset:{QP} {pol('qs')}
    s_mov_b64 exec, -1
    buffer_load_ushort v9, v8, s[{XS}:{XS+3}], s44 offen""")
    stamp(1, "P")

    def sum4(n=4):
        for h in range(2):
            A(f"v_pk_add_f32 v[{16+2*h}:{17+2*h}], v[{16+2*h}:{17+2*h}], v[{20+2*h}:{21+2*h}]\nv_pk_add_f32 v[{24+2*h}:{25+2*h}], v[{24+2*h}:{25+2*h}], v[{28+2*h}:{29+2*h}]")
        for h in range(2):
            A(f"v_pk_add_f32 v[{16+2*h}:{17+2*h}], v[{16+2*h}:{17+2*h}], v[{24+2*h}:{25+2*h}]")
    spin(2, C_H, 4, 3)
    for k in range(4): A(f"ds_read_b128 v[{16+4*k}:{19+4*k}], v11 offset:{k*896}")
    A("s_waitcnt lgkmcnt(0)")
    sum4()
    for r in range(4): A(f"v_add_u32 v{16+r}, {(TAGM+1)//2}, v{16+r}")
    tag(16, 5)
    A(f"buffer_store_dwordx4 v[16:19], v7, s[{WS}:{WS+3}], s48 offen {pol('hs')}")
    stamp(2, "P")
    A(f"s_lshl_b32 s47, s2, 9\ns_lshl_b32 s49, s2, 6\ns_add_u32 s49, s49, {QF}")
    ex(-1, 0)
    if tq1: spin(2, F_LAND, tq1, 3)
    if "p" not in skip: poll([f"buffer_load_dwordx4 v[16:19], v1, s[{WS}:{WS+3}], s47 offen offset:{QP} {pol('q')}"], range(16, 20), 20, words=True, slp=qsl)
    for r in (16, 18): A(f"v_add_f32_dpp v{r}, v{r}, v{r} row_ror:8 {DPP}")
    A("""v_mov_b32 v17, v16
    v_mov_b32 v19, v18
    v_permlane16_swap_b32 v16, v17
    v_permlane16_swap_b32 v18, v19
    v_add_f32 v16, v16, v17
    v_add_f32 v18, v18, v19
    v_cvt_pk_bf16_f32 v16, v16, v18
    v_mov_b32 v17, s84""")
    ex(0xff, 0)
    A(f"buffer_store_dwordx2 v[16:17], v15, s[{WS}:{WS+3}], s49 offen {pol('qfs')}")
    ex(-1)
    stamp(9, "P")
    A(f"s_lshl_b32 s47, s64, 12\ns_add_u32 s47, s47, {QF}\nv_add_u32 v13, {MISC + QBUF}, v15")
    spin(2, F_LAND, tq, 3)
    if "q" not in skip: poll([f"buffer_load_dwordx4 v[{16+4*k}:{19+4*k}], v1, s[{WS}:{WS+3}], s47 offen offset:{1024*k} sc1" for k in range(4)],
                             range(16, 32), 32, words=True, slp=qsl)
    for k in range(4): A(f"v_mov_b32 v{17+4*k}, v{18+4*k}\nds_write_b64 v13, v[{16+4*k}:{17+4*k}] offset:{512*k}")
    A(f"ds_write_b32 v2, v10 offset:{C_Q}")
    stamp(13, "P")
    A(f"""s_lshl_b32 s45, s66, 2
    s_add_u32 s46, s45, s67
    s_lshl_b32 s45, s45, 7
    s_add_u32 s45, s45, {HF}
    s_cmp_ge_u32 s67, 4
    s_cbranch_scc1 L_p_noh
    s_lshl_b32 s47, s46, 11
    s_add_u32 s47, s47, {HP}
    s_lshl_b32 s46, s46, 7
    s_add_u32 s46, s46, {HF}""")
    spin(2, F_LAND, th1, 3)
    if "h" not in skip:
        poll([f"buffer_load_dwordx4 v[16:19], v1, s[{WS}:{WS+3}], s47 offen {pol('h')}",
              f"buffer_load_dwordx4 v[20:23], v1, s[{WS}:{WS+3}], s47 offen offset:1024 {pol('h')}"], range(16, 24), 24, slp=16)
    R = range(16, 20); T = range(20, 24)
    for r in R: A(f"v_permlane32_swap_b32 v{r}, v{r+4}")
    for r in R: A(f"v_add_f32 v{r}, v{r}, v{r+4}")
    for r in R: A(f"v_add_f32_dpp v{r}, v{r}, v{r} row_ror:8 {DPP}")
    for r in R: A(f"v_mov_b32 v{r+4}, v{r}")
    for r in R: A(f"v_permlane16_swap_b32 v{r}, v{r+4}")
    for r in R: A(f"v_add_f32 v{r}, v{r}, v{r+4}")
    rnd(*R)
    for r in R: A(f"v_mov_b32 v{r+4}, v{r}")
    for r in R: A(f"v_permlane32_swap_b32 v{r}, v{r+4}")
    silu(R, range(24, 28)); rnd(*R)
    for r in R: A(f"v_mul_f32 v{r}, v{r}, v{r+4}")
    A(f"""v_cvt_pk_bf16_f32 v16, v16, v17
    v_cvt_pk_bf16_f32 v18, v18, v19
    v_cmp_eq_u32 vcc, 7, v12
    v_mov_b32 v17, s84
    v_mov_b32 v19, s84
    v_cndmask_b32 v16, v16, v4, vcc
    v_cndmask_b32 v18, v18, v4, vcc
    v_and_b32 v13, 3, v0
    v_lshlrev_b32 v13, 5, v13
    v_lshrrev_b32 v11, 2, v12
    v_lshl_add_u32 v13, v11, 4, v13""")
    ex(0xff, 0)
    A(f"buffer_store_dwordx4 v[16:19], v13, s[{WS}:{WS+3}], s46 offen {pol('hfs')}\nL_p_noh:")
    ex(-1, 0)
    stamp(3, "P")
    A(f"v_add_u32 v13, {MISC + HBUF}, v15")
    spin(2, F_LAND, th2, 3)
    if "h" not in skip: poll([f"buffer_load_dwordx4 v[16:19], v1, s[{WS}:{WS+3}], s45 offen {pol('hf')}"], range(16, 20), 20, words=True, slp=16)
    ex(-1, 0)
    A(f"v_mov_b32 v17, v18\nds_write_b64 v13, v[16:17]\nds_write_b32 v2, v10 offset:{C_HR}")
    ex(-1)
    stamp(4, "P")
    if ml2: A(f"s_lshl_b32 s47, s64, 13\ns_and_b32 s73, s2, 7\ns_lshl_b32 s73, s73, 4\ns_add_u32 s47, s47, s73\nv_lshlrev_b32 v11, 7, v0")
    else: A("s_lshl_b32 s47, s66, 10\nv_mov_b32 v11, v1")
    A(f"""s_add_u32 s47, s47, {ML}
    s_mov_b32 s50, {LOG2E:#x}
    v_lshl_add_u32 v13, v12, 3, v14
    v_lshlrev_b32 v13, 2, v13
    v_add_u32 v13, {MISC + WBUF}, v13
    s_add_u32 s46, s51, {SI}
    s_add_u32 s45, s51, {FI}
    v_lshlrev_b32 v6, 12, v0
    v_add_u32 v7, {MISC + FRED}, v1
    s_lshl_b32 s52, s66, 3
    s_add_u32 s52, s52, s67
    s_lshl_b32 s52, s52, 9
    s_add_u32 s53, s52, {SI}
    s_add_u32 s52, s52, {FI}
    v_lshlrev_b32 v9, 16, v9""")
    if rfirst: rank()
    spin(2, F_LAND, tml, 3)
    if touch: A(f"buffer_load_ushort v15, v8, s[{OUT}:{OUT+3}], s44 offen")
    if "m" not in skip: poll([f"buffer_load_dwordx4 v[16:19], v11, s[{WS}:{WS+3}], s47 offen {pol('m')}"], range(16, 20), 20, slp=12, cnt=("P", 30))
    A("v_mov_b32 v18, v16")
    allred("v_max_f32", (18,), (19,))
    A("v_sub_f32 v16, v16, v18\nv_mul_f32 v16, s50, v16\nv_exp_f32 v16, v16\nv_mul_f32 v17, v17, v16")
    allred("v_add_f32", (17,), (19,))
    A(f"""v_rcp_f32 v18, v17
    v_fma_f32 v19, -v17, v18, 1.0
    v_fmac_f32 v18, v19, v18
    v_mul_f32 v16, v16, v18
    ds_write_b32 v13, v16
    s_mov_b64 exec, 1
    ds_write_b32 v2, v10 offset:{C_W}
    s_mov_b64 exec, -1""")
    stamp(11, "P")
    if not rfirst: rank()
    if gate:
        A(f"v_lshlrev_b32 v36, 2, v0\nv_mov_b32 v15, s84\ns_mov_b64 exec, 1")
        spin(2, C_O, 4, 3)
        A(f"buffer_store_dword v15, v4, s[{WS}:{WS+3}], s55 offen offset:1024")

    def publish(red, cnt, so):
        ex(-1, 0)
        spin(2, cnt, 1, 3)
        spin(2, cnt, 4, 3, also=[f"ds_read_b128 v[{16+4*j}:{19+4*j}], v7 offset:{red - FRED + 512*j}" for j in range(4)])
        sum4(); tag(16, 5)
        A(f"buffer_store_dwordx4 v[16:19], v1, s[{WS}:{WS+3}], {so} offen {pol('fs' if red == FRED else 'ss')}")

    def inbox(so, k):
        ex(-1)
        for r in range(4): A(f"v_mov_b32 v{32+r}, 0")
        A("s_mov_b32 exec_hi, 0")
        if "I" not in skip: poll([f"buffer_load_dwordx4 v[32:35], v6, s[{WS}:{WS+3}], {so} offen {pol('f' if k == 31 else 's')}"], range(32, 36), 24, cnt=("P", k))
        else: ex(-1)
        A("""v_permlane32_swap_b32 v32, v33
        v_permlane32_swap_b32 v34, v35
        v_add_f32 v32, v32, v33
        v_add_f32 v34, v34, v35
        v_permlane16_swap_b32 v32, v34
        v_add_f32 v32, v32, v34""")
        for m in (8, 4, 2, 1): A(f"v_add_f32_dpp v32, v32, v32 row_ror:{m} {DPP}")
        rnd(32)
    publish(FRED, C_PF, "s52")
    stamp(12, "P")
    if gate:
        A(f"""s_mov_b32 s56, {gate}
        L_p_gate:
        buffer_load_dword v12, v36, s[{WS}:{WS+3}], s54 offen offset:1024 sc1
        s_waitcnt vmcnt(0)
        v_cmp_eq_u32 vcc, s84, v12
        s_bcnt1_i32_b32 s61, vcc_lo
        s_cmp_ge_u32 s61, {gthr}
        s_cbranch_scc1 L_p_gated
        s_sleep {gsl}
        s_sub_u32 s56, s56, 1
        s_cbranch_scc0 L_p_gate
        L_p_gated:
        ds_write_b32 v2, v10 offset:{C_G}""")
    publish(SRED, C_PS, "s53")
    stamp(5, "P")
    inbox("s45", 31)
    silu((32,), (24,)); rnd(32)
    A("v_mov_b32 v14, v32")
    stamp(6, "P")
    stamp(7, "P")
    inbox("s46", 32)
    A("v_mul_f32 v32, v32, v14"); rnd(32)
    A("v_add_f32 v32, v32, v9\nv_cvt_pk_bf16_f32 v32, v32, v32")
    ex(N0)
    A(f"buffer_store_short v32, v8, s[{OUT}:{OUT+3}], s44 offen {outpol}")
    epoch()
    if floor:
        A(f"L_floor:\ns_memrealtime s[62:63]\ns_waitcnt lgkmcnt(0)\ns_sub_u32 s62, s62, s90\ns_cmp_lt_u32 s62, {floor}\ns_cbranch_scc1 L_floor")
    stamp(8, "P")
    stamp_flush("P")
    A("L_end:\ns_endpgm")

    bad = A.verify_edges()
    assert not bad, bad
    nv = 168
    txt = HEAD + f"; @launch grid=(256,1,1) block=(576,1,1) lds={LDS_BYTES}\n" + NOTES
    txt += f'.amdgcn_target "amdgcn-amd-amdhsa--gfx950"\n.text\n.globl {KN}\n.p2align 8\n.type {KN},@function\n'
    txt += A.text()
    txt += f""".section .rodata,"a"
.p2align 6
.amdhsa_kernel {KN}
  .amdhsa_next_free_vgpr {nv}
  .amdhsa_next_free_sgpr 96
  .amdhsa_accum_offset {nv}
  .amdhsa_group_segment_fixed_size 0
  .amdhsa_kernarg_size 96
  .amdhsa_user_sgpr_count 2
  .amdhsa_user_sgpr_kernarg_segment_ptr 1
  .amdhsa_system_sgpr_workgroup_id_x 1
  .amdhsa_float_denorm_mode_32 3
.end_amdhsa_kernel
"""
    return txt


if __name__ == "__main__":
    kw = eval("dict(%s)" % (sys.argv[2] if len(sys.argv) > 2 else ""))
    open(sys.argv[1], "w").write(gen(**kw))
```

```python
import os
import sys
sys.path.insert(0, "work")
from asmlib import Asm

KN = "recurrent_scan__gqa_block_cached__swiglu_ffn__decode_kernel"
REF = "recurrent_scan__gqa_block_cached__swiglu_ffn__decode.s.ref"
HEAD = open(REF).read().split("; Override launch")[0] if os.path.exists(REF) else ""

QP, HP, ML, EP, PG, HF, QF, FI, SI, OP = 0x0, 0x20000, 0x60000, 0x68000, 0x69000, 0x6C000, 0x70000, 0x80000, 0xA0000, 0x100000
TAGM = 0x3FF
STAMP_OFF = 128 << 20
W8 = HP2 = H128 = ML2 = True
MISC = 131072
F_LAND, F_CONS = 0, 1024
C_A, C_H, C_Q, C_ML, C_HR, C_W, C_T, C_O, C_PF, C_PS, C_G, C_D = [2048 + 4 * i for i in range(12)]
QRED, QBUF, MLX, HBUF, OBUF, WBUF, HRED, SBUF = 3072, 4096, 6144, 6400, 6656, 6912, 8192, 12288
FRED, SRED = 8192, 10240
LDS_BYTES = MISC + SBUF + 16384
LOG2E, SCALE, EPS = 0x3FB8AA3B, 0x3DB504F3, 0x3727C5AC

NOTES = """; ---------------------------------------------------------------------------------------------
; ---------------------------------------------------------------------------------------------
"""


def gen(D=6, Dend=12, rk=(16, 24, 5), tq=7, th1=9, th2=13, tml=17, budget=1 << 23, stamps=False,
        floor=0, lonly=0, touch=False, stage3=True, skip="", nt="q h qs hs qfs hfs ms", ml2=True, outpol='', eppol='', xnt='', omode=0, osl=0, gate=0, gthr=32, gsl=2, rfirst=True, olate=False, tq1=4, qsl=6, clean=False, fin32=False, rv=((6, 8, 10, 12, 14), 12, 5, 26, 7), xb=None, rkx=(33, 8), gflag=C_O, lateb=True, D0=8):
    A0 = Asm()
    class Filt:
        def __call__(self, t):
            if "S" in skip: t = "\n".join(l for l in t.split("\n") if not ("buffer_store" in l and any(k in l for k in ("v[24:27], v6", "v[16:19], v7", "v[16:17], v15", "v[16:19], v13", "v[104:107], v114"))))
            if "M" in skip: t = "\n".join(l for l in t.split("\n") if not l.strip().startswith(("v_mfma", "v_exp", "v_cvt_pk", "v_fma_f32", "v_max3")))
            if "R" in skip: t = "\n".join(l for l in t.split("\n") if not l.strip().startswith(("ds_read_b64_tr", "ds_read_b128 v[6", "ds_read_b128 v[7", "ds_read_b128 v[8", "ds_read_b128 v[9")))
            return A0(t)
        def __getattr__(self, k): return getattr(A0, k)
    A = Filt() if any(c in skip for c in "SMR") else A0
    pol = lambda k: "sc1 nt" if k in nt.split() else "sc1"
    BUD = "s60"
    VS = {"L": 20, "C": 167, "P": 60}

    def stamp(k, role):
        if stamps is True or (stamps and role == "P" and k == 8) or (stamps == "L" and role == "L"):
            A(f"s_memrealtime s[62:63]\ns_waitcnt lgkmcnt(0)\nv_writelane_b32 v{VS[role]}, s62, {k}")

    def stamp_flush(role):
        if stamps is True or (stamps and role == "P") or (stamps == "L" and role == "L"):
            if role == "L": srd(28, 26, 1 << 28)
            if role == "P": A("v_writelane_b32 v60, s90, 10")
            A(f"""s_mov_b64 exec, -1
            s_mul_i32 s62, s2, 9
            s_add_u32 s62, s62, s3
            s_lshl_b32 s62, s62, 8
            s_add_u32 s62, s62, {STAMP_OFF}
            v_lshlrev_b32 v0, 2, v0
            buffer_store_dword v{VS[role]}, v0, s[28:31], s62 offen""")

    def srd(base, ptr, size):
        A(f"s_mov_b32 s{base}, s{ptr}\ns_mov_b32 s{base+1}, s{ptr+1}\ns_mov_b32 s{base+2}, {size}\ns_mov_b32 s{base+3}, 0x20000")

    def ex(lo, hi=None):
        hi = lo if hi is None else hi
        if lo == -1 and hi == -1: A("s_mov_b64 exec, -1")
        elif hi == 0 and 0 < lo <= 64: A(f"s_mov_b64 exec, {lo}")
        else: A(f"s_mov_b32 exec_lo, {lo & 0xffffffff:#x}\ns_mov_b32 exec_hi, {hi & 0xffffffff:#x}")
    N0 = 0x00010001

    def spin(vaddr, off, needv, vt, also=()):
        l0, l1 = A.lab("sp"), A.lab("sp")
        A(f"{l0}:\nds_read_b32 v{vt}, v{vaddr} offset:{off}")
        for t in also: A(t)
        A(f"""s_waitcnt lgkmcnt(0)
        v_readfirstlane_b32 s61, v{vt}
        s_cmp_ge_i32 s61, {needv}
        s_cbranch_scc1 {l1}
        s_sub_u32 {BUD}, {BUD}, 1
        s_cbranch_scc0 {l0}
        s_mov_b32 {BUD}, 0
        {l1}:""")

    def poll(loads, regs, vt, issued=False, slp=0, words=False, cnt=None):
        l0, l1, l2 = A.lab("pl"), A.lab("pl"), A.lab("pl")
        if cnt and stamps is True: A("s_mov_b32 s85, 0")
        if issued: A(f"s_branch {l2}")
        A(f"{l0}:")
        for t in loads: A(t)
        A(f"{l2}:\ns_waitcnt vmcnt(0)")
        if cnt and stamps is True: A("s_add_u32 s85, s85, 1")
        rs = list(regs)[1::2] if words else list(regs)
        for k, r in enumerate(rs):
            A(f"v_xor_b32 v{r}, s{84 if words else 80 + (k & 3)}, v{r}")
        if len(rs) == 2: A(f"v_or_b32 v{vt}, v{rs[0]}, v{rs[1]}")
        else: A(f"v_or3_b32 v{vt}, v{rs[0]}, v{rs[1]}, v{rs[2]}")
        k = 3
        while k < len(rs):
            if k + 1 < len(rs): A(f"v_or3_b32 v{vt}, v{vt}, v{rs[k]}, v{rs[k+1]}"); k += 2
            else: A(f"v_or_b32 v{vt}, v{vt}, v{rs[k]}"); k += 1
        if not words: A(f"v_and_b32 v{vt}, {TAGM:#x}, v{vt}")
        A(f"v_cmp_ne_u32 vcc, 0, v{vt}\ns_cbranch_vccz {l1}\ns_mov_b64 exec, vcc")
        if slp: A(f"s_sleep {slp}")
        A(f"s_sub_u32 {BUD}, {BUD}, 16\ns_cbranch_scc0 {l0}\ns_mov_b32 {BUD}, 0\n{l1}:\ns_mov_b64 exec, -1")
        if cnt and stamps is True: A(f"v_writelane_b32 v{VS[cnt[0]]}, s85, {cnt[1]}")

    def tag(r0, vm):
        for k in range(4): A(f"v_bfi_b32 v{r0+k}, v{vm}, s{80+k}, v{r0+k}")

    def tags_setup():
        A(f"s_add_u32 s84, s79, 1\ns_and_b32 s80, s84, {TAGM:#x}")
        for k in range(1, 4):
            A(f"s_add_u32 s{80+k}, s80, {256*k}\ns_and_b32 s{80+k}, s{80+k}, {TAGM:#x}")

    DPP = "row_mask:0xf bank_mask:0xf"

    def xrow(op, vs, ts):
        for sw in ("v_permlane16_swap_b32", "v_permlane32_swap_b32"):
            for v, t in zip(vs, ts): A(f"v_mov_b32 v{t}, v{v}")
            for v, t in zip(vs, ts): A(f"{sw} v{v}, v{t}")
            for v, t in zip(vs, ts): A(f"{op} v{v}, v{v}, v{t}")

    def allred(op, vs, ts):
        for m in ("quad_perm:[1,0,3,2]", "quad_perm:[2,3,0,1]", "row_half_mirror", "row_mirror"):
            for v in vs: A(f"{op}_dpp v{v}, v{v}, v{v} {m} {DPP}")
        xrow(op, vs, ts)

    def rnd(*vs):
        for v in vs: A(f"v_cvt_pk_bf16_f32 v{v}, v{v}, v{v}")
        for v in vs: A(f"v_and_b32 v{v}, 0xffff0000, v{v}")

    def silu(vs, ts):
        for v, t in zip(vs, ts): A(f"v_mul_f32 v{t}, 0xbfb8aa3b, v{v}")
        for v, t in zip(vs, ts): A(f"v_exp_f32 v{t}, v{t}")
        for v, t in zip(vs, ts): A(f"v_add_f32 v{t}, 1.0, v{t}")
        for v, t in zip(vs, ts): A(f"v_rcp_f32 v{t}, v{t}")
        for v, t in zip(vs, ts): A(f"v_mul_f32 v{v}, v{v}, v{t}")

    def unpack(dst, src, n):
        for i in range(n):
            A(f"v_lshlrev_b32 v{dst+2*i}, 16, v{src+i}\nv_and_b32 v{dst+2*i+1}, 0xffff0000, v{src+i}")

    def mfma(d, a, b, acc):
        A(f"v_mfma_f32_16x16x32_bf16 v[{d}:{d+3}], v[{a}:{a+3}], v[{b}:{b+3}], {'v[%d:%d]' % (d, d+3) if acc else '0'}")

    WS, XS, OUT = 28, 32, 40

    A(f"{KN}:")
    if stamps or floor: A("s_memrealtime s[90:91]")
    A(f"""s_cmp_ge_u32 s2, 256
    s_cbranch_scc1 L_end
    s_load_dwordx16 s[4:19], s[0:1], 0
    s_load_dwordx8 s[20:27], s[0:1], 64
    v_lshlrev_b32 v2, 2, v0
    v_add_u32 v2, {MISC}, v2
    v_mov_b32 v3, 0
    ds_write_b32 v2, v3
    v_lshrrev_b32 v1, 6, v0
    v_and_b32 v0, 63, v0
    v_readfirstlane_b32 s3, v1
    s_mov_b32 {BUD}, {budget}
    s_lshr_b32 s64, s2, 6
    s_and_b32 s65, s2, 63
    s_lshr_b32 s68, s65, 3
    s_and_b32 s72, s2, 1
    s_lshl_b32 s73, s72, 3
    s_or_b32 s68, s68, s73
    s_bfe_u32 s69, s2, 0x20001
    s_lshr_b32 s71, s2, 7
    s_lshl_b32 s71, s71, 2
    s_or_b32 s71, s71, s69
    s_and_b32 s76, s3, 3
    s_lshl_b32 s40, s69, 2
    s_add_u32 s40, s40, s76
    v_lshlrev_b32 v107, 4, v0
    v_and_b32 v106, 0x300, v107
    v_lshrrev_b32 v106, 4, v106
    s_waitcnt lgkmcnt(0)
    {'' if lateb else 's_barrier'}
    s_cmp_lt_u32 s3, 4
    s_cbranch_scc1 L_L""")
    A(f"s_load_dword s79, s[26:27], {EP:#x}")
    srd(XS, 4, 2048)
    A(f"""s_cmp_eq_u32 s3, 8
    s_cbranch_scc1 L_P
    s_lshl_b32 s41, s71, 2
    s_add_u32 s41, s41, s76
    s_lshl_b32 s41, s41, 6
    s_lshl_b32 s40, s40, 7""")
    if not lonly:
        A(f"""buffer_load_dwordx4 v[64:67], v107, s[{XS}:{XS+3}], 0 offen {xnt}
        buffer_load_dwordx4 v[68:71], v107, s[{XS}:{XS+3}], 0 offen offset:1024 {xnt}
        buffer_load_dwordx4 v[128:131], v106, s[{XS}:{XS+3}], s40 offen
        buffer_load_dwordx4 v[132:135], v106, s[{XS}:{XS+3}], s40 offen offset:64
        buffer_load_dwordx4 v[136:139], v106, s[{XS}:{XS+3}], s41 offen""")
    A("s_barrier\ns_branch L_C" if lateb else "s_branch L_C")

    def more_idx():
        A("""s_lshl_b32 s66, s64, 3
        s_and_b32 s73, s2, 7
        s_or_b32 s66, s66, s73
        s_bfe_u32 s67, s2, 0x30003
        s_bfe_u32 s70, s2, 0x40003""")

    SWQ, SGU, SK, SDN, SWO = 28, 32, 36, 44, 48
    A("L_L:\ns_setprio 3")
    stamp(0, "L")
    A("""v_lshrrev_b32 v2, 3, v0
    v_lshlrev_b32 v2, 13, v2
    v_and_b32 v3, 7, v0
    v_lshl_or_b32 v2, v3, 4, v2
    s_lshl_b32 s52, s40, 19
    s_lshl_b32 s73, s64, 11
    s_add_u32 s52, s52, s73
    s_lshl_b32 s73, s68, 7
    s_add_u32 s52, s52, s73
    s_lshl_b32 s57, s3, 15""")
    srd(SWQ, 10, 1 << 23)
    st = dict(issued=0, notified=0)
    ends = []

    def notify(val):
        A(f"v_mov_b32 v9, {val}\nds_write_b32 v8, v9 offset:{F_LAND}")

    def pace(Dt):
        P = st["issued"]
        if P >= Dt:
            A(f"s_waitcnt vmcnt({Dt-1})")
            while st["notified"] < len(ends) and ends[st["notified"]][0] <= P - Dt:
                val = ends[st["notified"]][1]
                notify(val); st["notified"] += 1
                if val >= 19: stamp(4 + val - 19, "L")

    def setup_gu():
        more_idx()
        A(f"""s_cmp_eq_u32 s72, 0
        s_cselect_b32 s{SGU}, s16, s18
        s_cselect_b32 s{SGU+1}, s17, s19
        s_mov_b32 s{SGU+2}, 7340032
        s_mov_b32 s{SGU+3}, 0x20000
        s_lshl_b32 s53, s71, 2
        s_add_u32 s53, s53, s3
        s_mul_i32 s53, s53, {32*7168}
        s_mul_i32 s73, s70, 448
        s_add_u32 s53, s53, s73
        v_lshlrev_b32 v3, 4, v0
        v_add_u32 v4, 6720, v3
        v_cmp_gt_u32 vcc, 28, v0
        v_cndmask_b32 v3, v4, v3, vcc
        s_lshl_b32 s73, s3, 8
        s_add_u32 s73, s73, {MISC}
        v_lshl_add_u32 v8, v0, 2, s73""")

    def setup_kv():
        srd(SK, 6, 1 << 26); srd(SDN, 20, 7340032); srd(SWO, 12, 1 << 23)
        A(f"""s_lshl_b32 s54, s65, 2
        s_add_u32 s54, s54, s3
        s_lshl_b32 s54, s54, 13
        s_lshl_b32 s73, s64, 24
        s_add_u32 s54, s54, s73
        s_lshl_b32 s56, s66, 2
        s_add_u32 s56, s56, s3
        s_lshl_b32 s73, s67, 8
        s_mul_i32 s55, s56, {28*2048}
        s_add_u32 s55, s55, s73
        s_lshl_b32 s56, s56, 16
        s_add_u32 s56, s56, s73
        v_lshrrev_b32 v10, 4, v0
        v_and_b32 v11, 15, v0
        v_lshlrev_b32 v12, 1, v10
        v_xor_b32 v12, v11, v12
        v_xor_b32 v13, 8, v12
        v_lshlrev_b32 v12, 4, v12
        v_lshlrev_b32 v13, 4, v13
        v_lshl_or_b32 v4, v10, 8, v12
        v_lshl_or_b32 v5, v10, 8, v13
        v_lshl_or_b32 v6, v10, 11, v12
        v_lshl_or_b32 v7, v10, 11, v13
        v_mov_b32 v11, {MISC}""")

    for i in range(8):
        pace(D0 or D)
        A(f"s_add_u32 m0, s57, {i*1024}\nbuffer_load_dwordx4 v2, s[{SWQ}:{SWQ+3}], s52 offen nt lds\ns_add_u32 s52, s52, 65536")
        st["issued"] += 1
        if i == (D0 or D) - 1:
            if lateb: A("s_barrier")
            setup_gu(); stamp(1, "L")
        if i == 7: setup_kv()
    ends.append((7, 1))
    A("s_lshr_b64 exec, -1, 8")
    for t in (1, 2):
        for i in range(8):
            pace(D)
            A(f"s_add_u32 m0, s57, {t*8192 + i*896}\nbuffer_load_dwordx4 v3, s[{SGU}:{SGU+3}], s53 offen nt lds\ns_add_u32 s53, s53, 14336")
            st["issued"] += 1
        ends.append((st["issued"] - 1, t + 1))
    assert st["notified"] == 2 and D <= 8
    A("s_mov_b64 exec, -1")
    stamp(2, "L")
    A(f"s_mov_b32 s58, 3\ns_add_u32 s59, s57, {3*8192}\nds_read_b32 v10, v8 offset:{F_CONS}")
    if rv: A(f"ds_read_b32 v12, v11 offset:{C_D}")
    A("L_lloop:\ns_waitcnt lgkmcnt(0)")
    if rv: A("v_readfirstlane_b32 s77, v12")
    if stamps in (True, "L"): A("s_add_u32 m0, s58, 8\ns_nop 0\nv_writelane_b32 v20, s62, m0")
    A("v_readfirstlane_b32 s61, v10\ns_sub_u32 s75, s58, 3\ns_cmp_ge_i32 s61, s75\ns_cbranch_scc1 L_lok")
    spin(8, F_CONS, "s75", 10)
    A("L_lok:\ns_mov_b32 m0, s59\ns_add_u32 s74, s54, 4096")
    levels = ([D, rv[2], rv[4]] + ([rv[4] + 1] if xb else [])) if rv else [D]
    for k in range(1, len(levels)): A(f"s_cmp_eq_u32 s77, {k}\ns_cbranch_scc1 L_lb{k}")
    for k, Dk in enumerate(levels):
        A(f"L_lb{k}:")
        for i in range(8):
            A(f"s_waitcnt vmcnt({Dk-1})")
            if i == Dk - 1: notify("s58")
            if i == 4: A("s_add_u32 m0, s59, 4096")
            A(f"buffer_load_dwordx4 v{4+(i&1)}, s[{SK}:{SK+3}], {'s54' if i < 4 else 's74'} offen offset:{(i&3)*1024} nt lds")
        if k < len(levels) - 1: A("s_branch L_lnext")
    A("L_lnext:")
    if rv: A(f"ds_read_b32 v12, v11 offset:{C_D}")
    if stamps in (True, "L"): A("s_memrealtime s[62:63]")
    A(f"""ds_read_b32 v10, v8 offset:{F_CONS}
    s_add_u32 s58, s58, 1
    s_and_b32 s59, s58, 3
    s_lshl_b32 s59, s59, 13
    s_add_u32 s59, s59, s57
    s_cmp_eq_u32 s58, 11
    s_cselect_b32 s{SK}, s8, s{SK}
    s_cselect_b32 s{SK+1}, s9, s{SK+1}
    s_cselect_b32 s73, {16 << 20}, 0
    s_sub_u32 s54, s54, s73
    s_add_u32 s54, s54, {2 << 20}
    s_cmp_lt_u32 s58, 19
    s_cbranch_scc1 L_lloop""")
    stamp(3, "L")

    def tail_tiles(Dt):
        st["issued"] = 1000; st["notified"] = 0
        ends[:] = [(999, 19)]
        for t, n, sr, so in ((19, 7, SDN, 55), (20, 8, SWO, 56)):
            ok = A.lab("ok")
            A(f"s_waitcnt lgkmcnt(0)\nv_readfirstlane_b32 s61, v10\ns_cmp_ge_i32 s61, {t-3}\ns_cbranch_scc1 {ok}")
            spin(8, F_CONS, t - 3, 10)
            A(f"{ok}:")
            for i in range(n):
                pace(Dt)
                A(f"s_add_u32 m0, s57, {(t&3)*8192 + i*1024}\nbuffer_load_dwordx4 v{6+(i&1)}, s[{sr}:{sr+3}], s{so} offen nt lds\ns_add_u32 s{so}, s{so}, 8192")
                st["issued"] += 1
            ends.append((st["issued"] - 1, t + 1))
            if t == 19: A(f"ds_read_b32 v10, v8 offset:{F_CONS}")
        while st["notified"] < len(ends):
            e, val = ends[st["notified"]]
            A(f"s_waitcnt vmcnt({st['issued'] - 1 - e})")
            notify(val); st["notified"] += 1
            stamp(4 + val - 19, "L")
    if rk:
        A(f"ds_read_b32 v12, v11 offset:{C_T}\ns_waitcnt lgkmcnt(0)\nv_readfirstlane_b32 s77, v12")
        for k, dk in enumerate(rk[2::2]):
            A(f"s_cmp_lg_u32 s77, {k+1}\ns_cbranch_scc1 L_lnot{k}")
            tail_tiles(dk)
            stamp_flush("L")
            A(f"s_endpgm\nL_lnot{k}:")
    tail_tiles(Dend)
    stamp_flush("L")
    A("s_endpgm")

    A("L_C:\ns_setprio 2")
    more_idx()
    srd(WS, 26, 1 << 28)
    A(f"""s_lshl_b32 s46, s76, 15
    s_lshl_b32 s73, s76, 8
    s_add_u32 s73, s73, {MISC}
    v_lshl_add_u32 v1, v0, 2, s73
    v_mov_b32 v2, {MISC}
    v_mov_b32 v124, 1
    v_mov_b32 v125, v106
    v_mov_b32 v126, v107""")
    if lonly:
        A("s_mov_b32 s49, 1\nL_xl:")
        spin(1, F_LAND, "s49", 3)
        A(f"v_mov_b32 v3, s49\nds_write_b32 v1, v3 offset:{F_CONS}\ns_add_u32 s49, s49, 1\ns_cmp_lt_u32 s49, 22\ns_cbranch_scc1 L_xl\ns_endpgm")
    stamp(0, "C")
    A(f"""v_lshrrev_b32 v104, 4, v0
    v_bfe_u32 v119, v0, 2, 2
    v_and_b32 v118, 3, v0
    v_lshlrev_b32 v118, 3, v118
    v_lshl_add_u32 v122, v104, 3, v119
    v_lshl_add_u32 v122, v122, 7, v118
    v_add_u32 v122, s46, v122
    s_lshl_b32 s73, s76, 8
    s_add_u32 s73, s73, {MISC + QRED}
    v_add_u32 v112, s73, v125""")
    stamp(17, "C")
    A("s_waitcnt vmcnt(3)")
    stamp(18, "C")
    unpack(72, 64, 8)
    A("v_readfirstlane_b32 s42, v72\nv_mov_b32 v64, s42")
    for i in range(8):
        A(f"v_pk_add_f32 v[{72+2*i}:{73+2*i}], v[{72+2*i}:{73+2*i}], v[64:65] op_sel_hi:[1,0] neg_lo:[0,1] neg_hi:[0,1]")
    A("v_pk_mul_f32 v[66:67], v[72:73], v[72:73]\nv_pk_add_f32 v[68:69], v[72:73], v[74:75]\nv_pk_fma_f32 v[66:67], v[74:75], v[74:75], v[66:67]")
    for i in range(2, 8):
        A(f"v_pk_add_f32 v[68:69], v[68:69], v[{72+2*i}:{73+2*i}]\nv_pk_fma_f32 v[66:67], v[{72+2*i}:{73+2*i}], v[{72+2*i}:{73+2*i}], v[66:67]")
    A("v_add_f32 v68, v68, v69\nv_add_f32 v66, v66, v67")
    allred("v_add_f32", (68, 66), (69, 67))
    A("""v_mul_f32 v68, 0x3a800000, v68
    v_mul_f32 v66, 0x3a800000, v66
    v_add_f32 v64, v64, v68
    v_fma_f32 v66, -v68, v68, v66
    v_max_f32 v66, 0, v66""")
    rnd(64, 66)
    A(f"v_add_f32 v66, {EPS:#x}, v66"); rnd(66)
    A("v_sqrt_f32 v66, v66"); rnd(66)
    A("v_rcp_f32 v68, v66")

    def normalise(x0, n):
        for x in range(x0, x0 + n):
            unpack(72, x, 1)
            A(f"""v_pk_add_f32 v[72:73], v[72:73], v[64:65] op_sel_hi:[1,0] neg_lo:[0,1] neg_hi:[0,1]
            v_cvt_pk_bf16_f32 v74, v72, v73""")
            unpack(72, 74, 1)
            A(f"""v_pk_mul_f32 v[74:75], v[72:73], v[68:69] op_sel_hi:[1,0]
            v_pk_fma_f32 v[72:73], v[74:75], v[66:67], v[72:73] op_sel_hi:[1,0,1] neg_lo:[1,0,0] neg_hi:[1,0,0]
            v_pk_fma_f32 v[74:75], v[72:73], v[68:69], v[74:75] op_sel_hi:[1,0,1]
            v_cvt_pk_bf16_f32 v{x}, v74, v75""")
    A("s_waitcnt vmcnt(1)")
    normalise(128, 8)
    stamp(1, "C")

    def release(val):
        A(f"v_mov_b32 v3, {val}\nds_write_b32 v1, v3 offset:{F_CONS}")

    def cnt_add(off):
        A(f"s_mov_b64 exec, 1\nds_add_u32 v2, v124 offset:{off}\ns_mov_b64 exec, -1")

    def tr_mfma(blocks, breg, acc=False, rel=None, writes=None, lag=4, mask=None, depth=7):
        q = []
        def rd(k):
            a, o, o2, f, _ = blocks[k]
            A(f"ds_read_b64_tr_b16 v[{f}:{f+1}], v{a} offset:{o}\nds_read_b64_tr_b16 v[{f+2}:{f+3}], v{a} offset:{o2}")
            q.extend([k, k])
        n = len(blocks); nxt = min(depth, n)
        for k in range(nxt): rd(k)
        masked = False
        for k in range(n + (lag if writes else 0)):
            if k < n:
                A(f"s_waitcnt lgkmcnt({len(q) - 1 - max(i for i, e in enumerate(q) if e == k)})")
                if rel is not None and k == n - 1: release(rel); q.append(None)
                b = blocks[k]
                mfma(b[4], b[3], breg(k) if callable(breg) else breg, acc(k) if callable(acc) else acc)
                if nxt < n: rd(nxt); nxt += 1
            if writes and k >= lag:
                if mask is not None and not masked:
                    assert nxt == n
                    ex(mask); masked = True
                writes(k - lag); q.append(None)

    spin(1, F_LAND, 1, 3)
    stamp(2, "C")
    tr_mfma([(122, s*4096 + 32*b, s*4096 + 32*b + 512, 76 + 4*((4*s + b) % 5), 32 + 4*b) for s in range(2) for b in range(4)],
            lambda k: 128 + 4*(k >> 2), acc=lambda k: k >= 4, rel=1, depth=4)
    ex(N0)
    for b in range(4): A(f"ds_write_b128 v112, v[{32+4*b}:{35+4*b}] offset:{b*64}")
    cnt_add(C_A)
    stamp(3, "C")
    A("s_waitcnt vmcnt(0)")
    normalise(136, 4)
    tags_setup()
    A(f"""v_mov_b32 v166, {TAGM:#x}
    v_and_b32 v123, 1, v104
    v_lshl_add_u32 v123, v123, 3, v119
    v_mul_u32_u24 v123, 448, v123
    v_lshrrev_b32 v119, 5, v0
    v_lshl_add_u32 v123, v119, 13, v123
    s_add_u32 s73, s46, 8192
    v_add3_u32 v123, v123, v118, s73
    s_mul_i32 s73, s76, 896
    s_add_u32 s73, s73, {MISC + HRED}
    v_add_u32 v122, s73, v125
    v_and_b32 v113, 15, v0
    v_and_b32 v114, 7, v0
    v_lshlrev_b32 v127, 4, v114
    v_lshlrev_b32 v114, 1, v114
    v_lshlrev_b32 v115, 8, v113
    s_add_u32 s73, s46, {3*8192}
    v_add_u32 v115, s73, v115""")
    for jj in range(4):
        A(f"v_add_u32 v116, {4*jj}, v104\nv_xor_b32 v116, v116, v114\nv_lshl_add_u32 v{4+jj}, v116, 4, v115")
    A("""v_lshrrev_b32 v116, 2, v0
    v_and_b32 v117, 7, v116
    v_lshl_add_u32 v116, v116, 8, v118
    v_add_u32 v116, s73, v116""")
    for b in range(8):
        A(f"v_xor_b32 v119, {b}, v117\nv_lshl_add_u32 v{8+b}, v119, 5, v116")
    A(f"""v_lshl_add_u32 v16, v127, 4, v125
    v_add_u32 v16, {MISC + QBUF}, v16
    v_lshl_add_u32 v127, v125, 3, v127
    s_lshl_b32 s73, s76, 12
    s_add_u32 s73, s73, {MISC + SBUF}
    v_add_u32 v127, s73, v127
    v_mov_b32 v120, 0xff800000
    v_mov_b32 v121, 0
    s_mov_b32 s49, 4
    s_mov_b32 s50, {LOG2E:#x}
    s_mov_b32 s51, {SCALE:#x}
    s_mov_b32 s52, 0x6000
    s_mov_b32 s53, 0""")
    spin(1, F_LAND, 3, 3)
    stamp(4, "C")
    gd = lambda b: 32 + 4*b if b < 8 else 96 + 4*(b - 8)
    tr_mfma([(123, 32*b, 32*b + 1792, 64 + 4*(b % 8), gd(b)) for b in range(14)], 136, rel=3)
    ex(N0)
    for b in range(14): A(f"ds_write_b128 v122, v[{gd(b)}:{gd(b)+3}] offset:{b*64}")
    cnt_add(C_H)
    stamp(5, "C")

    def k_reads(f0):
        spin(1, F_LAND, "s49", 3)
        for k in range(8): A(f"ds_read_b128 v[{f0+4*k}:{f0+3+4*k}], v{4+(k>>1)} offset:{(k&1)*4096}")
        A("s_waitcnt lgkmcnt(0)")
        release("s49")
        for jj in range(4): A(f"v_xor_b32 v{4+jj}, s52, v{4+jj}")
        A("s_xor_b32 s52, s52, 0x4000\ns_add_u32 s49, s49, 1")
    k_reads(64); k_reads(128)
    if stage3: k_reads(32)
    stamp(6, "C")
    A("v_mov_b32 v113, v16")
    spin(2, C_Q, 1, 3)
    for jj in range(4): A(f"ds_read_b128 v[{16+4*jj}:{19+4*jj}], v113 offset:{jj*64}")
    A("s_waitcnt lgkmcnt(0)")
    stamp(7, "C")
    A("L_c_qk:")
    for k in range(8): mfma(96 + 4*(k & 1), 64 + 4*k, 16 + 4*(k >> 1), k >= 2)
    for i in range(4): A(f"v_cvt_pk_bf16_f32 v{104+i}, v{96+2*i}, v{97+2*i}")
    unpack(96, 104, 4)
    for i in range(8): A(f"v_mul_f32 v{96+i}, s51, v{96+i}")
    for i in range(4): A(f"v_cvt_pk_bf16_f32 v{104+i}, v{96+2*i}, v{97+2*i}")
    A("ds_write_b128 v127, v[104:107]\nv_add_u32 v127, 512, v127")
    unpack(96, 104, 4)
    A(f"""v_max3_f32 v120, v120, v96, v97
    v_max3_f32 v109, v98, v99, v100
    v_max3_f32 v120, v120, v101, v102
    v_max3_f32 v120, v120, v109, v103
    s_add_u32 s53, s53, 1
    s_cmp_le_u32 s53, {2 if stage3 else 1}
    s_cbranch_scc1 L_c_staged
    s_cmp_eq_u32 s53, 8
    s_cbranch_scc1 L_c_kdone""")
    k_reads(64)
    A("s_branch L_c_qk\nL_c_staged:")
    for r in range(32): A(f"v_mov_b32 v{64+r}, v{128+r}")
    if stage3:
        for r in range(32): A(f"v_mov_b32 v{128+r}, v{32+r}")
    A("s_branch L_c_qk")
    A("L_c_kdone:")
    xrow("v_max_f32", (120,), (109,))
    for r in range(32): A(f"v_mov_b32 v{32+r}, 0")
    A("v_mul_f32 v110, s50, v120\nv_subrev_u32 v127, 4096, v127\ns_mov_b32 s52, 0x6000")
    A("L_c_exp:\nds_read_b128 v[104:107], v127\ns_waitcnt lgkmcnt(0)")
    unpack(96, 104, 4)
    for i in range(8): A(f"v_fma_f32 v{96+i}, v{96+i}, s50, -v110")
    for i in range(8): A(f"v_exp_f32 v{96+i}, v{96+i}")
    for i in range(4): A(f"v_cvt_pk_bf16_f32 v{104+i}, v{96+2*i}, v{97+2*i}")
    A("""v_pk_add_f32 v[96:97], v[96:97], v[98:99]
    v_pk_add_f32 v[100:101], v[100:101], v[102:103]
    ds_write_b128 v127, v[104:107]
    v_pk_add_f32 v[96:97], v[96:97], v[100:101]
    v_add_u32 v127, 512, v127
    v_add_f32 v121, v121, v96
    v_add_f32 v121, v121, v97
    s_sub_u32 s53, s53, 1
    s_cmp_lg_u32 s53, 0
    s_cbranch_scc1 L_c_exp
    v_subrev_u32 v127, 4096, v127""")
    stamp(8, "C")
    xrow("v_add_f32", (121,), (109,))
    A(f"""s_lshl_b32 s73, s76, 6
    s_add_u32 s73, s73, {MISC + MLX}
    v_lshl_add_u32 v112, v0, 3, s73""")
    ex(0xff, 0)
    A("ds_write_b64 v112, v[120:121]")
    cnt_add(C_ML)
    A(f"""v_lshrrev_b32 v113, 5, v0
    s_lshl_b32 s73, s76, 1
    v_add_u32 v113, s73, v113
    v_lshlrev_b32 v112, 3, v113
    v_add_u32 v112, {MISC + MLX}, v112
    s_lshl_b32 s47, s64, 9
    s_add_u32 s47, s47, s65
    s_lshl_b32 s47, s47, 4
    s_add_u32 s47, s47, {ML}
    v_lshlrev_b32 v114, 10, v113""")
    spin(2, C_ML, 4, 3, also=[f"ds_read_b64 v[{96+2*k}:{97+2*k}], v112 offset:{k*64}" for k in range(4)])
    A("v_max3_f32 v104, v96, v98, v100\nv_max_f32 v104, v104, v102")
    for k in range(4): A(f"v_sub_f32 v{160+k}, v{96+2*k}, v104\nv_mul_f32 v{160+k}, s50, v{160+k}")
    for k in range(4): A(f"v_exp_f32 v{160+k}, v{160+k}")
    A("""v_mov_b32 v106, 0
    v_mov_b32 v107, 0
    v_mul_f32 v105, v160, v97
    v_fmac_f32 v105, v161, v99
    v_fmac_f32 v105, v162, v101
    v_fmac_f32 v105, v163, v103""")
    if ml2:
        A(f"""s_cmp_lg_u32 s76, 0
        s_cbranch_scc1 L_c_noml
        v_lshl_add_u32 v112, v0, 3, v2
        s_lshl_b32 s47, s2, 7
        s_add_u32 s47, s47, {ML}""")
        ex(0xff, 0)
        for k in range(4): A(f"ds_read_b64 v[{96+2*k}:{97+2*k}], v112 offset:{MLX + k*64}")
        A("s_waitcnt lgkmcnt(0)\nv_max3_f32 v104, v96, v98, v100\nv_max_f32 v104, v104, v102")
        for k in range(4): A(f"v_sub_f32 v{96+2*k}, v{96+2*k}, v104\nv_mul_f32 v{96+2*k}, s50, v{96+2*k}")
        for k in range(4): A(f"v_exp_f32 v{96+2*k}, v{96+2*k}")
        A("v_mul_f32 v105, v96, v97\nv_fmac_f32 v105, v98, v99\nv_fmac_f32 v105, v100, v101\nv_fmac_f32 v105, v102, v103")
        tag(104, 166)
        A(f"buffer_store_dwordx4 v[104:107], v126, s[{WS}:{WS+3}], s47 offen {pol('ms')}\nL_c_noml:")
    else:
        tag(104, 166)
        ex(1, 1)
        A(f"buffer_store_dwordx4 v[104:107], v114, s[{WS}:{WS+3}], s47 offen sc1")
    ex(-1)
    A(f"""v_and_b32 v115, 7, v0
    v_mul_u32_u24 v115, 528, v115
    s_add_u32 s73, s46, 8192
    v_add3_u32 v115, v115, v125, s73
    v_and_b32 v117, 31, v0
    v_mul_u32_u24 v116, 528, v113
    v_lshl_add_u32 v116, v117, 4, v116
    v_add_u32 v116, 8192, v116
    v_add_u32 v118, 0x10000, v116
    v_lshrrev_b32 v119, 3, v117
    v_lshl_add_u32 v119, v113, 2, v119
    v_and_b32 v117, 7, v0
    v_lshlrev_b32 v117, 4, v117
    v_lshl_add_u32 v117, v119, 13, v117
    s_lshl_b32 s47, s64, 11
    s_add_u32 s47, s47, s65
    s_lshl_b32 s47, s47, 7
    s_add_u32 s47, s47, {OP}
    s_lshl_b32 s73, s76, 6
    s_add_u32 s74, s73, {MISC + HBUF}
    v_add_u32 v108, s74, v125
    s_add_u32 s74, s73, {MISC + OBUF}
    v_add_u32 v114, s74, v125
    v_lshrrev_b32 v113, 5, v0
    v_bfe_u32 v109, v0, 4, 1
    v_lshl_add_u32 v113, v109, 1, v113
    v_bfe_u32 v109, v0, 2, 1
    v_lshl_add_u32 v113, v109, 2, v113
    v_and_b32 v109, 3, v0
    v_lshl_add_u32 v113, v109, 3, v113
    v_lshl_add_u32 v113, v113, 1, s74
    v_lshrrev_b32 v109, 3, v0
    v_lshlrev_b32 v109, 5, v109
    v_add_u32 v109, {MISC + WBUF}, v109
    s_lshl_b32 s73, s76, 9
    s_add_u32 s73, s73, {MISC + FRED}
    v_add_u32 v119, s73, v125
    s_lshl_b32 s44, s66, 2
    s_add_u32 s44, s44, s76
    s_lshl_b32 s44, s44, 13
    s_add_u32 s44, s44, {OP}
    s_add_u32 s45, s44, 4096""")
    vblk = lambda off: [(8 + b, off, off + 4096, 64 + 4*b, 32 + 4*b) for b in range(8)]
    A("L_cloop:\nds_read_b128 v[104:107], v127\nv_add_u32 v127, 512, v127\ns_cmp_eq_u32 s49, 19\ns_cbranch_scc1 L_c_last")
    spin(1, F_LAND, "s49", 3)
    tr_mfma(vblk(0), 104, acc=True, rel="s49")
    for b in range(8): A(f"v_xor_b32 v{8+b}, s52, v{8+b}")
    A("s_xor_b32 s52, s52, 0x4000\ns_add_u32 s49, s49, 1\ns_branch L_cloop")
    A("L_c_last:")
    spin(2, C_HR, 1, 3, also=("ds_read_b128 v[16:19], v108",))
    spin(2, C_W, 1, 3, also=("ds_read_b128 v[96:99], v109", "ds_read_b128 v[100:103], v109 offset:16"))
    if olate: A(f"ds_read_b32 v3, v2 offset:{C_T}\ns_waitcnt lgkmcnt(0)\nv_readfirstlane_b32 s48, v3")
    spin(1, F_LAND, 19, 3)
    stamp(9, "C")
    tr_mfma(vblk(0), 104, acc=True, writes=lambda b: A(f"ds_write_b128 v115, v[{32+4*b}:{35+4*b}] offset:{b*64}"))
    cnt_add(C_O)
    spin(2, C_O, 4, 3, also=("ds_read_b128 v[64:67], v116", "ds_read_b128 v[68:71], v116 offset:32768",
                             "ds_read_b128 v[72:75], v118", "ds_read_b128 v[76:79], v118 offset:32768"))
    for h in range(2): A(f"v_pk_mul_f32 v[{64+2*h}:{65+2*h}], v[{64+2*h}:{65+2*h}], v[160:161] op_sel_hi:[1,0]")
    for k in range(1, 4):
        sel = "op_sel:[0,1,0] op_sel_hi:[1,1,1]" if k & 1 else "op_sel_hi:[1,0,1]"
        f = 160 + (k & 2)
        for h in range(2): A(f"v_pk_fma_f32 v[{64+2*h}:{65+2*h}], v[{64+4*k+2*h}:{65+4*k+2*h}], v[{f}:{f+1}], v[{64+2*h}:{65+2*h}] {sel}")
    tag(64, 166)
    A(f"buffer_store_dwordx4 v[64:67], v117, s[{WS}:{WS+3}], s47 offen {pol('os')}")
    stamp(10, "C")
    spin(1, F_LAND, 20, 3)
    stamp(11, "C")
    tr_mfma(vblk(8192), 16, writes=lambda b: A(f"ds_write_b128 v119, v[{32+4*b}:{35+4*b}] offset:{64*b}"), mask=N0)
    cnt_add(C_PF)
    stamp(12, "C")
    for b in range(8): A(f"v_xor_b32 v{8+b}, 0x4000, v{8+b}")
    old = [f"buffer_load_dwordx4 v[{128+4*i}:{131+4*i}], v126, s[{WS}:{WS+3}], s{44+(i>>2)} offen offset:{1024*(i&3)} {pol('o')}" for i in range(8)]
    def wo_frags():
        for b in range(8):
            if b == 7: A("s_waitcnt lgkmcnt(4)")
            A(f"ds_read_b64_tr_b16 v[{64+4*b}:{65+4*b}], v{8+b}\nds_read_b64_tr_b16 v[{66+4*b}:{67+4*b}], v{8+b} offset:4096")
    stamp(13, "C")
    if omode == 0:
        if gate:
            spin(2, C_G, 1, 3)
            for t in old: A(t)
            spin(1, F_LAND, 21, 3)
        else:
            spin(1, F_LAND, 21, 3)
            if "O" not in skip:
                for t in old: A(t)
        stamp(15, "C")
        wo_frags()
        if "O" not in skip: poll(old, range(128, 160), 110, issued=True, cnt=("C", 30), slp=osl)
    else:
        poll(old, range(128, 160), 110, cnt=("C", 30), slp=osl)
    stamp(14, "C")
    for h in range(2): A(f"v_pk_mul_f32 v[{128+2*h}:{129+2*h}], v[{128+2*h}:{129+2*h}], v[96:97] op_sel_hi:[1,0]")
    for i in range(1, 8):
        sel = "op_sel:[0,1,0] op_sel_hi:[1,1,1]" if i & 1 else "op_sel_hi:[1,0,1]"
        f = 96 + (i & 6)
        for h in range(2): A(f"v_pk_fma_f32 v[{128+2*h}:{129+2*h}], v[{128+4*i+2*h}:{129+4*i+2*h}], v[{f}:{f+1}], v[{128+2*h}:{129+2*h}] {sel}")
    A(f"""v_permlane32_swap_b32 v128, v129
    v_permlane32_swap_b32 v130, v131
    v_add_f32 v128, v128, v129
    v_add_f32 v130, v130, v131
    v_permlane16_swap_b32 v128, v130
    v_add_f32 v128, v128, v130
    v_add_f32_dpp v128, v128, v128 row_ror:8 {DPP}
    v_cvt_pk_bf16_f32 v128, v128, v128
    ds_write_b16 v113, v128
    ds_read_b128 v[104:107], v114""")
    if omode == 0:
        ex(N0)
        A("s_waitcnt lgkmcnt(0)")
        for b in range(12):
            if b < 8: mfma(32 + 4*b, 64 + 4*b, 104, False)
            if b >= 4: A(f"ds_write_b128 v119, v[{16+4*b}:{19+4*b}] offset:{SRED - FRED + 64*(b-4)}")
    else:
        spin(1, F_LAND, 21, 3)
        stamp(15, "C")
        tr_mfma(vblk(0), 104, writes=lambda b: A(f"ds_write_b128 v119, v[{32+4*b}:{35+4*b}] offset:{SRED - FRED + 64*b}"), mask=N0)
    A(f"s_mov_b64 exec, 1\nds_add_u32 v2, v124 offset:{C_PS}")
    stamp(16, "C")
    stamp_flush("C")
    A("s_endpgm")

    A("L_P:")
    if lateb: A("s_barrier")
    more_idx()
    srd(WS, 26, 1 << 28); srd(OUT, 22, 2048)
    stamp(0, "P")
    A(f"""v_lshlrev_b32 v1, 4, v0
    v_mov_b32 v2, {MISC}
    v_mov_b32 v4, 0
    v_mov_b32 v5, {TAGM:#x}
    v_mov_b32 v10, 1
    v_lshrrev_b32 v8, 5, v0
    v_bfe_u32 v9, v0, 4, 1
    v_lshl_add_u32 v8, v9, 1, v8
    v_lshlrev_b32 v8, 1, v8
    s_and_b32 s44, s2, 7
    s_lshl_b32 s44, s44, 5
    s_lshr_b32 s73, s2, 3
    s_or_b32 s44, s44, s73
    s_lshl_b32 s51, s44, 4
    s_lshl_b32 s44, s44, 3
""")
    if fin32:
        A("""s_and_b32 s44, s2, 7
        s_lshl_b32 s44, s44, 2
        s_or_b32 s44, s44, s64
        s_lshl_b32 s51, s44, 7
        s_lshl_b32 s44, s44, 6
        v_and_b32 v9, 7, v0
        v_lshl_add_u32 v8, v9, 3, v8""")
    A(f"""s_lshl_b32 s47, s64, 4
    s_add_u32 s47, s47, s68
    s_lshl_b32 s47, s47, 4
    s_add_u32 s47, s47, s69
    s_lshl_b32 s47, s47, 7
    v_lshrrev_b32 v14, 3, v0
    v_and_b32 v12, 7, v0
    v_lshlrev_b32 v6, 4, v12
    v_lshl_or_b32 v7, v14, 11, v6
    v_lshl_or_b32 v6, v14, 9, v6
    v_lshlrev_b32 v15, 3, v0
    v_add_u32 v13, {MISC + QRED}, v15
    v_mul_u32_u24 v11, 7, v14
    v_add_u32 v11, v11, v12
    v_lshlrev_b32 v11, 4, v11
    v_add_u32 v11, {MISC + HRED}, v11
    s_lshl_b32 s48, s70, 7
    s_lshl_b32 s73, s72, 3
    s_add_u32 s48, s48, s73
    s_add_u32 s48, s48, s71
    s_lshl_b32 s48, s48, 7
    s_add_u32 s48, s48, {HP}""")

    def rank_at(count, tail):
        ex(-1, 1 if xb else 0)
        spin(2, F_LAND, count, 3)
        A(f"""buffer_load_dword v37, v36, s[{WS}:{WS+3}], s54 offen sc1
        s_add_u32 s56, s48, {count}
        v_mov_b32 v38, s56
        s_mov_b64 exec, 1
        buffer_store_dword v38, v4, s[{WS}:{WS+3}], s55 offen
        s_mov_b32 exec_lo, -1
        s_waitcnt vmcnt(1)""")
        if xb: A("v_readlane_b32 s57, v37, 32")
        A("v_subrev_u32 v37, s56, v37\nv_cmp_gt_u32 vcc, 32, v37\ns_bcnt1_i32_b32 s61, vcc_lo")
        if xb:
            A("s_sub_u32 s57, s57, s48\ns_cmp_lt_u32 s57, 3\ns_cselect_b32 s57, s57, 0")
            if not tail:
                l = A.lab("med")
                A(f"""s_cmp_lg_u32 s61, 16
                s_cbranch_scc1 {l}
                s_mov_b32 exec_lo, 0xff
                buffer_load_dword v37, v36, s[{WS}:{WS+3}], s58 offen sc1
                s_mov_b32 exec_lo, 1
                buffer_store_dword v38, v4, s[{WS}:{WS+3}], s59 offen sc1
                s_mov_b32 exec_lo, 0xff
                s_waitcnt vmcnt(1)
                v_subrev_u32 v37, s56, v37
                v_cmp_gt_u32 vcc, 32, v37
                s_bcnt1_i32_b32 s73, vcc_lo
                s_cmp_le_u32 s73, {xb[0]}
                s_cselect_b32 s57, 1, 0
                s_cmp_ge_u32 s73, {xb[1]}
                s_cselect_b32 s57, 2, s57
                s_add_u32 s73, s57, s48
                v_mov_b32 v38, s73
                s_mov_b32 exec_lo, 1
                buffer_store_dword v38, v4, s[{WS}:{WS+3}], s54 offen offset:128
                {l}:""")
        if tail:
            A(f"s_mov_b32 s73, {rk[1]}")
            if xb: A(f"s_cmp_eq_u32 s57, 1\ns_cselect_b32 s73, {rkx[0]}, s73\ns_cmp_eq_u32 s57, 2\ns_cselect_b32 s73, {rkx[1]}, s73")
            A("s_cmp_lt_u32 s61, s73\ns_cselect_b32 s56, 1, 0")
        else:
            A(f"s_cmp_ge_u32 s61, {rv[1]}\ns_cselect_b32 s56, 1, 0\ns_cmp_ge_u32 s61, {rv[3]}\ns_addc_u32 s56, s56, 0")
            if xb: A("s_cmp_eq_u32 s57, 2\ns_addc_u32 s56, s56, 0\ns_cmp_eq_u32 s57, 1\ns_subb_u32 s56, s56, 0\ns_max_i32 s56, s56, 0")
            A("s_cmp_lt_u32 s56, 2\ns_cselect_b32 s73, 1, 0\ns_xor_b32 s56, s56, s73")
        A(f"v_mov_b32 v37, s56\nds_write_b32 v2, v37 offset:{C_T if tail else C_D}\ns_mov_b64 exec, -1")

    def rank_setup():
        A(f"""s_and_b32 s73, s2, 7
        s_lshl_b32 s54, s73, 8
        s_add_u32 s54, s54, {PG}
        s_lshr_b32 s55, s2, 3
        s_lshl_b32 s55, s55, 2
        s_add_u32 s55, s55, s54
        s_mov_b32 s58, {PG + 2048}
        s_lshl_b32 s59, s73, 2
        s_add_u32 s59, s59, s58
        v_lshlrev_b32 v36, 2, v0
        s_lshl_b32 s48, s84, 8""")

    def rank():
        if rk: rank_at(rk[0], True)

    def rank_v(lo, hi):
        if rv:
            for c in rv[0]:
                if lo <= c < hi: rank_at(c, False)

    def epoch():
        l = A.lab("noep")
        A(f"""s_cmp_lg_u32 s2, 0
        s_cbranch_scc1 {l}
        s_mov_b64 exec, 1
        v_mov_b32 v16, s84
        s_mov_b32 s45, {EP}
        buffer_store_dword v16, v4, s[{WS}:{WS+3}], s45 offen {eppol}
        {l}:""")
    if lonly:
        A("s_waitcnt lgkmcnt(0)"); tags_setup(); rank_setup(); rank_v(0, 99); rank(); epoch(); stamp(8, "P"); stamp_flush("P"); A("s_endpgm")
    ex(-1, 0)
    spin(2, C_A, 1, 3)
    tags_setup()
    A("v_mov_b32 v25, s84\nv_mov_b32 v27, s84")
    spin(2, C_A, 4, 3, also=[f"ds_read_b64 v[{16+2*k}:{17+2*k}], v13 offset:{k*256}" for k in range(4)])
    A(f"""v_pk_add_f32 v[16:17], v[16:17], v[18:19]
    v_pk_add_f32 v[20:21], v[20:21], v[22:23]
    v_add_f32 v24, v16, v20
    v_add_f32 v26, v17, v21
    buffer_store_dwordx4 v[24:27], v6, s[{WS}:{WS+3}], s47 offen offset:{QP} {pol('qs')}
    s_mov_b64 exec, -1
    buffer_load_ushort v9, v8, s[{XS}:{XS+3}], s44 offen""")
    stamp(1, "P")

    def sum4(n=4):
        for h in range(2):
            A(f"v_pk_add_f32 v[{16+2*h}:{17+2*h}], v[{16+2*h}:{17+2*h}], v[{20+2*h}:{21+2*h}]\nv_pk_add_f32 v[{24+2*h}:{25+2*h}], v[{24+2*h}:{25+2*h}], v[{28+2*h}:{29+2*h}]")
        for h in range(2):
            A(f"v_pk_add_f32 v[{16+2*h}:{17+2*h}], v[{16+2*h}:{17+2*h}], v[{24+2*h}:{25+2*h}]")
    spin(2, C_H, 4, 3)
    for k in range(4): A(f"ds_read_b128 v[{16+4*k}:{19+4*k}], v11 offset:{k*896}")
    A("s_waitcnt lgkmcnt(0)")
    sum4()
    for r in range(4): A(f"v_add_u32 v{16+r}, {(TAGM+1)//2}, v{16+r}")
    tag(16, 5)
    A(f"buffer_store_dwordx4 v[16:19], v7, s[{WS}:{WS+3}], s48 offen {pol('hs')}")
    stamp(2, "P")
    A(f"s_lshl_b32 s47, s2, 9\ns_lshl_b32 s49, s2, 6\ns_add_u32 s49, s49, {QF}")
    ex(-1, 0)
    if tq1: spin(2, F_LAND, tq1, 3)
    if "p" not in skip: poll([f"buffer_load_dwordx4 v[16:19], v1, s[{WS}:{WS+3}], s47 offen offset:{QP} {pol('q')}"], range(16, 20), 20, words=True, slp=qsl)
    for r in (16, 18): A(f"v_add_f32_dpp v{r}, v{r}, v{r} row_ror:8 {DPP}")
    A("""v_mov_b32 v17, v16
    v_mov_b32 v19, v18
    v_permlane16_swap_b32 v16, v17
    v_permlane16_swap_b32 v18, v19
    v_add_f32 v16, v16, v17
    v_add_f32 v18, v18, v19
    v_cvt_pk_bf16_f32 v16, v16, v18
    v_mov_b32 v17, s84""")
    ex(0xff, 0)
    A(f"buffer_store_dwordx2 v[16:17], v15, s[{WS}:{WS+3}], s49 offen {pol('qfs')}")
    ex(-1)
    stamp(9, "P")
    A(f"s_lshl_b32 s47, s64, 12\ns_add_u32 s47, s47, {QF}\nv_add_u32 v13, {MISC + QBUF}, v15")
    rank_setup()
    rank_v(0, tq)
    spin(2, F_LAND, tq, 3)
    if "q" not in skip: poll([f"buffer_load_dwordx4 v[{16+4*k}:{19+4*k}], v1, s[{WS}:{WS+3}], s47 offen offset:{1024*k} sc1" for k in range(4)],
                             range(16, 32), 32, words=True, slp=qsl)
    for k in range(4): A(f"v_mov_b32 v{17+4*k}, v{18+4*k}\nds_write_b64 v13, v[{16+4*k}:{17+4*k}] offset:{512*k}")
    A(f"ds_write_b32 v2, v10 offset:{C_Q}")
    stamp(13, "P")
    rank_v(tq, th1)
    A(f"""s_lshl_b32 s45, s66, 2
    s_add_u32 s46, s45, s67
    s_lshl_b32 s45, s45, 7
    s_add_u32 s45, s45, {HF}
    s_cmp_ge_u32 s67, 4
    s_cbranch_scc1 L_p_noh
    s_lshl_b32 s47, s46, 11
    s_add_u32 s47, s47, {HP}
    s_lshl_b32 s46, s46, 7
    s_add_u32 s46, s46, {HF}""")
    spin(2, F_LAND, th1, 3)
    if "h" not in skip:
        poll([f"buffer_load_dwordx4 v[16:19], v1, s[{WS}:{WS+3}], s47 offen {pol('h')}",
              f"buffer_load_dwordx4 v[20:23], v1, s[{WS}:{WS+3}], s47 offen offset:1024 {pol('h')}"], range(16, 24), 24, slp=16)
    R = range(16, 20); T = range(20, 24)
    for r in R: A(f"v_permlane32_swap_b32 v{r}, v{r+4}")
    for r in R: A(f"v_add_f32 v{r}, v{r}, v{r+4}")
    for r in R: A(f"v_add_f32_dpp v{r}, v{r}, v{r} row_ror:8 {DPP}")
    for r in R: A(f"v_mov_b32 v{r+4}, v{r}")
    for r in R: A(f"v_permlane16_swap_b32 v{r}, v{r+4}")
    for r in R: A(f"v_add_f32 v{r}, v{r}, v{r+4}")
    rnd(*R)
    for r in R: A(f"v_mov_b32 v{r+4}, v{r}")
    for r in R: A(f"v_permlane32_swap_b32 v{r}, v{r+4}")
    silu(R, range(24, 28)); rnd(*R)
    for r in R: A(f"v_mul_f32 v{r}, v{r}, v{r+4}")
    A(f"""v_cvt_pk_bf16_f32 v16, v16, v17
    v_cvt_pk_bf16_f32 v18, v18, v19
    v_cmp_eq_u32 vcc, 7, v12
    v_mov_b32 v17, s84
    v_mov_b32 v19, s84
    v_cndmask_b32 v16, v16, v4, vcc
    v_cndmask_b32 v18, v18, v4, vcc
    v_and_b32 v13, 3, v0
    v_lshlrev_b32 v13, 5, v13
    v_lshrrev_b32 v11, 2, v12
    v_lshl_add_u32 v13, v11, 4, v13""")
    ex(0xff, 0)
    A(f"buffer_store_dwordx4 v[16:19], v13, s[{WS}:{WS+3}], s46 offen {pol('hfs')}\nL_p_noh:")
    rank_v(th1, th2)
    ex(-1, 0)
    stamp(3, "P")
    A(f"v_add_u32 v13, {MISC + HBUF}, v15")
    spin(2, F_LAND, th2, 3)
    if "h" not in skip: poll([f"buffer_load_dwordx4 v[16:19], v1, s[{WS}:{WS+3}], s45 offen {pol('hf')}"], range(16, 20), 20, words=True, slp=16)
    ex(-1, 0)
    A(f"v_mov_b32 v17, v18\nds_write_b64 v13, v[16:17]\nds_write_b32 v2, v10 offset:{C_HR}")
    ex(-1)
    stamp(4, "P")
    if ml2: A(f"s_lshl_b32 s47, s64, 13\ns_and_b32 s73, s2, 7\ns_lshl_b32 s73, s73, 4\ns_add_u32 s47, s47, s73\nv_lshlrev_b32 v11, 7, v0")
    else: A("s_lshl_b32 s47, s66, 10\nv_mov_b32 v11, v1")
    A(f"""s_add_u32 s47, s47, {ML}
    s_mov_b32 s50, {LOG2E:#x}
    v_lshl_add_u32 v13, v12, 3, v14
    v_lshlrev_b32 v13, 2, v13
    v_add_u32 v13, {MISC + WBUF}, v13
    s_add_u32 s46, s51, {SI}
    s_add_u32 s45, s51, {FI}
    {'v_lshlrev_b32 v6, 4, v12' if fin32 else 'v_lshlrev_b32 v6, 12, v0'}
    {'v_lshl_or_b32 v6, v14, 12, v6' if fin32 else ''}
    v_add_u32 v7, {MISC + FRED}, v1
    s_lshl_b32 s52, s66, 3
    s_add_u32 s52, s52, s67
    s_lshl_b32 s52, s52, 9
    s_add_u32 s53, s52, {SI}
    s_add_u32 s52, s52, {FI}
    v_lshlrev_b32 v9, 16, v9""")
    rank_v(th2, 99)
    if rfirst: rank()
    spin(2, F_LAND, tml, 3)
    if touch: A(f"buffer_load_ushort v15, v8, s[{OUT}:{OUT+3}], s44 offen")
    if "m" not in skip: poll([f"buffer_load_dwordx4 v[16:19], v11, s[{WS}:{WS+3}], s47 offen {pol('m')}"], range(16, 20), 20, slp=12, cnt=("P", 30))
    A("v_mov_b32 v18, v16")
    allred("v_max_f32", (18,), (19,))
    A("v_sub_f32 v16, v16, v18\nv_mul_f32 v16, s50, v16\nv_exp_f32 v16, v16\nv_mul_f32 v17, v17, v16")
    allred("v_add_f32", (17,), (19,))
    A(f"""v_rcp_f32 v18, v17
    v_fma_f32 v19, -v17, v18, 1.0
    v_fmac_f32 v18, v19, v18
    v_mul_f32 v16, v16, v18
    ds_write_b32 v13, v16
    s_mov_b64 exec, 1
    ds_write_b32 v2, v10 offset:{C_W}
    s_mov_b64 exec, -1""")
    stamp(11, "P")
    if not rfirst: rank()

    if gate:
        A(f"s_add_u32 s56, s48, {31}\nv_mov_b32 v38, s56\ns_mov_b64 exec, 1")
        spin(2, gflag, 4 if gflag != F_LAND else 19, 3)
        A(f"buffer_store_dword v38, v4, s[{WS}:{WS+3}], s55 offen")

    def publish(red, cnt, so):
        ex(-1, 0)
        spin(2, cnt, 1, 3)
        spin(2, cnt, 4, 3, also=[f"ds_read_b128 v[{16+4*j}:{19+4*j}], v7 offset:{red - FRED + 512*j}" for j in range(4)])
        sum4(); tag(16, 5)
        A(f"buffer_store_dwordx4 v[16:19], v1, s[{WS}:{WS+3}], {so} offen {pol('fs' if red == FRED else 'ss')}")

    def inbox32(so, k):
        ex(-1)
        A(f"s_add_u32 s57, {so}, 32768\ns_add_u32 s58, {so}, 65536\ns_add_u32 s59, {so}, 98304")
        poll([f"buffer_load_dwordx4 v[{32+4*i}:{35+4*i}], v6, s[{WS}:{WS+3}], {(so, 's57', 's58', 's59')[i]} offen sc1" for i in range(4)],
             range(32, 48), 24, cnt=("P", k))
        for h in range(2):
            A(f"v_pk_add_f32 v[{32+2*h}:{33+2*h}], v[{32+2*h}:{33+2*h}], v[{36+2*h}:{37+2*h}]\nv_pk_add_f32 v[{40+2*h}:{41+2*h}], v[{40+2*h}:{41+2*h}], v[{44+2*h}:{45+2*h}]")
        for h in range(2):
            A(f"v_pk_add_f32 v[{32+2*h}:{33+2*h}], v[{32+2*h}:{33+2*h}], v[{40+2*h}:{41+2*h}]")
        A(f"""v_permlane32_swap_b32 v32, v33
        v_permlane32_swap_b32 v34, v35
        v_add_f32 v32, v32, v33
        v_add_f32 v34, v34, v35
        v_permlane16_swap_b32 v32, v34
        v_add_f32 v32, v32, v34
        v_add_f32_dpp v32, v32, v32 row_ror:8 {DPP}""")
        rnd(32)

    def inbox(so, k):
        if fin32: return inbox32(so, k)
        ex(-1)
        for r in range(4): A(f"v_mov_b32 v{32+r}, 0")
        A("s_mov_b32 exec_hi, 0")
        if "I" not in skip: poll([f"buffer_load_dwordx4 v[32:35], v6, s[{WS}:{WS+3}], {so} offen {pol('f' if k == 31 else 's')}"], range(32, 36), 24, cnt=("P", k))
        else: ex(-1)
        A("""v_permlane32_swap_b32 v32, v33
        v_permlane32_swap_b32 v34, v35
        v_add_f32 v32, v32, v33
        v_add_f32 v34, v34, v35
        v_permlane16_swap_b32 v32, v34
        v_add_f32 v32, v32, v34""")
        for m in (8, 4, 2, 1): A(f"v_add_f32_dpp v32, v32, v32 row_ror:{m} {DPP}")
        rnd(32)
    publish(FRED, C_PF, "s52")
    if rk and clean:
        A(f"s_mov_b64 exec, 1\nbuffer_store_dword v38, v4, s[{WS}:{WS+3}], s55 offen sc1")
    stamp(12, "P")
    if gate:
        A(f"""L_p_gate:
        buffer_load_dword v37, v36, s[{WS}:{WS+3}], s54 offen sc1
        ds_read_b32 v3, v2 offset:{F_LAND}
        s_waitcnt vmcnt(0) lgkmcnt(0)
        v_cmp_eq_u32 vcc, s56, v37
        v_readfirstlane_b32 s73, v3
        s_bcnt1_i32_b32 s61, vcc_lo
        s_cmp_ge_u32 s61, {gthr}
        s_cbranch_scc1 L_p_gated
        s_sleep {gsl}
        s_sub_u32 {BUD}, {BUD}, 16
        s_cbranch_scc1 L_p_gt
        s_cmp_lt_u32 s73, 21
        s_cbranch_scc1 L_p_gate
        s_branch L_p_gated
        L_p_gt:
        s_mov_b32 {BUD}, 0
        L_p_gated:
        ds_write_b32 v2, v10 offset:{C_G}""")
    publish(SRED, C_PS, "s53")
    stamp(5, "P")
    if fin32: A("s_cmp_lg_u32 s67, 0\ns_cbranch_scc1 L_p_skip")
    inbox("s45", 31)
    silu((32,), (24,)); rnd(32)
    A("v_mov_b32 v14, v32")
    stamp(6, "P")
    stamp(7, "P")
    inbox("s46", 32)
    A("v_mul_f32 v32, v32, v14"); rnd(32)
    A("v_add_f32 v32, v32, v9\nv_cvt_pk_bf16_f32 v32, v32, v32")
    ex(0x00ff00ff if fin32 else N0)
    A(f"buffer_store_short v32, v8, s[{OUT}:{OUT+3}], s44 offen {outpol}")
    epoch()
    if fin32: A("L_p_skip:")
    if floor:
        A(f"L_floor:\ns_memrealtime s[62:63]\ns_waitcnt lgkmcnt(0)\ns_sub_u32 s62, s62, s90\ns_cmp_lt_u32 s62, {floor}\ns_cbranch_scc1 L_floor")
    stamp(8, "P")
    stamp_flush("P")
    A("L_end:\ns_endpgm")

    bad = A.verify_edges()
    assert not bad, bad
    nv = 168
    txt = HEAD + f"; @launch grid=(256,1,1) block=(576,1,1) lds={LDS_BYTES}\n" + NOTES
    txt += f'.amdgcn_target "amdgcn-amd-amdhsa--gfx950"\n.text\n.globl {KN}\n.p2align 8\n.type {KN},@function\n'
    txt += A.text()
    txt += f""".section .rodata,"a"
.p2align 6
.amdhsa_kernel {KN}
  .amdhsa_next_free_vgpr {nv}
  .amdhsa_next_free_sgpr 96
  .amdhsa_accum_offset {nv}
  .amdhsa_group_segment_fixed_size 0
  .amdhsa_kernarg_size 96
  .amdhsa_user_sgpr_count 2
  .amdhsa_user_sgpr_kernarg_segment_ptr 1
  .amdhsa_system_sgpr_workgroup_id_x 1
  .amdhsa_float_denorm_mode_32 3
.end_amdhsa_kernel
"""
    return txt


if __name__ == "__main__":
    kw = eval("dict(%s)" % (sys.argv[2] if len(sys.argv) > 2 else ""))
    open(sys.argv[1], "w").write(gen(**kw))
```

```python
import os
import sys
sys.path.insert(0, "work")
from asmlib import Asm

KN = "recurrent_scan__gqa_block_cached__swiglu_ffn__decode_kernel"
REF = "recurrent_scan__gqa_block_cached__swiglu_ffn__decode.s.ref"
HEAD = open(REF).read().split("; Override launch")[0] if os.path.exists(REF) else ""

QP, HP, ML, EP, PG, HF, QF, FI, SI, OP = 0x0, 0x20000, 0x60000, 0x68000, 0x69000, 0x6C000, 0x70000, 0x80000, 0xA0000, 0x100000
TAGM = 0x3FF
STAMP_OFF = 128 << 20
W8 = HP2 = H128 = ML2 = True
MISC = 131072
F_LAND, F_CONS = 0, 1024
C_A, C_H, C_Q, C_ML, C_HR, C_W, C_T, C_O, C_PF, C_PS, C_D = [2048 + 4 * i for i in range(11)]
QRED, QBUF, MLX, HBUF, OBUF, WBUF, HRED, SBUF = 3072, 4096, 6144, 6400, 6656, 6912, 8192, 12288
FRED, SRED = 8192, 10240
LDS_BYTES = MISC + SBUF + 16384
LOG2E, SCALE, EPS = 0x3FB8AA3B, 0x3DB504F3, 0x3727C5AC

NOTES = """; ---------------------------------------------------------------------------------------------
; ---------------------------------------------------------------------------------------------
"""


def gen(D=6, D0=8, Dend=12, rk=(16, 24, 5), rv=((6, 8, 10, 12, 14), 12, 5, 26, 7), tq1=4, tq=7, th1=9, th2=13, tml=17,
        nt="q h qs hs qfs hfs ms", budget=1 << 23, stamps=False, floor=0, lonly=0, jitter=0, skip=""):
    A = Asm()
    pol = lambda k: "sc1 nt" if k in nt.split() else "sc1"
    BUD = "s60"
    VS = {"L": 20, "C": 167, "P": 60}

    def stamp(k, role):
        if stamps == "T" and (role, k) not in (("L", 4), ("L", 6), ("C", 10), ("C", 14), ("C", 15), ("P", 5), ("P", 8)): return
        if stamps in (True, "T") or (stamps and role == "P" and k == 8) or (stamps == "L" and role == "L"):
            A(f"s_memrealtime s[62:63]\ns_waitcnt lgkmcnt(0)\nv_writelane_b32 v{VS[role]}, s62, {k}")

    def stamp_flush(role):
        if stamps in (True, "T") or (stamps and role == "P") or (stamps == "L" and role == "L"):
            if role == "L": srd(28, 26, 1 << 28)
            if role == "P": A("v_writelane_b32 v60, s90, 10")
            A(f"""s_mov_b64 exec, -1
            s_mul_i32 s62, s2, 9
            s_add_u32 s62, s62, s3
            s_lshl_b32 s62, s62, 8
            s_add_u32 s62, s62, {STAMP_OFF}
            v_lshlrev_b32 v0, 2, v0
            buffer_store_dword v{VS[role]}, v0, s[28:31], s62 offen""")

    def srd(base, ptr, size):
        A(f"s_mov_b32 s{base}, s{ptr}\ns_mov_b32 s{base+1}, s{ptr+1}\ns_mov_b32 s{base+2}, {size}\ns_mov_b32 s{base+3}, 0x20000")

    def ex(lo, hi=None):
        hi = lo if hi is None else hi
        if lo == -1 and hi == -1: A("s_mov_b64 exec, -1")
        elif hi == 0 and 0 < lo <= 64: A(f"s_mov_b64 exec, {lo}")
        else: A(f"s_mov_b32 exec_lo, {lo & 0xffffffff:#x}\ns_mov_b32 exec_hi, {hi & 0xffffffff:#x}")
    N0 = 0x00010001

    site = [0]
    def jit():
        if not jitter: return
        site[0] += 1
        l0, l1 = A.lab("jt"), A.lab("jt")
        A(f"""s_memtime s[86:87]
        s_waitcnt lgkmcnt(0)
        s_mul_i32 s86, s86, 0x9e3779b1
        s_lshr_b32 s87, s86, 29
        s_cmp_lg_u32 s87, 0
        s_cbranch_scc1 {l1}
        s_bfe_u32 s86, s86, {(jitter << 16) | 12:#x}
        {l0}:
        s_sleep 4
        s_sub_u32 s86, s86, 1
        s_cbranch_scc0 {l0}
        {l1}:""")

    def spin(vaddr, off, needv, vt, also=()):
        jit()
        l0, l1 = A.lab("sp"), A.lab("sp")
        A(f"{l0}:\nds_read_b32 v{vt}, v{vaddr} offset:{off}")
        for t in also: A(t)
        A(f"""s_waitcnt lgkmcnt(0)
        v_readfirstlane_b32 s61, v{vt}
        s_cmp_ge_i32 s61, {needv}
        s_cbranch_scc1 {l1}
        s_sub_u32 {BUD}, {BUD}, 1
        s_cbranch_scc0 {l0}
        s_mov_b32 {BUD}, 0
        {l1}:""")
        jit()

    def poll(loads, regs, vt, issued=False, slp=0, words=False, cnt=None):
        jit()
        l0, l1, l2 = A.lab("pl"), A.lab("pl"), A.lab("pl")
        if cnt and stamps in (True, 'T'): A("s_mov_b32 s85, 0")
        if issued: A(f"s_branch {l2}")
        A(f"{l0}:")
        for t in loads: A(t)
        A(f"{l2}:\ns_waitcnt vmcnt(0)")
        if cnt and stamps in (True, 'T'): A("s_add_u32 s85, s85, 1")
        rs = list(regs)[1::2] if words else list(regs)
        for k, r in enumerate(rs):
            A(f"v_xor_b32 v{r}, s{84 if words else 80 + (k & 3)}, v{r}")
        if len(rs) == 2: A(f"v_or_b32 v{vt}, v{rs[0]}, v{rs[1]}")
        else: A(f"v_or3_b32 v{vt}, v{rs[0]}, v{rs[1]}, v{rs[2]}")
        k = 3
        while k < len(rs):
            if k + 1 < len(rs): A(f"v_or3_b32 v{vt}, v{vt}, v{rs[k]}, v{rs[k+1]}"); k += 2
            else: A(f"v_or_b32 v{vt}, v{vt}, v{rs[k]}"); k += 1
        if not words: A(f"v_and_b32 v{vt}, {TAGM:#x}, v{vt}")
        A(f"v_cmp_ne_u32 vcc, 0, v{vt}\ns_cbranch_vccz {l1}\ns_mov_b64 exec, vcc")
        if slp: A(f"s_sleep {slp}")
        A(f"s_sub_u32 {BUD}, {BUD}, 16\ns_cbranch_scc0 {l0}\ns_mov_b32 {BUD}, 0\n{l1}:\ns_mov_b64 exec, -1")
        if cnt and stamps in (True, 'T'): A(f"v_writelane_b32 v{VS[cnt[0]]}, s85, {cnt[1]}")

    def tag(r0, vm):
        jit()
        for k in range(4): A(f"v_bfi_b32 v{r0+k}, v{vm}, s{80+k}, v{r0+k}")

    def tags_setup():
        A("; launch tag = previous tag * odd + odd: differs from it in bit 0, unrelated to any regular fill of d_ws")
        A(f"s_mul_i32 s84, s79, 0x9e3779b1\ns_add_u32 s84, s84, 0x7f4a7c15\ns_and_b32 s80, s84, {TAGM:#x}")
        for k in range(1, 4):
            A(f"s_add_u32 s{80+k}, s80, {256*k}\ns_and_b32 s{80+k}, s{80+k}, {TAGM:#x}")

    DPP = "row_mask:0xf bank_mask:0xf"

    def xrow(op, vs, ts):
        for sw in ("v_permlane16_swap_b32", "v_permlane32_swap_b32"):
            for v, t in zip(vs, ts): A(f"v_mov_b32 v{t}, v{v}")
            for v, t in zip(vs, ts): A(f"{sw} v{v}, v{t}")
            for v, t in zip(vs, ts): A(f"{op} v{v}, v{v}, v{t}")

    def allred(op, vs, ts):
        for m in ("quad_perm:[1,0,3,2]", "quad_perm:[2,3,0,1]", "row_half_mirror", "row_mirror"):
            for v in vs: A(f"{op}_dpp v{v}, v{v}, v{v} {m} {DPP}")
        xrow(op, vs, ts)

    def rnd(*vs):
        for v in vs: A(f"v_cvt_pk_bf16_f32 v{v}, v{v}, v{v}")
        for v in vs: A(f"v_and_b32 v{v}, 0xffff0000, v{v}")

    def silu(vs, ts):
        for v, t in zip(vs, ts): A(f"v_mul_f32 v{t}, 0xbfb8aa3b, v{v}")
        for v, t in zip(vs, ts): A(f"v_exp_f32 v{t}, v{t}")
        for v, t in zip(vs, ts): A(f"v_add_f32 v{t}, 1.0, v{t}")
        for v, t in zip(vs, ts): A(f"v_rcp_f32 v{t}, v{t}")
        for v, t in zip(vs, ts): A(f"v_mul_f32 v{v}, v{v}, v{t}")

    def unpack(dst, src, n):
        for i in range(n):
            A(f"v_lshlrev_b32 v{dst+2*i}, 16, v{src+i}\nv_and_b32 v{dst+2*i+1}, 0xffff0000, v{src+i}")

    def mfma(d, a, b, acc):
        A(f"v_mfma_f32_16x16x32_bf16 v[{d}:{d+3}], v[{a}:{a+3}], v[{b}:{b+3}], {'v[%d:%d]' % (d, d+3) if acc else '0'}")

    WS, XS, OUT = 28, 32, 40

    A(f"{KN}:")
    if stamps or floor: A("s_memrealtime s[90:91]")
    A(f"""s_cmp_ge_u32 s2, 256
    s_cbranch_scc1 L_end
    s_load_dwordx16 s[4:19], s[0:1], 0
    s_load_dwordx8 s[20:27], s[0:1], 64
    v_lshlrev_b32 v2, 2, v0
    v_add_u32 v2, {MISC}, v2
    v_mov_b32 v3, 0
    ds_write_b32 v2, v3
    v_lshrrev_b32 v1, 6, v0
    v_and_b32 v0, 63, v0
    v_readfirstlane_b32 s3, v1
    s_mov_b32 {BUD}, {budget}
    s_lshr_b32 s64, s2, 6
    s_and_b32 s65, s2, 63
    s_lshr_b32 s68, s65, 3
    s_and_b32 s72, s2, 1
    s_lshl_b32 s73, s72, 3
    s_or_b32 s68, s68, s73
    s_bfe_u32 s69, s2, 0x20001
    s_lshr_b32 s71, s2, 7
    s_lshl_b32 s71, s71, 2
    s_or_b32 s71, s71, s69
    s_and_b32 s76, s3, 3
    s_lshl_b32 s40, s69, 2
    s_add_u32 s40, s40, s76
    v_lshlrev_b32 v107, 4, v0
    v_and_b32 v106, 0x300, v107
    v_lshrrev_b32 v106, 4, v106
    s_waitcnt lgkmcnt(0)
    s_cmp_lt_u32 s3, 4
    s_cbranch_scc1 L_L""")
    A(f"s_load_dword s79, s[26:27], {EP:#x}")
    srd(XS, 4, 2048)
    A(f"""s_cmp_eq_u32 s3, 8
    s_cbranch_scc1 L_P
    s_lshl_b32 s41, s71, 2
    s_add_u32 s41, s41, s76
    s_lshl_b32 s41, s41, 6
    s_lshl_b32 s40, s40, 7""")
    if not lonly:
        A(f"""buffer_load_dwordx4 v[64:67], v107, s[{XS}:{XS+3}], 0 offen
        buffer_load_dwordx4 v[68:71], v107, s[{XS}:{XS+3}], 0 offen offset:1024
        buffer_load_dwordx4 v[128:131], v106, s[{XS}:{XS+3}], s40 offen
        buffer_load_dwordx4 v[132:135], v106, s[{XS}:{XS+3}], s40 offen offset:64
        buffer_load_dwordx4 v[136:139], v106, s[{XS}:{XS+3}], s41 offen""")
    A("s_barrier\ns_branch L_C")

    def more_idx():
        A("""s_lshl_b32 s66, s64, 3
        s_and_b32 s73, s2, 7
        s_or_b32 s66, s66, s73
        s_bfe_u32 s67, s2, 0x30003
        s_bfe_u32 s70, s2, 0x40003""")

    SWQ, SGU, SK, SDN, SWO = 28, 32, 36, 44, 48
    A("L_L:\ns_setprio 3")
    stamp(0, "L")
    A("""v_lshrrev_b32 v2, 3, v0
    v_lshlrev_b32 v2, 13, v2
    v_and_b32 v3, 7, v0
    v_lshl_or_b32 v2, v3, 4, v2
    s_lshl_b32 s52, s40, 19
    s_lshl_b32 s73, s64, 11
    s_add_u32 s52, s52, s73
    s_lshl_b32 s73, s68, 7
    s_add_u32 s52, s52, s73
    s_lshl_b32 s57, s3, 15""")
    srd(SWQ, 10, 1 << 23)
    st = dict(issued=0, notified=0)
    ends = []

    def notify(val):
        jit()
        A(f"v_mov_b32 v9, {val}\nds_write_b32 v8, v9 offset:{F_LAND}")

    def pace(Dt):
        P = st["issued"]
        if P >= Dt:
            A(f"s_waitcnt vmcnt({Dt-1})")
            while st["notified"] < len(ends) and ends[st["notified"]][0] <= P - Dt:
                val = ends[st["notified"]][1]
                notify(val); st["notified"] += 1
                if val >= 19: stamp(min(6, 4 + val - 19), "L")

    def setup_gu():
        more_idx()
        A(f"""s_cmp_eq_u32 s72, 0
        s_cselect_b32 s{SGU}, s16, s18
        s_cselect_b32 s{SGU+1}, s17, s19
        s_mov_b32 s{SGU+2}, 7340032
        s_mov_b32 s{SGU+3}, 0x20000
        s_lshl_b32 s53, s71, 2
        s_add_u32 s53, s53, s3
        s_mul_i32 s53, s53, {32*7168}
        s_mul_i32 s73, s70, 448
        s_add_u32 s53, s53, s73
        v_lshlrev_b32 v3, 4, v0
        v_add_u32 v4, 6720, v3
        v_cmp_gt_u32 vcc, 28, v0
        v_cndmask_b32 v3, v4, v3, vcc
        s_lshl_b32 s73, s3, 8
        s_add_u32 s73, s73, {MISC}
        v_lshl_add_u32 v8, v0, 2, s73""")

    def setup_kv():
        srd(SK, 6, 1 << 26); srd(SDN, 20, 7340032); srd(SWO, 12, 1 << 23)
        A("s_lshl_b32 s54, s65, 2\ns_add_u32 s54, s54, s3")
        A(f"""s_lshl_b32 s54, s54, 13
        s_lshl_b32 s73, s64, 24
        s_add_u32 s54, s54, s73
        s_lshl_b32 s56, s66, 2
        s_add_u32 s56, s56, s3
        s_lshl_b32 s73, s67, 8
        s_mul_i32 s55, s56, {28*2048}
        s_add_u32 s55, s55, s73
        s_lshl_b32 s56, s56, 16
        s_add_u32 s56, s56, s73
        v_lshrrev_b32 v10, 4, v0
        v_and_b32 v11, 15, v0
        v_lshlrev_b32 v12, 1, v10
        v_xor_b32 v12, v11, v12
        v_xor_b32 v13, 8, v12
        v_lshlrev_b32 v12, 4, v12
        v_lshlrev_b32 v13, 4, v13
        v_lshl_or_b32 v4, v10, 8, v12
        v_lshl_or_b32 v5, v10, 8, v13
        v_lshl_or_b32 v6, v10, 11, v12
        v_lshl_or_b32 v7, v10, 11, v13
        v_mov_b32 v11, {MISC}""")

    for i in range(8):
        pace(D0)
        A(f"s_add_u32 m0, s57, {i*1024}\nbuffer_load_dwordx4 v2, s[{SWQ}:{SWQ+3}], s52 offen nt lds\ns_add_u32 s52, s52, 65536")
        st["issued"] += 1
        if i == D0 - 1:
            A("s_barrier")
            setup_gu(); stamp(1, "L")
        if i == 7: setup_kv()
    ends.append((7, 1))
    A("s_lshr_b64 exec, -1, 8")
    for t in (1, 2):
        for i in range(8):
            pace(D)
            A(f"s_add_u32 m0, s57, {t*8192 + i*896}\nbuffer_load_dwordx4 v3, s[{SGU}:{SGU+3}], s53 offen nt lds\ns_add_u32 s53, s53, 14336")
            st["issued"] += 1
        ends.append((st["issued"] - 1, t + 1))
    assert st["notified"] == 2 and D <= 8
    A("s_mov_b64 exec, -1")
    stamp(2, "L")
    A(f"s_mov_b32 s58, 3\ns_add_u32 s59, s57, {3*8192}\nds_read_b32 v10, v8 offset:{F_CONS}")
    if rv: A(f"ds_read_b32 v12, v11 offset:{C_D}")
    A("L_lloop:\ns_waitcnt lgkmcnt(0)")
    if rv: A("v_readfirstlane_b32 s77, v12")
    if stamps in (True, "L"): A("s_add_u32 m0, s58, 8\ns_nop 0\nv_writelane_b32 v20, s62, m0")
    A("v_readfirstlane_b32 s61, v10\ns_sub_u32 s75, s58, 3\ns_cmp_ge_i32 s61, s75\ns_cbranch_scc1 L_lok")
    spin(8, F_CONS, "s75", 10)
    A("L_lok:\ns_mov_b32 m0, s59\ns_add_u32 s74, s54, 4096")
    levels = [D, rv[2], rv[4]] if rv else [D]
    for k in range(1, len(levels)): A(f"s_cmp_eq_u32 s77, {k}\ns_cbranch_scc1 L_lb{k}")
    for k, Dk in enumerate(levels):
        A(f"L_lb{k}:")
        for i in range(8):
            A(f"s_waitcnt vmcnt({Dk-1})")
            if i == Dk - 1: notify("s58")
            if i == 4: A("s_add_u32 m0, s59, 4096")
            A(f"buffer_load_dwordx4 v{4+(i&1)}, s[{SK}:{SK+3}], {'s54' if i < 4 else 's74'} offen offset:{(i&3)*1024} nt lds")
        if k < len(levels) - 1: A("s_branch L_lnext")
    A("L_lnext:")
    if rv: A(f"ds_read_b32 v12, v11 offset:{C_D}")
    if stamps in (True, "L"): A("s_memrealtime s[62:63]")
    A(f"""ds_read_b32 v10, v8 offset:{F_CONS}
    s_add_u32 s58, s58, 1
    s_and_b32 s59, s58, 3
    s_lshl_b32 s59, s59, 13
    s_add_u32 s59, s59, s57
    s_cmp_eq_u32 s58, 11
    s_cselect_b32 s{SK}, s8, s{SK}
    s_cselect_b32 s{SK+1}, s9, s{SK+1}
""")
    if True:
        A(f"s_cselect_b32 s73, {16 << 20}, 0\ns_sub_u32 s54, s54, s73\ns_add_u32 s54, s54, {2 << 20}")
    A(f"""
    s_cmp_lt_u32 s58, 19
    s_cbranch_scc1 L_lloop""")
    stamp(3, "L")

    def tail_tiles(Dt):
        st["issued"] = 1000; st["notified"] = 0
        ends[:] = [(999, 19)]
        for t, n, sr, so in ((19, 7, SDN, 55), (20, 8, SWO, 56)):
            ok = A.lab("ok")
            A(f"s_waitcnt lgkmcnt(0)\nv_readfirstlane_b32 s61, v10\ns_cmp_ge_i32 s61, {t-3}\ns_cbranch_scc1 {ok}")
            spin(8, F_CONS, t - 3, 10)
            A(f"{ok}:")
            for i in range(n):
                pace(Dt)
                A(f"s_add_u32 m0, s57, {(t&3)*8192 + i*1024}\nbuffer_load_dwordx4 v{6+(i&1)}, s[{sr}:{sr+3}], s{so} offen nt lds\ns_add_u32 s{so}, s{so}, 8192")
                st["issued"] += 1
            ends.append((st["issued"] - 1, t + 1))
            if t == 19: A(f"ds_read_b32 v10, v8 offset:{F_CONS}")
        while st["notified"] < len(ends):
            e, val = ends[st["notified"]]
            A(f"s_waitcnt vmcnt({st['issued'] - 1 - e})")
            notify(val); st["notified"] += 1
            stamp(min(6, 4 + val - 19), "L")
    if rk:
        A(f"ds_read_b32 v12, v11 offset:{C_T}\ns_waitcnt lgkmcnt(0)\nv_readfirstlane_b32 s77, v12")
        for k, dk in enumerate(rk[2::2]):
            A(f"s_cmp_lg_u32 s77, {k+1}\ns_cbranch_scc1 L_lnot{k}")
            tail_tiles(dk)
            stamp_flush("L")
            A(f"s_endpgm\nL_lnot{k}:")
    tail_tiles(Dend)
    stamp_flush("L")
    A("s_endpgm")

    A("L_C:\ns_setprio 2")
    more_idx()
    srd(WS, 26, 1 << 28)
    A(f"""s_lshl_b32 s46, s76, 15
    s_lshl_b32 s73, s76, 8
    s_add_u32 s73, s73, {MISC}
    v_lshl_add_u32 v1, v0, 2, s73
    v_mov_b32 v2, {MISC}
    v_mov_b32 v124, 1
    v_mov_b32 v125, v106
    v_mov_b32 v126, v107""")
    if lonly:
        A("s_mov_b32 s49, 1\nL_xl:")
        spin(1, F_LAND, "s49", 3)
        A(f"v_mov_b32 v3, s49\nds_write_b32 v1, v3 offset:{F_CONS}\ns_add_u32 s49, s49, 1\ns_cmp_lt_u32 s49, 22\ns_cbranch_scc1 L_xl\ns_endpgm")
    stamp(0, "C")
    A(f"""v_lshrrev_b32 v104, 4, v0
    v_bfe_u32 v119, v0, 2, 2
    v_and_b32 v118, 3, v0
    v_lshlrev_b32 v118, 3, v118
    v_lshl_add_u32 v122, v104, 3, v119
    v_lshl_add_u32 v122, v122, 7, v118
    v_add_u32 v122, s46, v122
    s_lshl_b32 s73, s76, 8
    s_add_u32 s73, s73, {MISC + QRED}
    v_add_u32 v112, s73, v125""")
    stamp(17, "C")
    A("s_waitcnt vmcnt(3)")
    stamp(18, "C")
    unpack(72, 64, 8)
    A("v_readfirstlane_b32 s42, v72\nv_mov_b32 v64, s42")
    for i in range(8):
        A(f"v_pk_add_f32 v[{72+2*i}:{73+2*i}], v[{72+2*i}:{73+2*i}], v[64:65] op_sel_hi:[1,0] neg_lo:[0,1] neg_hi:[0,1]")
    A("v_pk_mul_f32 v[66:67], v[72:73], v[72:73]\nv_pk_add_f32 v[68:69], v[72:73], v[74:75]\nv_pk_fma_f32 v[66:67], v[74:75], v[74:75], v[66:67]")
    for i in range(2, 8):
        A(f"v_pk_add_f32 v[68:69], v[68:69], v[{72+2*i}:{73+2*i}]\nv_pk_fma_f32 v[66:67], v[{72+2*i}:{73+2*i}], v[{72+2*i}:{73+2*i}], v[66:67]")
    A("v_add_f32 v68, v68, v69\nv_add_f32 v66, v66, v67")
    allred("v_add_f32", (68, 66), (69, 67))
    A("""v_mul_f32 v68, 0x3a800000, v68
    v_mul_f32 v66, 0x3a800000, v66
    v_add_f32 v64, v64, v68
    v_fma_f32 v66, -v68, v68, v66
    v_max_f32 v66, 0, v66""")
    rnd(64, 66)
    A(f"v_add_f32 v66, {EPS:#x}, v66"); rnd(66)
    A("v_sqrt_f32 v66, v66"); rnd(66)
    A("v_rcp_f32 v68, v66")

    def normalise(x0, n):
        for x in range(x0, x0 + n):
            unpack(72, x, 1)
            A(f"""v_pk_add_f32 v[72:73], v[72:73], v[64:65] op_sel_hi:[1,0] neg_lo:[0,1] neg_hi:[0,1]
            v_cvt_pk_bf16_f32 v74, v72, v73""")
            unpack(72, 74, 1)
            A(f"""v_pk_mul_f32 v[74:75], v[72:73], v[68:69] op_sel_hi:[1,0]
            v_pk_fma_f32 v[72:73], v[74:75], v[66:67], v[72:73] op_sel_hi:[1,0,1] neg_lo:[1,0,0] neg_hi:[1,0,0]
            v_pk_fma_f32 v[74:75], v[72:73], v[68:69], v[74:75] op_sel_hi:[1,0,1]
            v_cvt_pk_bf16_f32 v{x}, v74, v75""")
    A("s_waitcnt vmcnt(1)")
    normalise(128, 8)
    stamp(1, "C")

    def release(val):
        A(f"v_mov_b32 v3, {val}\nds_write_b32 v1, v3 offset:{F_CONS}")

    def cnt_add(off):
        jit()
        A(f"s_mov_b64 exec, 1\nds_add_u32 v2, v124 offset:{off}\ns_mov_b64 exec, -1")

    def tr_mfma(blocks, breg, acc=False, rel=None, writes=None, lag=4, mask=None, depth=7, wait=None):
        q = []
        def rd(k):
            a, o, o2, f, _ = blocks[k]
            A(f"ds_read_b64_tr_b16 v[{f}:{f+1}], v{a} offset:{o}\nds_read_b64_tr_b16 v[{f+2}:{f+3}], v{a} offset:{o2}")
            q.extend([k, k])
        n = len(blocks); nxt = min(depth, n)
        if wait is not None: spin(1, F_LAND, wait, 3)
        for k in range(nxt): rd(k)
        masked = False
        for k in range(n + (lag if writes else 0)):
            if k < n:
                A(f"s_waitcnt lgkmcnt({len(q) - 1 - max(i for i, e in enumerate(q) if e == k)})")
                if rel is not None and k == n - 1: release(rel); q.append(None)
                b = blocks[k]
                mfma(b[4], b[3], breg(k) if callable(breg) else breg, acc(k) if callable(acc) else acc)
                if nxt < n: rd(nxt); nxt += 1
            if writes and k >= lag:
                if mask is not None and not masked:
                    assert nxt == n
                    ex(mask); masked = True
                writes(k - lag); q.append(None)

    spin(1, F_LAND, 1, 3)
    stamp(2, "C")
    tr_mfma([(122, s*4096 + 32*b, s*4096 + 32*b + 512, 76 + 4*((4*s + b) % 5), 32 + 4*b) for s in range(2) for b in range(4)],
            lambda k: 128 + 4*(k >> 2), acc=lambda k: k >= 4, rel=1, depth=4)
    ex(N0)
    for b in range(4): A(f"ds_write_b128 v112, v[{32+4*b}:{35+4*b}] offset:{b*64}")
    cnt_add(C_A)
    stamp(3, "C")
    A("s_waitcnt vmcnt(0)")
    normalise(136, 4)
    tags_setup()
    A(f"""v_mov_b32 v166, {TAGM:#x}
    v_and_b32 v123, 1, v104
    v_lshl_add_u32 v123, v123, 3, v119
    v_mul_u32_u24 v123, 448, v123
    v_lshrrev_b32 v119, 5, v0
    v_lshl_add_u32 v123, v119, 13, v123
    s_add_u32 s73, s46, 8192
    v_add3_u32 v123, v123, v118, s73
    s_mul_i32 s73, s76, 896
    s_add_u32 s73, s73, {MISC + HRED}
    v_add_u32 v122, s73, v125
    v_and_b32 v113, 15, v0
    v_and_b32 v114, 7, v0
    v_lshlrev_b32 v127, 4, v114
    v_lshlrev_b32 v114, 1, v114
    v_lshlrev_b32 v115, 8, v113
    s_add_u32 s73, s46, {3*8192}
    v_add_u32 v115, s73, v115""")
    for jj in range(4):
        A(f"v_add_u32 v116, {4*jj}, v104\nv_xor_b32 v116, v116, v114\nv_lshl_add_u32 v{4+jj}, v116, 4, v115")
    A("""v_lshrrev_b32 v116, 2, v0
    v_and_b32 v117, 7, v116
    v_lshl_add_u32 v116, v116, 8, v118
    v_add_u32 v116, s73, v116""")
    for b in range(8):
        A(f"v_xor_b32 v119, {b}, v117\nv_lshl_add_u32 v{8+b}, v119, 5, v116")
    A(f"""v_lshl_add_u32 v16, v127, 4, v125
    v_add_u32 v16, {MISC + QBUF}, v16
    v_lshl_add_u32 v127, v125, 3, v127
    s_lshl_b32 s73, s76, 12
    s_add_u32 s73, s73, {MISC + SBUF}
    v_add_u32 v127, s73, v127
    v_mov_b32 v120, 0xff800000
    v_mov_b32 v121, 0
    s_mov_b32 s49, 4
    s_mov_b32 s50, {LOG2E:#x}
    s_mov_b32 s51, {SCALE:#x}
    s_mov_b32 s52, 0x6000
    s_mov_b32 s53, 0""")
    spin(1, F_LAND, 3, 3)
    stamp(4, "C")
    gd = lambda b: 32 + 4*b if b < 8 else 96 + 4*(b - 8)
    tr_mfma([(123, 32*b, 32*b + 1792, 64 + 4*(b % 8), gd(b)) for b in range(14)], 136, rel=3)
    ex(N0)
    for b in range(14): A(f"ds_write_b128 v122, v[{gd(b)}:{gd(b)+3}] offset:{b*64}")
    cnt_add(C_H)
    stamp(5, "C")

    def k_reads(f0):
        spin(1, F_LAND, "s49", 3)
        for k in range(8): A(f"ds_read_b128 v[{f0+4*k}:{f0+3+4*k}], v{4+(k>>1)} offset:{(k&1)*4096}")
        A("s_waitcnt lgkmcnt(0)")
        release("s49")
        for jj in range(4): A(f"v_xor_b32 v{4+jj}, s52, v{4+jj}")
        A("s_xor_b32 s52, s52, 0x4000\ns_add_u32 s49, s49, 1")
    k_reads(64); k_reads(128)
    k_reads(32)
    stamp(6, "C")
    A("v_mov_b32 v113, v16")
    spin(2, C_Q, 1, 3)
    for jj in range(4): A(f"ds_read_b128 v[{16+4*jj}:{19+4*jj}], v113 offset:{jj*64}")
    A("s_waitcnt lgkmcnt(0)")
    stamp(7, "C")
    A("L_c_qk:")
    for k in range(8): mfma(96 + 4*(k & 1), 64 + 4*k, 16 + 4*(k >> 1), k >= 2)
    for i in range(4): A(f"v_cvt_pk_bf16_f32 v{104+i}, v{96+2*i}, v{97+2*i}")
    unpack(96, 104, 4)
    for i in range(8): A(f"v_mul_f32 v{96+i}, s51, v{96+i}")
    for i in range(4): A(f"v_cvt_pk_bf16_f32 v{104+i}, v{96+2*i}, v{97+2*i}")
    A("ds_write_b128 v127, v[104:107]\nv_add_u32 v127, 512, v127")
    unpack(96, 104, 4)
    A(f"""v_max3_f32 v120, v120, v96, v97
    v_max3_f32 v109, v98, v99, v100
    v_max3_f32 v120, v120, v101, v102
    v_max3_f32 v120, v120, v109, v103
    s_add_u32 s53, s53, 1
    s_cmp_le_u32 s53, 2
    s_cbranch_scc1 L_c_staged
    s_cmp_eq_u32 s53, 8
    s_cbranch_scc1 L_c_kdone""")
    k_reads(64)
    A("s_branch L_c_qk\nL_c_staged:")
    for r in range(32): A(f"v_mov_b32 v{64+r}, v{128+r}")
    for r in range(32): A(f"v_mov_b32 v{128+r}, v{32+r}")
    A("s_branch L_c_qk")
    A("L_c_kdone:")
    xrow("v_max_f32", (120,), (109,))
    for r in range(32): A(f"v_mov_b32 v{32+r}, 0")
    A("v_mul_f32 v110, s50, v120\nv_subrev_u32 v127, 4096, v127\ns_mov_b32 s52, 0x6000")
    A("L_c_exp:\nds_read_b128 v[104:107], v127\ns_waitcnt lgkmcnt(0)")
    unpack(96, 104, 4)
    for i in range(8): A(f"v_fma_f32 v{96+i}, v{96+i}, s50, -v110")
    for i in range(8): A(f"v_exp_f32 v{96+i}, v{96+i}")
    for i in range(4): A(f"v_cvt_pk_bf16_f32 v{104+i}, v{96+2*i}, v{97+2*i}")
    A("""v_pk_add_f32 v[96:97], v[96:97], v[98:99]
    v_pk_add_f32 v[100:101], v[100:101], v[102:103]
    ds_write_b128 v127, v[104:107]
    v_pk_add_f32 v[96:97], v[96:97], v[100:101]
    v_add_u32 v127, 512, v127
    v_add_f32 v121, v121, v96
    v_add_f32 v121, v121, v97
    s_sub_u32 s53, s53, 1
    s_cmp_lg_u32 s53, 0
    s_cbranch_scc1 L_c_exp
    v_subrev_u32 v127, 4096, v127""")
    stamp(8, "C")
    xrow("v_add_f32", (121,), (109,))
    A(f"""s_lshl_b32 s73, s76, 6
    s_add_u32 s73, s73, {MISC + MLX}
    v_lshl_add_u32 v112, v0, 3, s73""")
    ex(0xff, 0)
    A("ds_write_b64 v112, v[120:121]")
    cnt_add(C_ML)
    A(f"""v_lshrrev_b32 v113, 5, v0
    s_lshl_b32 s73, s76, 1
    v_add_u32 v113, s73, v113
    v_lshlrev_b32 v112, 3, v113
    v_add_u32 v112, {MISC + MLX}, v112""")
    spin(2, C_ML, 4, 3, also=[f"ds_read_b64 v[{96+2*k}:{97+2*k}], v112 offset:{k*64}" for k in range(4)])
    A("v_max3_f32 v104, v96, v98, v100\nv_max_f32 v104, v104, v102")
    for k in range(4): A(f"v_sub_f32 v{160+k}, v{96+2*k}, v104\nv_mul_f32 v{160+k}, s50, v{160+k}")
    for k in range(4): A(f"v_exp_f32 v{160+k}, v{160+k}")
    if True:
        A(f"""s_cmp_lg_u32 s76, 0
        s_cbranch_scc1 L_c_noml
        v_lshl_add_u32 v112, v0, 3, v2
        v_mov_b32 v106, 0
        v_mov_b32 v107, 0
        s_lshl_b32 s47, s2, 7
        s_add_u32 s47, s47, {ML}""")
        ex(0xff, 0)
        for k in range(4): A(f"ds_read_b64 v[{96+2*k}:{97+2*k}], v112 offset:{MLX + k*64}")
        A("s_waitcnt lgkmcnt(0)\nv_max3_f32 v104, v96, v98, v100\nv_max_f32 v104, v104, v102")
        for k in range(4): A(f"v_sub_f32 v{96+2*k}, v{96+2*k}, v104\nv_mul_f32 v{96+2*k}, s50, v{96+2*k}")
        for k in range(4): A(f"v_exp_f32 v{96+2*k}, v{96+2*k}")
        A("v_mul_f32 v105, v96, v97\nv_fmac_f32 v105, v98, v99\nv_fmac_f32 v105, v100, v101\nv_fmac_f32 v105, v102, v103")
        tag(104, 166)
        A(f"buffer_store_dwordx4 v[104:107], v126, s[{WS}:{WS+3}], s47 offen {pol('ms')}\nL_c_noml:")
    ex(-1)
    A(f"""v_and_b32 v115, 7, v0
    v_mul_u32_u24 v115, 528, v115
    s_add_u32 s73, s46, 8192
    v_add3_u32 v115, v115, v125, s73
    v_and_b32 v117, 31, v0
    v_mul_u32_u24 v116, 528, v113
    v_lshl_add_u32 v116, v117, 4, v116
    v_add_u32 v116, 8192, v116
    v_add_u32 v118, 0x10000, v116
    v_lshrrev_b32 v119, 3, v117
    v_lshl_add_u32 v119, v113, 2, v119
    v_and_b32 v117, 7, v0
    v_lshlrev_b32 v117, 4, v117
    v_lshl_add_u32 v117, v119, 13, v117
    s_lshl_b32 s47, s64, 11
    s_add_u32 s47, s47, s65
    s_lshl_b32 s47, s47, 7
    s_add_u32 s47, s47, {OP}
    s_lshl_b32 s73, s76, 6
    s_add_u32 s74, s73, {MISC + HBUF}
    v_add_u32 v108, s74, v125
    s_add_u32 s74, s73, {MISC + OBUF}
    v_add_u32 v114, s74, v125
    v_lshrrev_b32 v113, 5, v0
    v_bfe_u32 v109, v0, 4, 1
    v_lshl_add_u32 v113, v109, 1, v113
    v_bfe_u32 v109, v0, 2, 1
    v_lshl_add_u32 v113, v109, 2, v113
    v_and_b32 v109, 3, v0
    v_lshl_add_u32 v113, v109, 3, v113
    v_lshl_add_u32 v113, v113, 1, s74
    v_lshrrev_b32 v109, 3, v0
    v_lshlrev_b32 v109, 5, v109
    v_add_u32 v109, {MISC + WBUF}, v109
    s_lshl_b32 s73, s76, 9
    s_add_u32 s73, s73, {MISC + FRED}
    v_add_u32 v119, s73, v125
    s_lshl_b32 s44, s66, 2
    s_add_u32 s44, s44, s76
    s_lshl_b32 s44, s44, 13
    s_add_u32 s44, s44, {OP}
    s_add_u32 s45, s44, 4096""")
    A('; ---- P x V')
    vblk = lambda off: [(8 + b, off, off + 4096, 64 + 4*b, 32 + 4*b) for b in range(8)]
    A("L_cloop:\nds_read_b128 v[104:107], v127\nv_add_u32 v127, 512, v127\ns_cmp_eq_u32 s49, 19\ns_cbranch_scc1 L_c_last")
    spin(1, F_LAND, "s49", 3)
    tr_mfma(vblk(0), 104, acc=True, rel="s49")
    for b in range(8): A(f"v_xor_b32 v{8+b}, s52, v{8+b}")
    A("s_xor_b32 s52, s52, 0x4000\ns_add_u32 s49, s49, 1\ns_branch L_cloop")
    A("L_c_last:")
    spin(2, C_HR, 1, 3, also=("ds_read_b128 v[16:19], v108",))
    spin(2, C_W, 1, 3, also=("ds_read_b128 v[96:99], v109", "ds_read_b128 v[100:103], v109 offset:16"))
    tr_mfma(vblk(0), 104, acc=True, writes=lambda b: A(f"ds_write_b128 v115, v[{32+4*b}:{35+4*b}] offset:{b*64}"), wait=19)
    cnt_add(C_O)
    spin(2, C_O, 4, 3, also=("ds_read_b128 v[64:67], v116", "ds_read_b128 v[68:71], v116 offset:32768",
                             "ds_read_b128 v[72:75], v118", "ds_read_b128 v[76:79], v118 offset:32768"))
    for h in range(2): A(f"v_pk_mul_f32 v[{64+2*h}:{65+2*h}], v[{64+2*h}:{65+2*h}], v[160:161] op_sel_hi:[1,0]")
    for k in range(1, 4):
        sel = "op_sel:[0,1,0] op_sel_hi:[1,1,1]" if k & 1 else "op_sel_hi:[1,0,1]"
        f = 160 + (k & 2)
        for h in range(2): A(f"v_pk_fma_f32 v[{64+2*h}:{65+2*h}], v[{64+4*k+2*h}:{65+4*k+2*h}], v[{f}:{f+1}], v[{64+2*h}:{65+2*h}] {sel}")
    tag(64, 166)
    A(f"buffer_store_dwordx4 v[64:67], v117, s[{WS}:{WS+3}], s47 offen {pol('os')}")
    stamp(10, "C")
    tr_mfma(vblk(8192), 16, writes=lambda b: A(f"ds_write_b128 v119, v[{32+4*b}:{35+4*b}] offset:{64*b}"), mask=N0, wait=20)
    cnt_add(C_PF)
    stamp(12, "C")
    for b in range(8): A(f"v_xor_b32 v{8+b}, 0x4000, v{8+b}")
    old = [f"buffer_load_dwordx4 v[{128+4*i}:{131+4*i}], v126, s[{WS}:{WS+3}], s{44+(i>>2)} offen offset:{1024*(i&3)} {pol('o')}" for i in range(8)]
    def wo_frags():
        for b in range(8):
            if b == 7: A("s_waitcnt lgkmcnt(4)")
            A(f"ds_read_b64_tr_b16 v[{64+4*b}:{65+4*b}], v{8+b}\nds_read_b64_tr_b16 v[{66+4*b}:{67+4*b}], v{8+b} offset:4096")
    stamp(13, "C")
    spin(1, F_LAND, 21, 3)
    if "O" not in skip:
        for t in old: A(t)
    stamp(15, "C")
    wo_frags()
    if "O" not in skip: poll(old, range(128, 160), 110, issued=True, cnt=("C", 30))
    stamp(14, "C")
    for h in range(2): A(f"v_pk_mul_f32 v[{128+2*h}:{129+2*h}], v[{128+2*h}:{129+2*h}], v[96:97] op_sel_hi:[1,0]")
    for i in range(1, 8):
        sel = "op_sel:[0,1,0] op_sel_hi:[1,1,1]" if i & 1 else "op_sel_hi:[1,0,1]"
        f = 96 + (i & 6)
        for h in range(2): A(f"v_pk_fma_f32 v[{128+2*h}:{129+2*h}], v[{128+4*i+2*h}:{129+4*i+2*h}], v[{f}:{f+1}], v[{128+2*h}:{129+2*h}] {sel}")
    A(f"""v_permlane32_swap_b32 v128, v129
    v_permlane32_swap_b32 v130, v131
    v_add_f32 v128, v128, v129
    v_add_f32 v130, v130, v131
    v_permlane16_swap_b32 v128, v130
    v_add_f32 v128, v128, v130
    v_add_f32_dpp v128, v128, v128 row_ror:8 {DPP}
    v_cvt_pk_bf16_f32 v128, v128, v128
    ds_write_b16 v113, v128
    ds_read_b128 v[104:107], v114""")
    ex(N0)
    A("s_waitcnt lgkmcnt(0)")
    for b in range(12):
        if b < 8: mfma(32 + 4*b, 64 + 4*b, 104, False)
        if b >= 4: A(f"ds_write_b128 v119, v[{16+4*b}:{19+4*b}] offset:{SRED - FRED + 64*(b-4)}")
    A(f"s_mov_b64 exec, 1\nds_add_u32 v2, v124 offset:{C_PS}")
    stamp(16, "C")
    stamp_flush("C")
    A("s_endpgm")

    A("L_P:")
    A("s_barrier")
    more_idx()
    srd(WS, 26, 1 << 28); srd(OUT, 22, 2048)
    stamp(0, "P")
    A(f"""v_lshlrev_b32 v1, 4, v0
    v_mov_b32 v2, {MISC}
    v_mov_b32 v4, 0
    v_mov_b32 v5, {TAGM:#x}
    v_mov_b32 v10, 1
    v_lshrrev_b32 v8, 5, v0
    v_bfe_u32 v9, v0, 4, 1
    v_lshl_add_u32 v8, v9, 1, v8
    v_lshlrev_b32 v8, 1, v8
    s_and_b32 s44, s2, 7
    s_lshl_b32 s44, s44, 5
    s_lshr_b32 s73, s2, 3
    s_or_b32 s44, s44, s73
    s_lshl_b32 s51, s44, 4
    s_lshl_b32 s44, s44, 3
""")
    A(f"""s_lshl_b32 s47, s64, 4
    s_add_u32 s47, s47, s68
    s_lshl_b32 s47, s47, 4
    s_add_u32 s47, s47, s69
    s_lshl_b32 s47, s47, 7
    v_lshrrev_b32 v14, 3, v0
    v_and_b32 v12, 7, v0
    v_lshlrev_b32 v6, 4, v12
    v_lshl_or_b32 v7, v14, 11, v6
    v_lshl_or_b32 v6, v14, 9, v6
    v_lshlrev_b32 v15, 3, v0
    v_add_u32 v13, {MISC + QRED}, v15
    v_mul_u32_u24 v11, 7, v14
    v_add_u32 v11, v11, v12
    v_lshlrev_b32 v11, 4, v11
    v_add_u32 v11, {MISC + HRED}, v11
    s_lshl_b32 s48, s70, 7
    s_lshl_b32 s73, s72, 3
    s_add_u32 s48, s48, s73
    s_add_u32 s48, s48, s71
    s_lshl_b32 s48, s48, 7
    s_add_u32 s48, s48, {HP}""")

    def rank_at(count, tail):
        A(f"; progress hint at tile count {count}")
        ex(-1, 0)
        spin(2, F_LAND, count, 3)
        A(f"""buffer_load_dword v37, v36, s[{WS}:{WS+3}], s54 offen sc1
        s_add_u32 s56, s48, {count}
        v_mov_b32 v38, s56
        s_mov_b64 exec, 1
        buffer_store_dword v38, v4, s[{WS}:{WS+3}], s55 offen
        s_mov_b32 exec_lo, -1
        s_waitcnt vmcnt(1)
        v_subrev_u32 v37, s56, v37
        v_cmp_gt_u32 vcc, 32, v37
        s_bcnt1_i32_b32 s61, vcc_lo""")
        if tail: A(f"s_cmp_lt_u32 s61, {rk[1]}\ns_cselect_b32 s56, 1, 0")
        else: A(f"s_cmp_lt_u32 s61, {rv[1]}\ns_cselect_b32 s56, 1, 0\ns_cmp_ge_u32 s61, {rv[3]}\ns_cselect_b32 s56, 2, s56")
        A(f"v_mov_b32 v37, s56\nds_write_b32 v2, v37 offset:{C_T if tail else C_D}\ns_mov_b64 exec, -1")

    def rank_setup():
        A(f"""s_and_b32 s54, s2, 7
        s_lshl_b32 s54, s54, 8
        s_add_u32 s54, s54, {PG}
        s_lshr_b32 s55, s2, 3
        s_lshl_b32 s55, s55, 2
        s_add_u32 s55, s55, s54
        v_lshlrev_b32 v36, 2, v0
        s_lshl_b32 s48, s84, 8""")

    def rank():
        if rk: rank_at(rk[0], True)

    def rank_v(lo, hi):
        if rv:
            for c in rv[0]:
                if lo <= c < hi: rank_at(c, False)

    def epoch():
        l = A.lab("noep")
        A(f"""s_cmp_lg_u32 s2, 0
        s_cbranch_scc1 {l}
        s_mov_b64 exec, 1
        v_mov_b32 v16, s84
        s_mov_b32 s45, {EP}
        buffer_store_dword v16, v4, s[{WS}:{WS+3}], s45 offen
        {l}:""")
    if lonly:
        A("s_waitcnt lgkmcnt(0)"); tags_setup(); rank_setup(); rank_v(0, 99); rank(); epoch(); stamp(8, "P"); stamp_flush("P"); A("s_endpgm")
    ex(-1, 0)
    spin(2, C_A, 1, 3)
    tags_setup()
    A("v_mov_b32 v25, s84\nv_mov_b32 v27, s84")
    spin(2, C_A, 4, 3, also=[f"ds_read_b64 v[{16+2*k}:{17+2*k}], v13 offset:{k*256}" for k in range(4)])
    A(f"""v_pk_add_f32 v[16:17], v[16:17], v[18:19]
    v_pk_add_f32 v[20:21], v[20:21], v[22:23]
    v_add_f32 v24, v16, v20
    v_add_f32 v26, v17, v21
    buffer_store_dwordx4 v[24:27], v6, s[{WS}:{WS+3}], s47 offen offset:{QP} {pol('qs')}
    s_mov_b64 exec, -1
    buffer_load_ushort v9, v8, s[{XS}:{XS+3}], s44 offen""")
    stamp(1, "P")

    def sum4(n=4):
        for h in range(2):
            A(f"v_pk_add_f32 v[{16+2*h}:{17+2*h}], v[{16+2*h}:{17+2*h}], v[{20+2*h}:{21+2*h}]\nv_pk_add_f32 v[{24+2*h}:{25+2*h}], v[{24+2*h}:{25+2*h}], v[{28+2*h}:{29+2*h}]")
        for h in range(2):
            A(f"v_pk_add_f32 v[{16+2*h}:{17+2*h}], v[{16+2*h}:{17+2*h}], v[{24+2*h}:{25+2*h}]")
    spin(2, C_H, 4, 3)
    for k in range(4): A(f"ds_read_b128 v[{16+4*k}:{19+4*k}], v11 offset:{k*896}")
    A("s_waitcnt lgkmcnt(0)")
    sum4()
    for r in range(4): A(f"v_add_u32 v{16+r}, {(TAGM+1)//2}, v{16+r}")
    tag(16, 5)
    A(f"buffer_store_dwordx4 v[16:19], v7, s[{WS}:{WS+3}], s48 offen {pol('hs')}")
    stamp(2, "P")
    A(f"s_lshl_b32 s47, s2, 9\ns_lshl_b32 s49, s2, 6\ns_add_u32 s49, s49, {QF}")
    ex(-1, 0)
    if tq1: spin(2, F_LAND, tq1, 3)
    if "p" not in skip: poll([f"buffer_load_dwordx4 v[16:19], v1, s[{WS}:{WS+3}], s47 offen offset:{QP} {pol('q')}"], range(16, 20), 20, words=True, slp=6)
    for r in (16, 18): A(f"v_add_f32_dpp v{r}, v{r}, v{r} row_ror:8 {DPP}")
    A("""v_mov_b32 v17, v16
    v_mov_b32 v19, v18
    v_permlane16_swap_b32 v16, v17
    v_permlane16_swap_b32 v18, v19
    v_add_f32 v16, v16, v17
    v_add_f32 v18, v18, v19
    v_cvt_pk_bf16_f32 v16, v16, v18
    v_mov_b32 v17, s84""")
    ex(0xff, 0)
    A(f"buffer_store_dwordx2 v[16:17], v15, s[{WS}:{WS+3}], s49 offen {pol('qfs')}")
    ex(-1)
    stamp(9, "P")
    A(f"s_lshl_b32 s47, s64, 12\ns_add_u32 s47, s47, {QF}\nv_add_u32 v13, {MISC + QBUF}, v15")
    rank_setup()
    rank_v(0, tq)
    spin(2, F_LAND, tq, 3)
    if "q" not in skip: poll([f"buffer_load_dwordx4 v[{16+4*k}:{19+4*k}], v1, s[{WS}:{WS+3}], s47 offen offset:{1024*k} sc1" for k in range(4)],
                             range(16, 32), 32, words=True, slp=6)
    for k in range(4): A(f"v_mov_b32 v{17+4*k}, v{18+4*k}\nds_write_b64 v13, v[{16+4*k}:{17+4*k}] offset:{512*k}")
    A(f"ds_write_b32 v2, v10 offset:{C_Q}")
    stamp(13, "P")
    rank_v(tq, th1)
    A(f"""s_lshl_b32 s45, s66, 2
    s_add_u32 s46, s45, s67
    s_lshl_b32 s45, s45, 7
    s_add_u32 s45, s45, {HF}
    s_cmp_ge_u32 s67, 4
    s_cbranch_scc1 L_p_noh
    s_lshl_b32 s47, s46, 11
    s_add_u32 s47, s47, {HP}
    s_lshl_b32 s46, s46, 7
    s_add_u32 s46, s46, {HF}""")
    spin(2, F_LAND, th1, 3)
    if "h" not in skip:
        poll([f"buffer_load_dwordx4 v[16:19], v1, s[{WS}:{WS+3}], s47 offen {pol('h')}",
              f"buffer_load_dwordx4 v[20:23], v1, s[{WS}:{WS+3}], s47 offen offset:1024 {pol('h')}"], range(16, 24), 24, slp=16)
    R = range(16, 20); T = range(20, 24)
    for r in R: A(f"v_permlane32_swap_b32 v{r}, v{r+4}")
    for r in R: A(f"v_add_f32 v{r}, v{r}, v{r+4}")
    for r in R: A(f"v_add_f32_dpp v{r}, v{r}, v{r} row_ror:8 {DPP}")
    for r in R: A(f"v_mov_b32 v{r+4}, v{r}")
    for r in R: A(f"v_permlane16_swap_b32 v{r}, v{r+4}")
    for r in R: A(f"v_add_f32 v{r}, v{r}, v{r+4}")
    rnd(*R)
    for r in R: A(f"v_mov_b32 v{r+4}, v{r}")
    for r in R: A(f"v_permlane32_swap_b32 v{r}, v{r+4}")
    silu(R, range(24, 28)); rnd(*R)
    for r in R: A(f"v_mul_f32 v{r}, v{r}, v{r+4}")
    A(f"""v_cvt_pk_bf16_f32 v16, v16, v17
    v_cvt_pk_bf16_f32 v18, v18, v19
    v_cmp_eq_u32 vcc, 7, v12
    v_mov_b32 v17, s84
    v_mov_b32 v19, s84
    v_cndmask_b32 v16, v16, v4, vcc
    v_cndmask_b32 v18, v18, v4, vcc
    v_and_b32 v13, 3, v0
    v_lshlrev_b32 v13, 5, v13
    v_lshrrev_b32 v11, 2, v12
    v_lshl_add_u32 v13, v11, 4, v13""")
    ex(0xff, 0)
    A(f"buffer_store_dwordx4 v[16:19], v13, s[{WS}:{WS+3}], s46 offen {pol('hfs')}\nL_p_noh:")
    rank_v(th1, th2)
    ex(-1, 0)
    stamp(3, "P")
    A(f"v_add_u32 v13, {MISC + HBUF}, v15")
    spin(2, F_LAND, th2, 3)
    if "h" not in skip: poll([f"buffer_load_dwordx4 v[16:19], v1, s[{WS}:{WS+3}], s45 offen {pol('hf')}"], range(16, 20), 20, words=True, slp=16)
    ex(-1, 0)
    A(f"v_mov_b32 v17, v18\nds_write_b64 v13, v[16:17]\nds_write_b32 v2, v10 offset:{C_HR}")
    ex(-1)
    stamp(4, "P")
    A(f"s_lshl_b32 s47, s64, 13\ns_and_b32 s73, s2, 7\ns_lshl_b32 s73, s73, 4\ns_add_u32 s47, s47, s73\nv_lshlrev_b32 v11, 7, v0")
    A(f"""s_add_u32 s47, s47, {ML}
    s_mov_b32 s50, {LOG2E:#x}
    v_lshl_add_u32 v13, v12, 3, v14
    v_lshlrev_b32 v13, 2, v13
    v_add_u32 v13, {MISC + WBUF}, v13
    s_add_u32 s46, s51, {SI}
    s_add_u32 s45, s51, {FI}
    v_lshlrev_b32 v6, 12, v0
    v_add_u32 v7, {MISC + FRED}, v1
    s_lshl_b32 s52, s66, 3
    s_add_u32 s52, s52, s67
    s_lshl_b32 s52, s52, 9
    s_add_u32 s53, s52, {SI}
    s_add_u32 s52, s52, {FI}
    v_lshlrev_b32 v9, 16, v9""")
    rank_v(th2, 99)
    rank()
    spin(2, F_LAND, tml, 3)
    if "m" not in skip: poll([f"buffer_load_dwordx4 v[16:19], v11, s[{WS}:{WS+3}], s47 offen {pol('m')}"], range(16, 20), 20, slp=12, cnt=("P", 30))
    A("v_mov_b32 v18, v16")
    allred("v_max_f32", (18,), (19,))
    A("v_sub_f32 v16, v16, v18\nv_mul_f32 v16, s50, v16\nv_exp_f32 v16, v16\nv_mul_f32 v17, v17, v16")
    allred("v_add_f32", (17,), (19,))
    A(f"""v_rcp_f32 v18, v17
    v_fma_f32 v19, -v17, v18, 1.0
    v_fmac_f32 v18, v19, v18
    v_mul_f32 v16, v16, v18
    ds_write_b32 v13, v16
    s_mov_b64 exec, 1
    ds_write_b32 v2, v10 offset:{C_W}
    s_mov_b64 exec, -1""")
    stamp(11, "P")

    def publish(red, cnt, so):
        ex(-1, 0)
        spin(2, cnt, 1, 3)
        spin(2, cnt, 4, 3, also=[f"ds_read_b128 v[{16+4*j}:{19+4*j}], v7 offset:{red - FRED + 512*j}" for j in range(4)])
        sum4(); tag(16, 5)
        A(f"buffer_store_dwordx4 v[16:19], v1, s[{WS}:{WS+3}], {so} offen {pol('fs' if red == FRED else 'ss')}")

    def inbox(so, k):
        ex(-1)
        for r in range(4): A(f"v_mov_b32 v{32+r}, 0")
        A("s_mov_b32 exec_hi, 0")
        if "I" not in skip: poll([f"buffer_load_dwordx4 v[32:35], v6, s[{WS}:{WS+3}], {so} offen {pol('f' if k == 31 else 's')}"], range(32, 36), 24, cnt=("P", k))
        else: ex(-1)
        A("""v_permlane32_swap_b32 v32, v33
        v_permlane32_swap_b32 v34, v35
        v_add_f32 v32, v32, v33
        v_add_f32 v34, v34, v35
        v_permlane16_swap_b32 v32, v34
        v_add_f32 v32, v32, v34""")
        for m in (8, 4, 2, 1): A(f"v_add_f32_dpp v32, v32, v32 row_ror:{m} {DPP}")
        rnd(32)
    publish(FRED, C_PF, "s52")
    stamp(12, "P")
    publish(SRED, C_PS, "s53")
    stamp(5, "P")
    inbox("s45", 31)
    silu((32,), (24,)); rnd(32)
    A("v_mov_b32 v14, v32")
    stamp(6, "P")
    stamp(7, "P")
    inbox("s46", 32)
    A("v_mul_f32 v32, v32, v14"); rnd(32)
    A("v_add_f32 v32, v32, v9\nv_cvt_pk_bf16_f32 v32, v32, v32")
    ex(N0)
    A(f"buffer_store_short v32, v8, s[{OUT}:{OUT+3}], s44 offen")
    epoch()
    if floor:
        A(f"L_floor:\ns_memrealtime s[62:63]\ns_waitcnt lgkmcnt(0)\ns_sub_u32 s62, s62, s90\ns_cmp_lt_u32 s62, {floor}\ns_cbranch_scc1 L_floor")
    stamp(8, "P")
    stamp_flush("P")
    A("L_end:\ns_endpgm")

    bad = A.verify_edges()
    assert not bad, bad
    nv = 168
    txt = HEAD + f"; @launch grid=(256,1,1) block=(576,1,1) lds={LDS_BYTES}\n" + NOTES
    txt += f'.amdgcn_target "amdgcn-amd-amdhsa--gfx950"\n.text\n.globl {KN}\n.p2align 8\n.type {KN},@function\n'
    txt += A.text()
    txt += f""".section .rodata,"a"
.p2align 6
.amdhsa_kernel {KN}
  .amdhsa_next_free_vgpr {nv}
  .amdhsa_next_free_sgpr 96
  .amdhsa_accum_offset {nv}
  .amdhsa_group_segment_fixed_size 0
  .amdhsa_kernarg_size 96
  .amdhsa_user_sgpr_count 2
  .amdhsa_user_sgpr_kernarg_segment_ptr 1
  .amdhsa_system_sgpr_workgroup_id_x 1
  .amdhsa_float_denorm_mode_32 3
.end_amdhsa_kernel
"""
    return txt


if __name__ == "__main__":
    kw = eval("dict(%s)" % (sys.argv[2] if len(sys.argv) > 2 else ""))
    open(sys.argv[1], "w").write(gen(**kw))
```
